```python
import torch

def _softmax(x, axis=-1):
    return torch.softmax(x, dim=axis)
def _gelu(x):
    return torch.nn.functional.gelu(x, approximate="tanh")
def _silu(x):
    return torch.nn.functional.silu(x)
def _sigmoid(x):
    return torch.sigmoid(x)
def _layernorm(x, axis=-1, eps=1e-5):
    m = x.mean(dim=axis, keepdim=True)
    v = x.var(dim=axis, keepdim=True, unbiased=False)
    return (x - m) / torch.sqrt(v + eps)
def _scatter_add(tgt, idx, src, axis=0):
    return tgt.clone().index_add_(axis, idx, src)
def _segment_sum(src, seg, n):
    out = torch.zeros((n,) + src.shape[1:], dtype=src.dtype)
    return out.index_add_(0, seg, src)
def _pad(x, pw):
    flat = tuple(v for pair in reversed(pw) for v in pair)
    return torch.nn.functional.pad(x, flat)

kernel_name = 'standalone__weight_only_int_quip__prompt'

def setup_inputs():

    _w = (lambda a: (lambda t: t.to(torch.bfloat16) if t.is_floating_point() else t)(torch.as_tensor(a)))
    B, S, D, F = 1, 2048, 1024, 3584
    G = 64 if 64 > 0 else D
    D = (D // G) * G
    ng = D // G
    bits = 4 if 4 > 0 else 4
    qmax = 1 << bits
    qw = torch.randint(0, qmax, (D, F)).to(torch.int32)
    U, _ = (lambda *_a, **_k: torch.linalg.qr(*[torch.as_tensor(_x).float() for _x in _a], **_k))((lambda *s: torch.randn(*s, dtype=torch.bfloat16) * 0.05)(D, D))
    V, _ = (lambda *_a, **_k: torch.linalg.qr(*[torch.as_tensor(_x).float() for _x in _a], **_k))((lambda *s: torch.randn(*s, dtype=torch.bfloat16) * 0.05)(F, F))
    return {
        "x": _w((lambda *s: torch.randn(*s, dtype=torch.bfloat16) * 0.05)(B, S, D)),
        "qw": _w(qw),
        "scales": _w(torch.abs((lambda *s: torch.randn(*s, dtype=torch.bfloat16) * 0.05)(ng, F)) * 0.02 + 0.005),
        "zeros": _w(torch.full((ng, F), qmax / 2.0, dtype=float)),
        "U": _w(U.to(float)),
        "V": _w(V.to(float)),
    }

def reference(x, qw, scales, zeros, U, V):
    B, S, D = x.shape
    ng, F = scales.shape
    G = D // ng
    s = (lambda x, n, axis: torch.repeat_interleave(x, n, dim=axis))(scales, G, axis=0)
    z = (lambda x, n, axis: torch.repeat_interleave(x, n, dim=axis))(zeros, G, axis=0)
    wq = ((lambda x, dt: x.to(dt))(qw, x.dtype) - z) * s
    xr = torch.einsum("bsd,de->bse", x, U)
    h  = torch.einsum("bse,ef->bsf", xr, wq)
    y  = torch.einsum("bsf,fg->bsg", h, V)
    return y
```

```python
class Asm:
    def __init__(self):
        self.lines = []
    def __call__(self, s=""):
        for l in s.split("\n"):
            self.lines.append(l)
    def text(self):
        return "\n".join(self.lines) + "\n"

def kd(name, vgpr, accum, sgpr=102, wgy=False):
    s = f""".amdhsa_kernel {name}
  .amdhsa_next_free_vgpr {vgpr}
  .amdhsa_next_free_sgpr {sgpr}
  .amdhsa_accum_offset {accum}
  .amdhsa_group_segment_fixed_size 0
  .amdhsa_kernarg_size 72
  .amdhsa_user_sgpr_count 2
  .amdhsa_user_sgpr_kernarg_segment_ptr 1
  .amdhsa_system_sgpr_workgroup_id_x 1
  .amdhsa_float_denorm_mode_32 3
"""
    if wgy: s += "  .amdhsa_system_sgpr_workgroup_id_y 1\n"
    s += ".end_amdhsa_kernel\n"
    return s
```

```python
import sys
from asm import Asm, kd

S, D, F = 2048, 1024, 3584
WS_WQF = 0
WS_XF = 8 << 20
WS_XRF = 12 << 20
WS_WPF = 16 << 20
SZ_WQF = D * F * 2
SZ_XF = S * D * 2

HDR = """; Kernarg layout (72 bytes, ptrs only, base s[0:1]):
"""


def srd(a, d, b, nbytes, add=0):
    if add:
        a(f"s_add_u32 s{d}, s{b}, {add}")
        a(f"s_addc_u32 s{d+1}, s{b+1}, 0")
    else:
        a(f"s_mov_b32 s{d}, s{b}")
        a(f"s_mov_b32 s{d+1}, s{b+1}")
    a(f"s_mov_b32 s{d+2}, {nbytes}")
    a(f"s_mov_b32 s{d+3}, 0x20000")


def head(a, name):
    a(f".globl {name}\n.p2align 8\n.type {name},@function\n{name}:")


def interleave(a, mf, others):
    for i, m in enumerate(mf):
        if isinstance(m, tuple):
            for p in m[0]:
                a(p)
            a(m[1])
        else:
            a(m)
        for o in others.get(i, []):
            a(o)


def gen_prep(a, opt):
    nt = " nt" if opt.get("prep_nt", 1) else ""
    head(a, "prep_kernel")
    a("s_cmp_ge_u32 s2, 576\ns_cbranch_scc1 Lp_end")
    a("s_load_dwordx4 s[4:7], s[0:1], 0")
    a("s_load_dwordx4 s[8:11], s[0:1], 16")
    a("s_load_dwordx2 s[12:13], s[0:1], 64")
    a("v_lshrrev_b32 v1, 6, v0")
    a("v_and_b32 v0, 63, v0")
    a("v_readfirstlane_b32 s3, v1")
    a("v_lshrrev_b32 v2, 2, v0")
    a("v_and_b32 v3, 3, v0")
    a("v_and_b32 v4, 15, v0\nv_lshlrev_b32 v4, 2, v4\nv_lshrrev_b32 v5, 4, v0\nv_add_u32 v4, v4, v5\nv_lshlrev_b32 v4, 2, v4")
    a("v_lshlrev_b32 v5, 4, v0")
    a("s_cmp_ge_u32 s2, 448\ns_cbranch_scc1 Lp_x")
    a("s_mov_b32 s14, 153391690\ns_mul_hi_u32 s14, s2, s14")
    a("s_mul_i32 s15, s14, 28\ns_sub_u32 s15, s2, s15\ns_lshl_b32 s15, s15, 2\ns_add_u32 s15, s15, s3")
    a("v_mul_u32_u24 v6, 14336, v2\nv_lshl_add_u32 v6, v3, 4, v6")
    a("v_lshlrev_b32 v7, 3, v3")
    a(f"s_mul_i32 s16, s14, {64*14336}\ns_lshl_b32 s17, s15, 7\ns_add_u32 s16, s16, s17")
    a("s_mul_i32 s17, s14, 7168\ns_lshl_b32 s18, s15, 6\ns_add_u32 s17, s17, s18")
    a(f"s_mul_i32 s18, s14, {2*112*2048}\ns_lshl_b32 s19, s15, 11\ns_add_u32 s18, s18, s19")
    a("s_waitcnt lgkmcnt(0)")
    srd(a, 20, 6, D * F * 4)
    srd(a, 24, 8, 16 * F * 2)
    srd(a, 28, 10, 16 * F * 2)
    srd(a, 32, 12, SZ_WQF, WS_WQF)
    for t in range(2):
        a(f"buffer_load_dwordx2 v[{8+2*t}:{9+2*t}], v7, s[24:27], s17 offen offset:{32*t}")
        a(f"buffer_load_dwordx2 v[{12+2*t}:{13+2*t}], v7, s[28:31], s17 offen offset:{32*t}")
    for dt in range(4):
        for t in range(2):
            r = 32 + dt * 8 + t * 4
            a(f"buffer_load_dwordx4 v[{r}:{r+3}], v6, s[20:23], s16 offen offset:{64*t}{nt}")
        if dt < 3:
            a(f"s_add_u32 s16, s16, {16*14336}")
    a("s_waitcnt vmcnt(8)")
    for j in range(4):
        a(f"v_lshlrev_b32 v{16+2*j}, 16, v{8+j}\nv_and_b32 v{17+2*j}, 0xffff0000, v{8+j}")
        a(f"v_lshlrev_b32 v{24+2*j}, 16, v{12+j}\nv_and_b32 v{25+2*j}, 0xffff0000, v{12+j}")
    for dt in range(4):
        a(f"s_waitcnt vmcnt({6-2*dt + dt})")
        r = 32 + dt * 8
        for e in range(8):
            a(f"v_cvt_f32_i32 v{r+e}, v{r+e}")
        for e in range(8):
            a(f"v_sub_f32 v{r+e}, v{r+e}, v{24+e}")
        for p in range(4):
            a(f"v_cvt_pk_bf16_f32 v{8+p}, v{r+2*p}, v{r+2*p+1}")
        for p in range(4):
            a(f"v_lshlrev_b32 v{r+2*p}, 16, v{8+p}\nv_and_b32 v{r+2*p+1}, 0xffff0000, v{8+p}")
        for e in range(8):
            a(f"v_mul_f32 v{r+e}, v{r+e}, v{16+e}")
        for p in range(4):
            a(f"v_cvt_pk_bf16_f32 v{8+p}, v{r+2*p}, v{r+2*p+1}")
        for p in range(4):
            a(f"ds_bpermute_b32 v{r+p}, v4, v{8+p}")
        a("s_waitcnt lgkmcnt(0)")
        a(f"buffer_store_dwordx4 v[{r}:{r+3}], v5, s[32:35], s18 offen offset:{(dt&1)*1024}")
        if dt == 1:
            a(f"s_add_u32 s18, s18, {112*2048}")
    a("s_endpgm")
    a("Lp_x:")
    a("s_sub_u32 s14, s2, 448\ns_lshl_b32 s14, s14, 2\ns_add_u32 s14, s14, s3")
    a("s_lshr_b32 s15, s14, 3\ns_and_b32 s14, s14, 7")
    a("v_lshlrev_b32 v6, 11, v2\nv_lshl_add_u32 v6, v3, 4, v6")
    a("s_lshl_b32 s16, s15, 16\ns_lshl_b32 s17, s14, 8\ns_add_u32 s16, s16, s17")
    a("s_lshl_b32 s18, s15, 16\ns_lshl_b32 s17, s14, 13\ns_add_u32 s18, s18, s17")
    a("s_add_u32 s17, s16, 32768")
    a("s_waitcnt lgkmcnt(0)")
    srd(a, 20, 4, SZ_XF)
    srd(a, 32, 12, SZ_XF, WS_XF)
    for kb in range(4):
        for mt in range(2):
            r = 32 + (kb * 2 + mt) * 4
            a(f"buffer_load_dwordx4 v[{r}:{r+3}], v6, s[20:23], s{16+mt} offen offset:{64*kb}{nt}")
    for f in range(8):
        r = 32 + f * 4
        a(f"s_waitcnt vmcnt(7)")
        for p in range(4):
            a(f"ds_bpermute_b32 v{r+p}, v4, v{r+p}")
        a("s_waitcnt lgkmcnt(0)")
        a(f"buffer_store_dwordx4 v[{r}:{r+3}], v5, s[32:35], s18 offen offset:{(f&3)*1024}")
        if f == 3:
            a("s_add_u32 s18, s18, 4096")
    a("Lp_end:\ns_endpgm")


SLOT = 16 * 1056
NSLOT = 8
AHEAD = 6
V_ACC = 0
V_SH = 64
V_RD = 128
V_DMA = 132
V_OWN = 136
V_T = 140


def g1_loads(slot, ntS, ntO, sh_step):
    g = []
    for j in range(4):
        dma = []
        if j == 0:
            dma.append(f"s_add_u32 m0, s22, {slot*SLOT}")
            dma.append("s_nop 0")
        dma.append(f"buffer_load_dwordx4 v{V_DMA+j}, s[12:15], s21 offen offset:{j*1056}{ntS} lds")
        if j == 3:
            dma.append(f"s_add_u32 s21, s21, {sh_step}")
        g.append(dma)
        r = slot * 16 + j * 4
        own = [f"buffer_load_dwordx4 a[{r}:{r+3}], v{V_OWN}, s[8:11], s20 offen offset:{j*1024}{ntO}"]
        if j == 3:
            own.append("s_add_u32 s20, s20, 4096")
        g.append(own)
    return g


def g1_reads(slot, ks, buf):
    base = V_RD + slot // 3
    off = (slot % 3) * SLOT + ks * 8 * 1056
    out = []
    for c in range(8):
        for t in range(2):
            r = V_SH + buf * 32 + c * 4 + t * 2
            out.append(f"ds_read_b64_tr_b16 v[{r}:{r+1}], v{base} offset:{off + t*512 + c*32}")
    return out


def g1_mfmas(slot, ks, buf, swap, zero=False, wait=14):
    out = []
    for c in range(8):
        for dt in range(2):
            acc = V_ACC + (dt * 8 + c) * 4
            own = slot * 16 + (ks * 2 + dt) * 4
            sh = V_SH + buf * 32 + c * 4
            o, s_ = f"a[{own}:{own+3}]", f"v[{sh}:{sh+3}]"
            A, B = (s_, o) if swap else (o, s_)
            C = "0" if zero else f"v[{acc}:{acc+3}]"
            m = f"v_mfma_f32_16x16x32_bf16 v[{acc}:{acc+3}], {A}, {B}, {C}"
            if dt == 0:
                w = wait if isinstance(wait, int) else wait(c)
                out.append(([f"s_waitcnt lgkmcnt({w})"], m))
            else:
                out.append(m)
    return out


def g1_epilogue(a, swap):
    a("s_nop 7")
    for f in range(8):
        if not swap:
            lo, hi = V_ACC + f * 4, V_ACC + (8 + f) * 4
        else:
            lo = V_ACC + ((f & 1) * 8 + (f >> 1) * 2) * 4
            hi = lo + 4
        t = V_T + (f & 1) * 4
        a(f"v_cvt_pk_bf16_f32 v{t}, v{lo}, v{lo+1}\nv_cvt_pk_bf16_f32 v{t+1}, v{lo+2}, v{lo+3}")
        a(f"v_cvt_pk_bf16_f32 v{t+2}, v{hi}, v{hi+1}\nv_cvt_pk_bf16_f32 v{t+3}, v{hi+2}, v{hi+3}")
        if not swap:
            a(f"buffer_store_dwordx4 v[{t}:{t+3}], v{V_OWN}, s[16:19], s24 offen offset:{(f&3)*1024}")
            if f == 3:
                a("s_add_u32 s24, s24, 4096")
        else:
            a(f"buffer_store_dwordx4 v[{t}:{t+3}], v{V_OWN}, s[16:19], s24 offen offset:{(f&1)*1024}")
            if f & 1:
                a("s_add_u32 s24, s24, 4096")


def g1_role(a, L, swap, sh_stride, n_iter, iters_per_tile, own_jump, sh_jump, ntS, ntO):
    sh_step = 64 * sh_stride
    multi = iters_per_tile < n_iter
    for s in range(AHEAD):
        for g in g1_loads(s, ntS, ntO, sh_step):
            a("\n".join(g))

    def step(s, first, loads, vm, nstores=0):
        a(f"s_waitcnt vmcnt({vm})")
        a("s_barrier")
        lg = g1_loads((s + AHEAD) % NSLOT, ntS, ntO, sh_step) if loads else [[]] * 8
        rd0 = g1_reads(s, 0, 0)
        rd1 = g1_reads(s, 1, 1)
        if loads and multi and s == NSLOT - AHEAD:
            a("s_add_u32 s20, s20, s26\ns_add_u32 s21, s21, s27")
        if first == "start":
            for r in rd0:
                a(r)
            for g in lg[:4]:
                a("\n".join(g))
        else:
            oth = {i: [rd0[i]] for i in range(16)}
            for k in range(4):
                oth[4 * k + 1] = oth[4 * k + 1] + lg[k]
            interleave(a, g1_mfmas((s - 1) % NSLOT, 1, 1, swap), oth)
        zero = False
        if first == "start":
            zero = True
        if first == "maybe":
            a(f"s_and_b32 s28, s23, {iters_per_tile-1}\ns_cmp_lg_u32 s28, 0\ns_cbranch_scc1 {L}_noepi")
            g1_epilogue(a, swap)
            a("s_nop 1")
            for i in range(64):
                a(f"v_mov_b32 v{V_ACC+i}, 0")
            a(f"{L}_noepi:")
        oth = {i: [rd1[i]] for i in range(16)}
        for k in range(4):
            oth[4 * k + 1] = oth[4 * k + 1] + lg[4 + k]
        interleave(a, g1_mfmas(s, 0, 0, swap, zero=zero), oth)

    vm = (AHEAD - 1) * 8

    def set_jumps():
        if multi:
            a(f"s_add_u32 s28, s23, 1\ns_and_b32 s28, s28, {iters_per_tile-1}\ns_cmp_eq_u32 s28, 0")
            a(f"s_cselect_b32 s26, {own_jump & 0xffffffff}, 0\ns_cselect_b32 s27, {sh_jump & 0xffffffff}, 0")
    a("s_mov_b32 s23, 0")
    set_jumps()
    step(0, "start", True, vm)
    a(f"s_branch {L}_s1")
    a(f"{L}_loop:")
    set_jumps()
    step(0, "maybe" if multi else None, True, vm)
    a(f"{L}_s1:")
    step(1, None, True, vm)
    a(f"s_cmp_eq_u32 s23, {n_iter-1}\ns_cbranch_scc1 {L}_tail")
    for s in range(2, NSLOT):
        step(s, None, True, vm)
    a(f"s_add_u32 s23, s23, 1\ns_branch {L}_loop")
    a(f"{L}_tail:")
    for s in range(2, NSLOT):
        step(s, None, False, (NSLOT - 1 - s) * 8)
    interleave(a, g1_mfmas(NSLOT - 1, 1, 1, swap, wait=lambda c: 14 - 2 * c), {})
    g1_epilogue(a, swap)
    a("s_endpgm")


def gen_gemm1(a, opt):
    ntV = " nt" if opt.get("v_nt", 0) else ""
    head(a, "gemm1_kernel")
    a("s_cmp_ge_u32 s2, 256\ns_cbranch_scc1 Lg1_end")
    a("s_load_dwordx4 s[4:7], s[0:1], 32")
    a("s_load_dwordx2 s[30:31], s[0:1], 64")
    a("v_lshrrev_b32 v1, 6, v0")
    a("v_and_b32 v0, 63, v0")
    a("v_readfirstlane_b32 s3, v1")
    a(f"v_lshlrev_b32 v{V_OWN}, 4, v0")
    a("v_bfe_u32 v2, v0, 2, 3\nv_mul_u32_u24 v2, 1056, v2")
    a("v_lshrrev_b32 v3, 5, v0\nv_lshl_add_u32 v2, v3, 8, v2")
    a(f"v_and_b32 v3, 3, v0\nv_lshl_add_u32 v{V_RD}, v3, 3, v2")
    a(f"v_add_u32 v{V_RD+1}, {3*SLOT}, v{V_RD}\nv_add_u32 v{V_RD+2}, {6*SLOT}, v{V_RD}")
    a("s_mul_i32 s22, s3, 4224")
    a("v_lshrrev_b32 v2, 4, v0")
    a("v_and_b32 v3, 15, v0\nv_lshlrev_b32 v3, 4, v3")
    a("s_and_b32 s28, s2, 7\ns_lshr_b32 s29, s2, 3")
    a("s_cmp_ge_u32 s29, 28\ns_cbranch_scc1 Lg1_xr")
    if opt.get("map1", "2x4") == "2x4":
        a("s_and_b32 s32, s28, 1\ns_lshl_b32 s32, s32, 2\ns_and_b32 s33, s29, 3\ns_add_u32 s32, s32, s33")
        a("s_lshr_b32 s33, s28, 1\ns_mul_i32 s33, s33, 7\ns_lshr_b32 s34, s29, 2\ns_add_u32 s33, s33, s34")
    else:
        a("s_mul_i32 s33, s28, 28\ns_add_u32 s33, s33, s29\ns_and_b32 s32, s33, 7\ns_lshr_b32 s33, s33, 3")
    a("s_lshl_b32 s32, s32, 2\ns_add_u32 s32, s32, s3")
    a(f"s_mul_i32 s20, s32, {112*2048}")
    a("s_lshr_b32 s34, s3, 1\ns_lshl_b32 s34, s34, 5\ns_and_b32 s35, s3, 1\ns_lshl_b32 s35, s35, 2\ns_add_u32 s34, s34, s35")
    a("s_mul_i32 s21, s34, 7168\ns_lshl_b32 s35, s33, 8\ns_add_u32 s21, s21, s35")
    a(f"v_mul_u32_u24 v2, {8*7168}, v2\nv_add_u32 v{V_DMA}, v2, v3")
    for j in range(1, 4):
        a(f"v_add_u32 v{V_DMA+j}, {j*(7168-1056)}, v{V_DMA}")
    a(f"s_mul_i32 s24, s32, {224*1024}\ns_lshl_b32 s35, s33, 13\ns_add_u32 s24, s24, s35")
    a("s_waitcnt lgkmcnt(0)")
    srd(a, 8, 30, SZ_WQF, WS_WQF)
    srd(a, 12, 6, F * F * 2)
    srd(a, 16, 30, SZ_WQF, WS_WPF)
    g1_role(a, "Lw", False, 7168, 7, 8, 0, 0, ntV, "")
    a("Lg1_xr:")
    a("s_lshr_b32 s32, s28, 1\ns_lshl_b32 s32, s32, 2\ns_add_u32 s32, s32, s29\ns_sub_u32 s32, s32, 28")
    a("s_and_b32 s33, s28, 1\ns_lshl_b32 s33, s33, 2")
    a("s_lshl_b32 s32, s32, 2\ns_add_u32 s32, s32, s3")
    a("s_lshl_b32 s20, s32, 16")
    a("s_lshr_b32 s34, s3, 1\ns_lshl_b32 s34, s34, 5\ns_and_b32 s35, s3, 1\ns_lshl_b32 s35, s35, 3\ns_add_u32 s34, s34, s35")
    a("s_lshl_b32 s21, s34, 11\ns_lshl_b32 s35, s33, 8\ns_add_u32 s21, s21, s35")
    a("v_and_b32 v4, 1, v2\nv_lshlrev_b32 v4, 2, v4\nv_lshrrev_b32 v2, 1, v2\nv_add_u32 v2, v2, v4")
    a(f"v_lshl_add_u32 v{V_DMA}, v2, 13, v3")
    for j in range(1, 4):
        a(f"v_add_u32 v{V_DMA+j}, {j*(2048-1056)}, v{V_DMA}")
    a("s_lshr_b32 s24, s32, 1\ns_lshl_b32 s24, s24, 17\ns_lshl_b32 s35, s33, 14\ns_add_u32 s24, s24, s35")
    a("s_and_b32 s35, s32, 1\ns_lshl_b32 s35, s35, 11\ns_add_u32 s24, s24, s35")
    a("s_waitcnt lgkmcnt(0)")
    srd(a, 8, 30, SZ_XF, WS_XF)
    srd(a, 12, 4, D * D * 2)
    srd(a, 16, 30, SZ_XF, WS_XRF)
    g1_role(a, "Lx", True, 2048, 8, 2, -16 * 4096, -1024 * 2048 + 256, "", "")
    a("Lg1_end:\ns_endpgm")


SLOT2 = 28 * 1024
NS2 = 4
W_ACC = 0
W_SH = 112
W_L16 = 168
W_RD = 169
W_T = 172


def g2_loads(slot):
    dma = []
    for j in range(7):
        g = []
        if j == 0:
            g += [f"s_add_u32 m0, s22, {slot*SLOT2}", "s_nop 0"]
        if j == 4:
            g += [f"s_add_u32 m0, s22, {slot*SLOT2+4096}", "s_add_u32 s21, s21, 4096"]
        g.append(f"buffer_load_dwordx4 v{W_L16}, s[12:15], s21 offen offset:{(j&3)*1024} lds")
        if j == 6:
            g.append(f"s_add_u32 s21, s21, {4*224*1024-4096}")
        dma.append(g)
    own = []
    for j in range(16):
        r = slot * 64 + j * 4
        g = [f"buffer_load_dwordx4 a[{r}:{r+3}], v{W_L16}, s[8:11], s20 offen offset:{(j&3)*1024}"]
        if (j & 3) == 3:
            g.append("s_add_u32 s20, s20, 4096")
        own.append(g)
    out = []
    for j in range(16):
        if j < 7:
            out.append(dma[j])
        out.append(own[j])
    return out


def g2_reads(slot, ks, buf):
    base = W_RD + slot // 2
    off = (slot % 2) * SLOT2 + ks * 7168
    return [f"ds_read_b128 v[{W_SH+buf*28+c*4}:{W_SH+buf*28+c*4+3}], v{base} offset:{off+c*1024}" for c in range(7)]


def g2_mfmas(slot, ks, buf, zero=False, wait=6):
    out = []
    for c in range(7):
        for mt in range(4):
            acc = W_ACC + (c * 4 + mt) * 4
            own = slot * 64 + (ks * 4 + mt) * 4
            sh = W_SH + buf * 28 + c * 4
            C = "0" if zero else f"v[{acc}:{acc+3}]"
            m = f"v_mfma_f32_16x16x32_bf16 v[{acc}:{acc+3}], v[{sh}:{sh+3}], a[{own}:{own+3}], {C}"
            if mt == 0:
                w = wait if isinstance(wait, int) else wait(c)
                out.append(([f"s_waitcnt lgkmcnt({w})"], m))
            else:
                out.append(m)
    return out


def gen_gemm2(a, opt):
    head(a, "gemm2_kernel")
    a("s_cmp_ge_u32 s2, 256\ns_cbranch_scc1 Lg2_end")
    a("s_load_dwordx2 s[4:5], s[0:1], 48")
    a("s_load_dwordx2 s[30:31], s[0:1], 64")
    a("v_lshrrev_b32 v1, 6, v0")
    a("v_and_b32 v0, 63, v0")
    a("v_readfirstlane_b32 s3, v1")
    a(f"v_lshlrev_b32 v{W_L16}, 4, v0")
    a(f"v_mov_b32 v{W_RD}, v{W_L16}\nv_add_u32 v{W_RD+1}, {2*SLOT2}, v{W_L16}")
    a(f"v_mov_b32 v{W_T+15}, v0")
    a("s_and_b32 s28, s2, 7\ns_lshr_b32 s29, s2, 3")
    a("s_and_b32 s32, s28, 1\ns_lshl_b32 s32, s32, 2\ns_and_b32 s33, s29, 3\ns_add_u32 s32, s32, s33")
    a("s_lshr_b32 s33, s28, 1\ns_lshl_b32 s33, s33, 3\ns_lshr_b32 s34, s29, 2\ns_add_u32 s33, s33, s34")
    a("s_lshl_b32 s32, s32, 2\ns_add_u32 s32, s32, s3")
    a("s_lshl_b32 s20, s32, 17")
    a(f"s_mul_i32 s21, s3, {224*1024}\ns_mul_i32 s35, s33, 7168\ns_add_u32 s21, s21, s35")
    a("s_mul_i32 s22, s3, 7168")
    a(f"s_mul_i32 s24, s32, {64*7168}\ns_mul_i32 s35, s33, 224\ns_add_u32 s24, s24, s35")
    a("s_waitcnt lgkmcnt(0)")
    srd(a, 8, 30, SZ_XF, WS_XRF)
    srd(a, 12, 30, SZ_WQF, WS_WPF)
    srd(a, 16, 4, S * F * 2)
    AH = 2
    NST = 8
    for s in range(AH):
        for g in g2_loads(s):
            a("\n".join(g))
    for s in range(NST):
        loads = s + AH < NST
        a(f"s_waitcnt vmcnt({23 if s + 1 < NST else 0})")
        a("s_barrier")
        lg = g2_loads((s + AH) % NS2) if loads else []
        li = 0
        for q in range(4):
            rd = g2_reads(s % NS2, q, q & 1)
            oth = {4 * i: [rd[i]] for i in range(7)}
            for i in range(6):
                if li < len(lg):
                    oth.setdefault(4 * i + 2, [])
                    oth[4 * i + 2] = oth[4 * i + 2] + lg[li]
                    li += 1
            if s == 0 and q == 0:
                for i in sorted(oth):
                    a("\n".join(oth[i]))
            else:
                ps, pq = (s, q - 1) if q else (s - 1, 3)
                interleave(a, g2_mfmas(ps % NS2, pq, pq & 1, zero=(ps == 0 and pq == 0)), oth)
        assert li == len(lg)
    interleave(a, g2_mfmas((NST - 1) % NS2, 3, 1, wait=lambda c: 6 - c), {})
    a("s_barrier")
    T = W_T
    lane = T + 15
    a(f"s_mul_i32 s28, s3, {64*240}")
    a(f"v_and_b32 v{T}, 15, v{lane}\nv_lshrrev_b32 v{T+1}, 4, v{lane}")
    a(f"v_mul_u32_u24 v{T+2}, 240, v{T}\nv_lshl_add_u32 v{T+2}, v{T+1}, 3, v{T+2}\nv_add_u32 v{T+2}, s28, v{T+2}")
    a(f"v_mul_u32_u24 v{T+3}, 240, v{T+1}\nv_lshl_add_u32 v{T+3}, v{T}, 4, v{T+3}\nv_add_u32 v{T+3}, s28, v{T+3}")
    a(f"v_mul_u32_u24 v{T+4}, 7168, v{T+1}\nv_lshl_add_u32 v{T+4}, v{T}, 4, v{T+4}")
    a(f"v_cmp_gt_u32 s[34:35], 14, v{T}")
    for mt in range(4):
        for c in range(7):
            acc = W_ACC + (c * 4 + mt) * 4
            t = T + 6 + (c & 1) * 2
            a(f"v_cvt_pk_bf16_f32 v{t}, v{acc}, v{acc+1}\nv_cvt_pk_bf16_f32 v{t+1}, v{acc+2}, v{acc+3}")
            a(f"ds_write_b64 v{T+2}, v[{t}:{t+1}] offset:{mt*16*240 + c*32}")
    a("s_waitcnt lgkmcnt(0)")
    a("s_mov_b64 exec, s[34:35]")
    for it in range(16):
        a(f"ds_read_b128 v[{it*4}:{it*4+3}], v{T+3} offset:{it*4*240}")
    for it in range(16):
        a(f"s_waitcnt lgkmcnt({15-it})")
        a(f"buffer_store_dwordx4 v[{it*4}:{it*4+3}], v{T+4}, s[16:19], s24 offen")
        a(f"s_add_u32 s24, s24, {4*7168}")
    a("Lg2_end:\ns_endpgm")


def gen(opt):
    a = Asm()
    a(HDR.rstrip())
    a("; @launch kernel=prep_kernel grid=(576,1,1) block=(256,1,1) lds=0")
    a(f"; @launch kernel=gemm1_kernel grid=(256,1,1) block=(256,1,1) lds={NSLOT*SLOT}")
    a(f"; @launch kernel=gemm2_kernel grid=(256,1,1) block=(256,1,1) lds={NS2*SLOT2}")
    a('.amdgcn_target "amdgcn-amd-amdhsa--gfx950"\n.text')
    gen_prep(a, opt)
    gen_gemm1(a, opt)
    gen_gemm2(a, opt)
    a('.section .rodata,"a"\n.p2align 6')
    a(kd("prep_kernel", 64, 64))
    a(".p2align 6")
    a(kd("gemm1_kernel", 160 + 128, 160))
    a(".p2align 6")
    a(kd("gemm2_kernel", 192 + 256, 192))
    return a.text()


if __name__ == "__main__":
    opt = dict(kv.split("=") for kv in sys.argv[2:])
    opt = {k: (int(v) if v.lstrip("-").isdigit() else v) for k, v in opt.items()}
    open(sys.argv[1], "w").write(gen(opt))
```

```python
import sys
from asm import Asm, kd

S, D, F = 2048, 1024, 3584
WS_WQF = 0
WS_XF = 8 << 20
WS_XRF = 12 << 20
WS_WPF = 16 << 20
SZ_WQF = D * F * 2
SZ_XF = S * D * 2

HDR = """; Kernarg layout (72 bytes, ptrs only, base s[0:1]):
"""


def srd(a, d, b, nbytes, add=0):
    if add:
        a(f"s_add_u32 s{d}, s{b}, {add}")
        a(f"s_addc_u32 s{d+1}, s{b+1}, 0")
    else:
        a(f"s_mov_b32 s{d}, s{b}")
        a(f"s_mov_b32 s{d+1}, s{b+1}")
    a(f"s_mov_b32 s{d+2}, {nbytes}")
    a(f"s_mov_b32 s{d+3}, 0x20000")


def head(a, name):
    a(f".globl {name}\n.p2align 8\n.type {name},@function\n{name}:")


def interleave(a, mf, others):
    for i, m in enumerate(mf):
        if isinstance(m, tuple):
            for p in m[0]:
                a(p)
            a(m[1])
        else:
            a(m)
        for o in others.get(i, []):
            a(o)


STAMP = False
WS_STAMP = 64 << 20
def stamp(a, idx):
    if not STAMP: return
    a(f"s_memtime s[{60+2*idx}:{61+2*idx}]")
    if idx == 0: a("s_memrealtime s[80:81]")
def stamp_out(a, kidx, n, wsreg):
    if not STAMP: return
    a("s_mov_b64 exec, -1")
    a("s_waitcnt vmcnt(0)")
    a(f"s_memtime s[{60+2*n}:{61+2*n}]")
    a("s_memrealtime s[82:83]")
    a("s_getreg_b32 s84, hwreg(HW_REG_XCC_ID)")
    a("s_waitcnt lgkmcnt(0)")
    srd(a, 88, wsreg, 1 << 20, WS_STAMP + kidx * (1 << 18))
    a("s_lshl_b32 s85, s2, 2\ns_add_u32 s85, s85, s3\ns_lshl_b32 s85, s85, 6")
    a("v_mov_b32 v0, 0")
    vals = ["s80", "s82", "s84"] + [f"s{60+2*i}" for i in range(n+1)]
    for i, v in enumerate(vals):
        a(f"v_mov_b32 v1, {v}\nbuffer_store_dword v1, v0, s[88:91], s85 offen offset:{4*i}")

def gen_prep(a, opt):
    nt = " nt" if opt.get("prep_nt", 1) else ""
    head(a, "prep_kernel")
    a("s_cmp_ge_u32 s2, 576\ns_cbranch_scc1 Lp_end")
    stamp(a, 0)
    a("s_load_dwordx4 s[4:7], s[0:1], 0")
    a("s_load_dwordx4 s[8:11], s[0:1], 16")
    a("s_load_dwordx2 s[12:13], s[0:1], 64")
    a("v_lshrrev_b32 v1, 6, v0")
    a("v_and_b32 v0, 63, v0")
    a("v_readfirstlane_b32 s3, v1")
    a("v_lshrrev_b32 v2, 2, v0")
    a("v_and_b32 v3, 3, v0")
    a("v_and_b32 v4, 15, v0\nv_lshlrev_b32 v4, 2, v4\nv_lshrrev_b32 v5, 4, v0\nv_add_u32 v4, v4, v5\nv_lshlrev_b32 v4, 2, v4")
    a("v_lshlrev_b32 v5, 4, v0")
    a("s_cmp_ge_u32 s2, 448\ns_cbranch_scc1 Lp_x")
    a("s_mov_b32 s14, 153391690\ns_mul_hi_u32 s14, s2, s14")
    a("s_mul_i32 s15, s14, 28\ns_sub_u32 s15, s2, s15\ns_lshl_b32 s15, s15, 2\ns_add_u32 s15, s15, s3")
    a("v_mul_u32_u24 v6, 14336, v2\nv_lshl_add_u32 v6, v3, 4, v6")
    a("v_lshlrev_b32 v7, 3, v3")
    a(f"s_mul_i32 s16, s14, {64*14336}\ns_lshl_b32 s17, s15, 7\ns_add_u32 s16, s16, s17")
    a("s_mul_i32 s17, s14, 7168\ns_lshl_b32 s18, s15, 6\ns_add_u32 s17, s17, s18")
    a(f"s_mul_i32 s18, s14, {2*112*2048}\ns_lshl_b32 s19, s15, 11\ns_add_u32 s18, s18, s19")
    a("s_waitcnt lgkmcnt(0)")
    srd(a, 20, 6, D * F * 4)
    srd(a, 24, 8, 16 * F * 2)
    srd(a, 28, 10, 16 * F * 2)
    srd(a, 32, 12, SZ_WQF, WS_WQF)
    for t in range(2):
        a(f"buffer_load_dwordx2 v[{8+2*t}:{9+2*t}], v7, s[24:27], s17 offen offset:{32*t}")
        a(f"buffer_load_dwordx2 v[{12+2*t}:{13+2*t}], v7, s[28:31], s17 offen offset:{32*t}")
    for dt in range(4):
        for t in range(2):
            r = 32 + dt * 8 + t * 4
            a(f"buffer_load_dwordx4 v[{r}:{r+3}], v6, s[20:23], s16 offen offset:{64*t}{nt}")
        if dt < 3:
            a(f"s_add_u32 s16, s16, {16*14336}")
    a("s_waitcnt vmcnt(8)")
    for j in range(4):
        a(f"v_lshlrev_b32 v{16+2*j}, 16, v{8+j}\nv_and_b32 v{17+2*j}, 0xffff0000, v{8+j}")
        a(f"v_lshlrev_b32 v{24+2*j}, 16, v{12+j}\nv_and_b32 v{25+2*j}, 0xffff0000, v{12+j}")
    for dt in range(4):
        a(f"s_waitcnt vmcnt({6-2*dt + dt})")
        r = 32 + dt * 8
        for e in range(8):
            a(f"v_cvt_f32_i32 v{r+e}, v{r+e}")
        for e in range(8):
            a(f"v_sub_f32 v{r+e}, v{r+e}, v{24+e}")
        for p in range(4):
            a(f"v_cvt_pk_bf16_f32 v{8+p}, v{r+2*p}, v{r+2*p+1}")
        for p in range(4):
            a(f"v_lshlrev_b32 v{r+2*p}, 16, v{8+p}\nv_and_b32 v{r+2*p+1}, 0xffff0000, v{8+p}")
        for e in range(8):
            a(f"v_mul_f32 v{r+e}, v{r+e}, v{16+e}")
        for p in range(4):
            a(f"v_cvt_pk_bf16_f32 v{8+p}, v{r+2*p}, v{r+2*p+1}")
        for p in range(4):
            a(f"ds_bpermute_b32 v{r+p}, v4, v{8+p}")
        a("s_waitcnt lgkmcnt(0)")
        a(f"buffer_store_dwordx4 v[{r}:{r+3}], v5, s[32:35], s18 offen offset:{(dt&1)*1024}")
        if dt == 1:
            a(f"s_add_u32 s18, s18, {112*2048}")
    stamp_out(a, 0, 1, 12)
    a("s_endpgm")
    a("Lp_x:")
    a("s_sub_u32 s14, s2, 448\ns_lshl_b32 s14, s14, 2\ns_add_u32 s14, s14, s3")
    a("s_lshr_b32 s15, s14, 3\ns_and_b32 s14, s14, 7")
    a("v_lshlrev_b32 v6, 11, v2\nv_lshl_add_u32 v6, v3, 4, v6")
    a("s_lshl_b32 s16, s15, 16\ns_lshl_b32 s17, s14, 8\ns_add_u32 s16, s16, s17")
    a("s_lshl_b32 s18, s15, 16\ns_lshl_b32 s17, s14, 13\ns_add_u32 s18, s18, s17")
    a("s_add_u32 s17, s16, 32768")
    a("s_waitcnt lgkmcnt(0)")
    srd(a, 20, 4, SZ_XF)
    srd(a, 32, 12, SZ_XF, WS_XF)
    for kb in range(4):
        for mt in range(2):
            r = 32 + (kb * 2 + mt) * 4
            a(f"buffer_load_dwordx4 v[{r}:{r+3}], v6, s[20:23], s{16+mt} offen offset:{64*kb}{nt}")
    for f in range(8):
        r = 32 + f * 4
        a(f"s_waitcnt vmcnt(7)")
        for p in range(4):
            a(f"ds_bpermute_b32 v{r+p}, v4, v{r+p}")
        a("s_waitcnt lgkmcnt(0)")
        a(f"buffer_store_dwordx4 v[{r}:{r+3}], v5, s[32:35], s18 offen offset:{(f&3)*1024}")
        if f == 3:
            a("s_add_u32 s18, s18, 4096")
    stamp_out(a, 0, 1, 12)
    a("Lp_end:\ns_endpgm")


SLOT = 16 * 1056
NSLOT = 8
AHEAD = 6
V_ACC = 0
V_SH = 64
V_RD = 128
V_DMA = 132
V_OWN = 136
V_T = 140


def g1_loads(slot, ntS, ntO, sh_step):
    g = []
    for j in range(4):
        dma = []
        if j == 0:
            dma.append(f"s_add_u32 m0, s22, {slot*SLOT}")
            dma.append("s_nop 0")
        dma.append(f"buffer_load_dwordx4 v{V_DMA+j}, s[12:15], s21 offen offset:{j*1056}{ntS} lds")
        if j == 3:
            dma.append(f"s_add_u32 s21, s21, {sh_step}")
        g.append(dma)
        r = slot * 16 + j * 4
        own = [f"buffer_load_dwordx4 a[{r}:{r+3}], v{V_OWN}, s[8:11], s20 offen offset:{j*1024}{ntO}"]
        if j == 3:
            own.append("s_add_u32 s20, s20, 4096")
        g.append(own)
    return g


def g1_reads(slot, ks, buf):
    base = V_RD + slot // 3
    off = (slot % 3) * SLOT + ks * 8 * 1056
    out = []
    for c in range(8):
        for t in range(2):
            r = V_SH + buf * 32 + c * 4 + t * 2
            out.append(f"ds_read_b64_tr_b16 v[{r}:{r+1}], v{base} offset:{off + t*512 + c*32}")
    return out


def g1_mfmas(slot, ks, buf, swap, zero=False, wait=14):
    out = []
    for c in range(8):
        for dt in range(2):
            acc = V_ACC + (dt * 8 + c) * 4
            own = slot * 16 + (ks * 2 + dt) * 4
            sh = V_SH + buf * 32 + c * 4
            o, s_ = f"a[{own}:{own+3}]", f"v[{sh}:{sh+3}]"
            A, B = (s_, o) if swap else (o, s_)
            C = "0" if zero else f"v[{acc}:{acc+3}]"
            m = f"v_mfma_f32_16x16x32_bf16 v[{acc}:{acc+3}], {A}, {B}, {C}"
            if dt == 0:
                w = wait if isinstance(wait, int) else wait(c)
                out.append(([f"s_waitcnt lgkmcnt({w})"], m))
            else:
                out.append(m)
    return out


def g1_epilogue(a, swap):
    a("s_nop 7")
    for f in range(8):
        if not swap:
            lo, hi = V_ACC + f * 4, V_ACC + (8 + f) * 4
        else:
            lo = V_ACC + ((f & 1) * 8 + (f >> 1) * 2) * 4
            hi = lo + 4
        t = V_T + (f & 1) * 4
        a(f"v_cvt_pk_bf16_f32 v{t}, v{lo}, v{lo+1}\nv_cvt_pk_bf16_f32 v{t+1}, v{lo+2}, v{lo+3}")
        a(f"v_cvt_pk_bf16_f32 v{t+2}, v{hi}, v{hi+1}\nv_cvt_pk_bf16_f32 v{t+3}, v{hi+2}, v{hi+3}")
        if not swap:
            a(f"buffer_store_dwordx4 v[{t}:{t+3}], v{V_OWN}, s[16:19], s24 offen offset:{(f&3)*1024}")
            if f == 3:
                a("s_add_u32 s24, s24, 4096")
        else:
            a(f"buffer_store_dwordx4 v[{t}:{t+3}], v{V_OWN}, s[16:19], s24 offen offset:{(f&1)*1024}")
            if f & 1:
                a("s_add_u32 s24, s24, 4096")


def g1_role(a, L, swap, sh_stride, n_iter, iters_per_tile, own_jump, sh_jump, ntS, ntO):
    sh_step = 64 * sh_stride
    multi = iters_per_tile < n_iter
    for s in range(AHEAD):
        for g in g1_loads(s, ntS, ntO, sh_step):
            a("\n".join(g))

    def step(s, first, loads, vm, nstores=0):
        a(f"s_waitcnt vmcnt({vm})")
        a("s_barrier")
        lg = g1_loads((s + AHEAD) % NSLOT, ntS, ntO, sh_step) if loads else [[]] * 8
        rd0 = g1_reads(s, 0, 0)
        rd1 = g1_reads(s, 1, 1)
        if loads and multi and s == NSLOT - AHEAD:
            a("s_add_u32 s20, s20, s26\ns_add_u32 s21, s21, s27")
        if first == "start":
            for r in rd0:
                a(r)
            for g in lg[:4]:
                a("\n".join(g))
        else:
            oth = {i: [rd0[i]] for i in range(16)}
            for k in range(4):
                oth[4 * k + 1] = oth[4 * k + 1] + lg[k]
            interleave(a, g1_mfmas((s - 1) % NSLOT, 1, 1, swap), oth)
        zero = False
        if first == "start":
            zero = True
        if first == "maybe":
            a(f"s_and_b32 s28, s23, {iters_per_tile-1}\ns_cmp_lg_u32 s28, 0\ns_cbranch_scc1 {L}_noepi")
            g1_epilogue(a, swap)
            a("s_nop 1")
            for i in range(64):
                a(f"v_mov_b32 v{V_ACC+i}, 0")
            a(f"{L}_noepi:")
        oth = {i: [rd1[i]] for i in range(16)}
        for k in range(4):
            oth[4 * k + 1] = oth[4 * k + 1] + lg[4 + k]
        interleave(a, g1_mfmas(s, 0, 0, swap, zero=zero), oth)

    vm = (AHEAD - 1) * 8

    def set_jumps():
        if multi:
            a(f"s_add_u32 s28, s23, 1\ns_and_b32 s28, s28, {iters_per_tile-1}\ns_cmp_eq_u32 s28, 0")
            a(f"s_cselect_b32 s26, {own_jump & 0xffffffff}, 0\ns_cselect_b32 s27, {sh_jump & 0xffffffff}, 0")
    a("s_mov_b32 s23, 0")
    set_jumps()
    stamp(a, 1)
    step(0, "start", True, vm)
    stamp(a, 2)
    a(f"s_branch {L}_s1")
    a(f"{L}_loop:")
    set_jumps()
    step(0, "maybe" if multi else None, True, vm)
    a(f"{L}_s1:")
    step(1, None, True, vm)
    a(f"s_cmp_eq_u32 s23, {n_iter-1}\ns_cbranch_scc1 {L}_tail")
    for s in range(2, NSLOT):
        step(s, None, True, vm)
    a(f"s_add_u32 s23, s23, 1\ns_branch {L}_loop")
    a(f"{L}_tail:")
    stamp(a, 3)
    for s in range(2, NSLOT):
        step(s, None, False, (NSLOT - 1 - s) * 8)
    interleave(a, g1_mfmas(NSLOT - 1, 1, 1, swap, wait=lambda c: 14 - 2 * c), {})
    stamp(a, 4)
    g1_epilogue(a, swap)
    stamp_out(a, 1, 5, 30)
    a("s_endpgm")


def gen_gemm1(a, opt):
    ntV = " nt" if opt.get("v_nt", 0) else ""
    head(a, "gemm1_kernel")
    a("s_cmp_ge_u32 s2, 256\ns_cbranch_scc1 Lg1_end")
    stamp(a, 0)
    a("s_load_dwordx4 s[4:7], s[0:1], 32")
    a("s_load_dwordx2 s[30:31], s[0:1], 64")
    a("v_lshrrev_b32 v1, 6, v0")
    a("v_and_b32 v0, 63, v0")
    a("v_readfirstlane_b32 s3, v1")
    a(f"v_lshlrev_b32 v{V_OWN}, 4, v0")
    a("v_bfe_u32 v2, v0, 2, 3\nv_mul_u32_u24 v2, 1056, v2")
    a("v_lshrrev_b32 v3, 5, v0\nv_lshl_add_u32 v2, v3, 8, v2")
    a(f"v_and_b32 v3, 3, v0\nv_lshl_add_u32 v{V_RD}, v3, 3, v2")
    a(f"v_add_u32 v{V_RD+1}, {3*SLOT}, v{V_RD}\nv_add_u32 v{V_RD+2}, {6*SLOT}, v{V_RD}")
    a("s_mul_i32 s22, s3, 4224")
    a("v_lshrrev_b32 v2, 4, v0")
    a("v_and_b32 v3, 15, v0\nv_lshlrev_b32 v3, 4, v3")
    a("s_and_b32 s28, s2, 7\ns_lshr_b32 s29, s2, 3")
    a("s_cmp_ge_u32 s29, 28\ns_cbranch_scc1 Lg1_xr")
    if opt.get("map1", "2x4") == "2x4":
        a("s_and_b32 s32, s28, 1\ns_lshl_b32 s32, s32, 2\ns_and_b32 s33, s29, 3\ns_add_u32 s32, s32, s33")
        a("s_lshr_b32 s33, s28, 1\ns_mul_i32 s33, s33, 7\ns_lshr_b32 s34, s29, 2\ns_add_u32 s33, s33, s34")
    else:
        a("s_mul_i32 s33, s28, 28\ns_add_u32 s33, s33, s29\ns_and_b32 s32, s33, 7\ns_lshr_b32 s33, s33, 3")
    a("s_lshl_b32 s32, s32, 2\ns_add_u32 s32, s32, s3")
    a(f"s_mul_i32 s20, s32, {112*2048}")
    a("s_lshr_b32 s34, s3, 1\ns_lshl_b32 s34, s34, 5\ns_and_b32 s35, s3, 1\ns_lshl_b32 s35, s35, 2\ns_add_u32 s34, s34, s35")
    a("s_mul_i32 s21, s34, 7168\ns_lshl_b32 s35, s33, 8\ns_add_u32 s21, s21, s35")
    a(f"v_mul_u32_u24 v2, {8*7168}, v2\nv_add_u32 v{V_DMA}, v2, v3")
    for j in range(1, 4):
        a(f"v_add_u32 v{V_DMA+j}, {j*(7168-1056)}, v{V_DMA}")
    a(f"s_mul_i32 s24, s32, {224*1024}\ns_lshl_b32 s35, s33, 13\ns_add_u32 s24, s24, s35")
    a("s_waitcnt lgkmcnt(0)")
    srd(a, 8, 30, SZ_WQF, WS_WQF)
    srd(a, 12, 6, F * F * 2)
    srd(a, 16, 30, SZ_WQF, WS_WPF)
    g1_role(a, "Lw", False, 7168, 7, 8, 0, 0, ntV, "")
    a("Lg1_xr:")
    a("s_lshr_b32 s32, s28, 1\ns_lshl_b32 s32, s32, 2\ns_add_u32 s32, s32, s29\ns_sub_u32 s32, s32, 28")
    a("s_and_b32 s33, s28, 1\ns_lshl_b32 s33, s33, 2")
    a("s_lshl_b32 s32, s32, 2\ns_add_u32 s32, s32, s3")
    a("s_lshl_b32 s20, s32, 16")
    a("s_lshr_b32 s34, s3, 1\ns_lshl_b32 s34, s34, 5\ns_and_b32 s35, s3, 1\ns_lshl_b32 s35, s35, 3\ns_add_u32 s34, s34, s35")
    a("s_lshl_b32 s21, s34, 11\ns_lshl_b32 s35, s33, 8\ns_add_u32 s21, s21, s35")
    a("v_and_b32 v4, 1, v2\nv_lshlrev_b32 v4, 2, v4\nv_lshrrev_b32 v2, 1, v2\nv_add_u32 v2, v2, v4")
    a(f"v_lshl_add_u32 v{V_DMA}, v2, 13, v3")
    for j in range(1, 4):
        a(f"v_add_u32 v{V_DMA+j}, {j*(2048-1056)}, v{V_DMA}")
    a("s_lshr_b32 s24, s32, 1\ns_lshl_b32 s24, s24, 17\ns_lshl_b32 s35, s33, 14\ns_add_u32 s24, s24, s35")
    a("s_and_b32 s35, s32, 1\ns_lshl_b32 s35, s35, 11\ns_add_u32 s24, s24, s35")
    a("s_waitcnt lgkmcnt(0)")
    srd(a, 8, 30, SZ_XF, WS_XF)
    srd(a, 12, 4, D * D * 2)
    srd(a, 16, 30, SZ_XF, WS_XRF)
    g1_role(a, "Lx", True, 2048, 8, 2, -16 * 4096, -1024 * 2048 + 256, "", "")
    a("Lg1_end:\ns_endpgm")


SLOT2 = 28 * 1024
NS2 = 4
W_ACC = 0
W_SH = 112
W_L16 = 168
W_RD = 169
W_T = 172


def g2_loads(slot):
    dma = []
    for j in range(7):
        g = []
        if j == 0:
            g += [f"s_add_u32 m0, s22, {slot*SLOT2}", "s_nop 0"]
        if j == 4:
            g += [f"s_add_u32 m0, s22, {slot*SLOT2+4096}", "s_add_u32 s21, s21, 4096"]
        g.append(f"buffer_load_dwordx4 v{W_L16}, s[12:15], s21 offen offset:{(j&3)*1024} lds")
        if j == 6:
            g.append(f"s_add_u32 s21, s21, {4*224*1024-4096}")
        dma.append(g)
    own = []
    for j in range(16):
        r = slot * 64 + j * 4
        g = [f"buffer_load_dwordx4 a[{r}:{r+3}], v{W_L16}, s[8:11], s20 offen offset:{(j&3)*1024}"]
        if (j & 3) == 3:
            g.append("s_add_u32 s20, s20, 4096")
        own.append(g)
    out = []
    for j in range(16):
        if j < 7:
            out.append(dma[j])
        out.append(own[j])
    return out


def g2_reads(slot, ks, buf):
    base = W_RD + slot // 2
    off = (slot % 2) * SLOT2 + ks * 7168
    return [f"ds_read_b128 v[{W_SH+buf*28+c*4}:{W_SH+buf*28+c*4+3}], v{base} offset:{off+c*1024}" for c in range(7)]


def g2_mfmas(slot, ks, buf, zero=False, wait=6):
    out = []
    for c in range(7):
        for mt in range(4):
            acc = W_ACC + (c * 4 + mt) * 4
            own = slot * 64 + (ks * 4 + mt) * 4
            sh = W_SH + buf * 28 + c * 4
            C = "0" if zero else f"v[{acc}:{acc+3}]"
            m = f"v_mfma_f32_16x16x32_bf16 v[{acc}:{acc+3}], v[{sh}:{sh+3}], a[{own}:{own+3}], {C}"
            if mt == 0:
                w = wait if isinstance(wait, int) else wait(c)
                out.append(([f"s_waitcnt lgkmcnt({w})"], m))
            else:
                out.append(m)
    return out


def gen_gemm2(a, opt):
    head(a, "gemm2_kernel")
    a("s_cmp_ge_u32 s2, 256\ns_cbranch_scc1 Lg2_end")
    stamp(a, 0)
    a("s_load_dwordx2 s[4:5], s[0:1], 48")
    a("s_load_dwordx2 s[30:31], s[0:1], 64")
    a("v_lshrrev_b32 v1, 6, v0")
    a("v_and_b32 v0, 63, v0")
    a("v_readfirstlane_b32 s3, v1")
    a(f"v_lshlrev_b32 v{W_L16}, 4, v0")
    a(f"v_mov_b32 v{W_RD}, v{W_L16}\nv_add_u32 v{W_RD+1}, {2*SLOT2}, v{W_L16}")
    a(f"v_mov_b32 v{W_T+15}, v0")
    a("s_and_b32 s28, s2, 7\ns_lshr_b32 s29, s2, 3")
    a("s_and_b32 s32, s28, 1\ns_lshl_b32 s32, s32, 2\ns_and_b32 s33, s29, 3\ns_add_u32 s32, s32, s33")
    a("s_lshr_b32 s33, s28, 1\ns_lshl_b32 s33, s33, 3\ns_lshr_b32 s34, s29, 2\ns_add_u32 s33, s33, s34")
    a("s_lshl_b32 s32, s32, 2\ns_add_u32 s32, s32, s3")
    a("s_lshl_b32 s20, s32, 17")
    a(f"s_mul_i32 s21, s3, {224*1024}\ns_mul_i32 s35, s33, 7168\ns_add_u32 s21, s21, s35")
    a("s_mul_i32 s22, s3, 7168")
    a(f"s_mul_i32 s24, s32, {64*7168}\ns_mul_i32 s35, s33, 224\ns_add_u32 s24, s24, s35")
    a("s_waitcnt lgkmcnt(0)")
    srd(a, 8, 30, SZ_XF, WS_XRF)
    srd(a, 12, 30, SZ_WQF, WS_WPF)
    srd(a, 16, 4, S * F * 2)
    AH = 2
    NST = 8
    for s in range(AH):
        for g in g2_loads(s):
            a("\n".join(g))
    for s in range(NST):
        loads = s + AH < NST
        if s == 0: stamp(a, 1)
        a(f"s_waitcnt vmcnt({23 if s + 1 < NST else 0})")
        a("s_barrier")
        if s == 0: stamp(a, 2)
        if s == 4: stamp(a, 3)
        lg = g2_loads((s + AH) % NS2) if loads else []
        li = 0
        for q in range(4):
            rd = g2_reads(s % NS2, q, q & 1)
            oth = {4 * i: [rd[i]] for i in range(7)}
            for i in range(6):
                if li < len(lg):
                    oth.setdefault(4 * i + 2, [])
                    oth[4 * i + 2] = oth[4 * i + 2] + lg[li]
                    li += 1
            if s == 0 and q == 0:
                for i in sorted(oth):
                    a("\n".join(oth[i]))
            else:
                ps, pq = (s, q - 1) if q else (s - 1, 3)
                interleave(a, g2_mfmas(ps % NS2, pq, pq & 1, zero=(ps == 0 and pq == 0)), oth)
        assert li == len(lg)
    interleave(a, g2_mfmas((NST - 1) % NS2, 3, 1, wait=lambda c: 6 - c), {})
    stamp(a, 4)
    a("s_barrier")
    T = W_T
    lane = T + 15
    a(f"s_mul_i32 s28, s3, {64*240}")
    a(f"v_and_b32 v{T}, 15, v{lane}\nv_lshrrev_b32 v{T+1}, 4, v{lane}")
    a(f"v_mul_u32_u24 v{T+2}, 240, v{T}\nv_lshl_add_u32 v{T+2}, v{T+1}, 3, v{T+2}\nv_add_u32 v{T+2}, s28, v{T+2}")
    a(f"v_mul_u32_u24 v{T+3}, 240, v{T+1}\nv_lshl_add_u32 v{T+3}, v{T}, 4, v{T+3}\nv_add_u32 v{T+3}, s28, v{T+3}")
    a(f"v_mul_u32_u24 v{T+4}, 7168, v{T+1}\nv_lshl_add_u32 v{T+4}, v{T}, 4, v{T+4}")
    a(f"v_cmp_gt_u32 s[34:35], 14, v{T}")
    for mt in range(4):
        for c in range(7):
            acc = W_ACC + (c * 4 + mt) * 4
            t = T + 6 + (c & 1) * 2
            a(f"v_cvt_pk_bf16_f32 v{t}, v{acc}, v{acc+1}\nv_cvt_pk_bf16_f32 v{t+1}, v{acc+2}, v{acc+3}")
            a(f"ds_write_b64 v{T+2}, v[{t}:{t+1}] offset:{mt*16*240 + c*32}")
    a("s_waitcnt lgkmcnt(0)")
    a("s_mov_b64 exec, s[34:35]")
    for it in range(16):
        a(f"ds_read_b128 v[{it*4}:{it*4+3}], v{T+3} offset:{it*4*240}")
    for it in range(16):
        a(f"s_waitcnt lgkmcnt({15-it})")
        a(f"buffer_store_dwordx4 v[{it*4}:{it*4+3}], v{T+4}, s[16:19], s24 offen")
        a(f"s_add_u32 s24, s24, {4*7168}")
    stamp_out(a, 2, 5, 30)
    a("Lg2_end:\ns_endpgm")


def gen(opt):
    global STAMP
    STAMP = bool(opt.get("stamp", 0))
    a = Asm()
    a(HDR.rstrip())
    a("; @launch kernel=prep_kernel grid=(576,1,1) block=(256,1,1) lds=0")
    a(f"; @launch kernel=gemm1_kernel grid=(256,1,1) block=(256,1,1) lds={NSLOT*SLOT}")
    a(f"; @launch kernel=gemm2_kernel grid=(256,1,1) block=(256,1,1) lds={NS2*SLOT2}")
    for i in range(opt.get("empties", 0)):
        a("; @launch kernel=empty_kernel grid=(256,1,1) block=(256,1,1) lds=0")
    a('.amdgcn_target "amdgcn-amd-amdhsa--gfx950"\n.text')
    if opt.get("empties", 0):
        head(a, "empty_kernel")
        a("s_endpgm")
    gen_prep(a, opt)
    gen_gemm1(a, opt)
    gen_gemm2(a, opt)
    a('.section .rodata,"a"\n.p2align 6')
    if opt.get("empties", 0):
        a(kd("empty_kernel", 64, 64))
        a(".p2align 6")
    a(kd("prep_kernel", 64, 64))
    a(".p2align 6")
    a(kd("gemm1_kernel", 160 + 128, 160))
    a(".p2align 6")
    a(kd("gemm2_kernel", 192 + 256, 192))
    return a.text()


if __name__ == "__main__":
    opt = dict(kv.split("=") for kv in sys.argv[2:])
    opt = {k: (int(v) if v.lstrip("-").isdigit() else v) for k, v in opt.items()}
    open(sys.argv[1], "w").write(gen(opt))
```

```python
from asm import kd
def diag_kernel(a, srd, wsstamp, ka, nwa, wa, opa, kb, nwb, wb, opb, mult):
    a(".globl diag_kernel\n.p2align 8\n.type diag_kernel,@function\ndiag_kernel:")
    a("s_cmp_ge_u32 s2, 1\ns_cbranch_scc1 Ld_end")
    a("s_load_dwordx2 s[12:13], s[0:1], 64\ns_waitcnt lgkmcnt(0)")
    srd(a, 8, 12, 1 << 21, wsstamp)
    a("v_lshlrev_b32 v1, 8, v0")
    def red(k, n, w, op, dst):
        nl = n // 64
        for i in range(nl):
            a(f"s_mov_b32 s20, {k*(1<<18) + i*64*256 + w*4}\nbuffer_load_dword v{4+i}, v1, s[8:11], s20 offen")
        a("s_waitcnt vmcnt(0)")
        for i in range(1, nl):
            a(f"v_{op}_u32 v4, v4, v{4+i}")
        a("s_nop 1")
        a(f"v_readlane_b32 s{dst}, v4, 0")
        for l in range(1, 64):
            a(f"v_readlane_b32 s21, v4, {l}\ns_{op}_u32 s{dst}, s{dst}, s21")
    red(ka, nwa, wa, opa, 30)
    red(kb, nwb, wb, opb, 31)
    a(f"s_sub_u32 s30, s31, s30\ns_min_u32 s30, s30, 20000\ns_mul_i32 s30, s30, {mult}")
    a("s_memrealtime s[32:33]\ns_waitcnt lgkmcnt(0)")
    a("Ld_spin:\ns_memrealtime s[34:35]\ns_waitcnt lgkmcnt(0)\ns_sub_u32 s36, s34, s32\ns_cmp_lt_u32 s36, s30\ns_cbranch_scc1 Ld_spin")
    a("Ld_end:\ns_endpgm")
```

```python
import sys
from asm import Asm, kd

S, D, F = 2048, 1024, 3584
WS_WQF = 0
WS_XF = 8 << 20
WS_XRF = 12 << 20
WS_WPF = 16 << 20
SZ_WQF = D * F * 2
SZ_XF = S * D * 2

HDR = """; Kernarg layout (72 bytes, ptrs only, base s[0:1]):
"""


def srd(a, d, b, nbytes, add=0):
    if add:
        a(f"s_add_u32 s{d}, s{b}, {add}")
        a(f"s_addc_u32 s{d+1}, s{b+1}, 0")
    else:
        a(f"s_mov_b32 s{d}, s{b}")
        a(f"s_mov_b32 s{d+1}, s{b+1}")
    a(f"s_mov_b32 s{d+2}, {nbytes}")
    a(f"s_mov_b32 s{d+3}, 0x20000")


def head(a, name):
    a(f".globl {name}\n.p2align 8\n.type {name},@function\n{name}:")


def interleave(a, mf, others):
    for i, m in enumerate(mf):
        if isinstance(m, tuple):
            for p in m[0]:
                a(p)
            a(m[1])
        else:
            a(m)
        for o in others.get(i, []):
            a(o)


STAMP = False
WS_STAMP = 64 << 20
def stamp(a, idx):
    if not STAMP: return
    a(f"s_memtime s[{60+2*idx}:{61+2*idx}]")
    if idx == 0: a("s_memrealtime s[80:81]")
def stamp_out(a, kidx, n, wsreg):
    if not STAMP: return
    a("s_mov_b64 exec, -1")
    a("s_waitcnt vmcnt(0)")
    a(f"s_memtime s[{60+2*n}:{61+2*n}]")
    a("s_memrealtime s[82:83]")
    a("s_getreg_b32 s84, hwreg(HW_REG_XCC_ID)")
    a("s_waitcnt lgkmcnt(0)")
    srd(a, 88, wsreg, 1 << 20, WS_STAMP + kidx * (1 << 18))
    a("s_lshl_b32 s85, s2, 2\ns_add_u32 s85, s85, s3\ns_lshl_b32 s85, s85, 6")
    a("v_mov_b32 v0, 0")
    vals = ["s80", "s82", "s84"] + [f"s{60+2*i}" for i in range(n+1)]
    for i, v in enumerate(vals):
        a(f"v_mov_b32 v1, {v}\nbuffer_store_dword v1, v0, s[88:91], s85 offen offset:{4*i}")

def gen_prep(a, opt):
    nt = " nt" if opt.get("prep_nt", 1) else ""
    head(a, "prep_kernel")
    a("s_cmp_ge_u32 s2, 576\ns_cbranch_scc1 Lp_end")
    stamp(a, 0)
    a("s_load_dwordx4 s[4:7], s[0:1], 0")
    a("s_load_dwordx4 s[8:11], s[0:1], 16")
    a("s_load_dwordx2 s[12:13], s[0:1], 64")
    a("v_lshrrev_b32 v1, 6, v0")
    a("v_and_b32 v0, 63, v0")
    a("v_readfirstlane_b32 s3, v1")
    a("v_lshrrev_b32 v2, 2, v0")
    a("v_and_b32 v3, 3, v0")
    a("v_and_b32 v4, 15, v0\nv_lshlrev_b32 v4, 2, v4\nv_lshrrev_b32 v5, 4, v0\nv_add_u32 v4, v4, v5\nv_lshlrev_b32 v4, 2, v4")
    a("v_lshlrev_b32 v5, 4, v0")
    a("s_cmp_ge_u32 s2, 448\ns_cbranch_scc1 Lp_x")
    a("s_mov_b32 s14, 153391690\ns_mul_hi_u32 s14, s2, s14")
    a("s_mul_i32 s15, s14, 28\ns_sub_u32 s15, s2, s15\ns_lshl_b32 s15, s15, 2\ns_add_u32 s15, s15, s3")
    a("v_mul_u32_u24 v6, 14336, v2\nv_lshl_add_u32 v6, v3, 4, v6")
    a("v_lshlrev_b32 v7, 3, v3")
    a(f"s_mul_i32 s16, s14, {64*14336}\ns_lshl_b32 s17, s15, 7\ns_add_u32 s16, s16, s17")
    a("s_mul_i32 s17, s14, 7168\ns_lshl_b32 s18, s15, 6\ns_add_u32 s17, s17, s18")
    a(f"s_mul_i32 s18, s14, {2*112*2048}\ns_lshl_b32 s19, s15, 11\ns_add_u32 s18, s18, s19")
    a("s_waitcnt lgkmcnt(0)")
    srd(a, 20, 6, D * F * 4)
    srd(a, 24, 8, 16 * F * 2)
    srd(a, 28, 10, 16 * F * 2)
    srd(a, 32, 12, SZ_WQF, WS_WQF)
    for t in range(2):
        a(f"buffer_load_dwordx2 v[{8+2*t}:{9+2*t}], v7, s[24:27], s17 offen offset:{32*t}")
        a(f"buffer_load_dwordx2 v[{12+2*t}:{13+2*t}], v7, s[28:31], s17 offen offset:{32*t}")
    for dt in range(4):
        for t in range(2):
            r = 32 + dt * 8 + t * 4
            a(f"buffer_load_dwordx4 v[{r}:{r+3}], v6, s[20:23], s16 offen offset:{64*t}{nt}")
        if dt < 3:
            a(f"s_add_u32 s16, s16, {16*14336}")
    a("s_waitcnt vmcnt(8)")
    for j in range(4):
        a(f"v_lshlrev_b32 v{16+2*j}, 16, v{8+j}\nv_and_b32 v{17+2*j}, 0xffff0000, v{8+j}")
        a(f"v_lshlrev_b32 v{24+2*j}, 16, v{12+j}\nv_and_b32 v{25+2*j}, 0xffff0000, v{12+j}")
    for dt in range(4):
        a(f"s_waitcnt vmcnt({6-2*dt + dt})")
        r = 32 + dt * 8
        for e in range(8):
            a(f"v_cvt_f32_i32 v{r+e}, v{r+e}")
        for e in range(8):
            a(f"v_sub_f32 v{r+e}, v{r+e}, v{24+e}")
        for p in range(4):
            a(f"v_cvt_pk_bf16_f32 v{8+p}, v{r+2*p}, v{r+2*p+1}")
        for p in range(4):
            a(f"v_lshlrev_b32 v{r+2*p}, 16, v{8+p}\nv_and_b32 v{r+2*p+1}, 0xffff0000, v{8+p}")
        for e in range(8):
            a(f"v_mul_f32 v{r+e}, v{r+e}, v{16+e}")
        for p in range(4):
            a(f"v_cvt_pk_bf16_f32 v{8+p}, v{r+2*p}, v{r+2*p+1}")
        for p in range(4):
            a(f"ds_bpermute_b32 v{r+p}, v4, v{8+p}")
        a("s_waitcnt lgkmcnt(0)")
        a(f"buffer_store_dwordx4 v[{r}:{r+3}], v5, s[32:35], s18 offen offset:{(dt&1)*1024}")
        if dt == 1:
            a(f"s_add_u32 s18, s18, {112*2048}")
    stamp_out(a, 0, 1, 12)
    a("s_endpgm")
    a("Lp_x:")
    a("s_sub_u32 s14, s2, 448\ns_lshl_b32 s14, s14, 2\ns_add_u32 s14, s14, s3")
    a("s_lshr_b32 s15, s14, 3\ns_and_b32 s14, s14, 7")
    a("v_lshlrev_b32 v6, 11, v2\nv_lshl_add_u32 v6, v3, 4, v6")
    a("s_lshl_b32 s16, s15, 16\ns_lshl_b32 s17, s14, 8\ns_add_u32 s16, s16, s17")
    a("s_lshl_b32 s18, s15, 16\ns_lshl_b32 s17, s14, 13\ns_add_u32 s18, s18, s17")
    a("s_add_u32 s17, s16, 32768")
    a("s_waitcnt lgkmcnt(0)")
    srd(a, 20, 4, SZ_XF)
    srd(a, 32, 12, SZ_XF, WS_XF)
    for kb in range(4):
        for mt in range(2):
            r = 32 + (kb * 2 + mt) * 4
            a(f"buffer_load_dwordx4 v[{r}:{r+3}], v6, s[20:23], s{16+mt} offen offset:{64*kb}{nt}")
    for f in range(8):
        r = 32 + f * 4
        a(f"s_waitcnt vmcnt(7)")
        for p in range(4):
            a(f"ds_bpermute_b32 v{r+p}, v4, v{r+p}")
        a("s_waitcnt lgkmcnt(0)")
        a(f"buffer_store_dwordx4 v[{r}:{r+3}], v5, s[32:35], s18 offen offset:{(f&3)*1024}")
        if f == 3:
            a("s_add_u32 s18, s18, 4096")
    stamp_out(a, 0, 1, 12)
    a("Lp_end:\ns_endpgm")


SLOT = 16 * 1056
NSLOT = 8
AHEAD = 6
V_ACC = 0
V_SH = 64
V_RD = 128
V_DMA = 132
V_OWN = 136
V_T = 140


def g1_loads(slot, ntS, ntO, sh_step):
    g = []
    for j in range(4):
        dma = []
        if j == 0:
            dma.append(f"s_add_u32 m0, s22, {slot*SLOT}")
            dma.append("s_nop 0")
        dma.append(f"buffer_load_dwordx4 v{V_DMA+j}, s[12:15], s21 offen offset:{j*1056}{ntS} lds")
        if j == 3:
            dma.append(f"s_add_u32 s21, s21, {sh_step}")
        g.append(dma)
        r = slot * 16 + j * 4
        own = [f"buffer_load_dwordx4 a[{r}:{r+3}], v{V_OWN}, s[8:11], s20 offen offset:{j*1024}{ntO}"]
        if j == 3:
            own.append("s_add_u32 s20, s20, 4096")
        g.append(own)
    return g


def g1_reads(slot, ks, buf):
    base = V_RD + slot // 3
    off = (slot % 3) * SLOT + ks * 8 * 1056
    out = []
    for c in range(8):
        for t in range(2):
            r = V_SH + buf * 32 + c * 4 + t * 2
            out.append(f"ds_read_b64_tr_b16 v[{r}:{r+1}], v{base} offset:{off + t*512 + c*32}")
    return out


def g1_mfmas(slot, ks, buf, swap, zero=False, wait=14):
    out = []
    for c in range(8):
        for dt in range(2):
            acc = V_ACC + (dt * 8 + c) * 4
            own = slot * 16 + (ks * 2 + dt) * 4
            sh = V_SH + buf * 32 + c * 4
            o, s_ = f"a[{own}:{own+3}]", f"v[{sh}:{sh+3}]"
            A, B = (s_, o) if swap else (o, s_)
            C = "0" if zero else f"v[{acc}:{acc+3}]"
            m = f"v_mfma_f32_16x16x32_bf16 v[{acc}:{acc+3}], {A}, {B}, {C}"
            if dt == 0:
                w = wait if isinstance(wait, int) else wait(c)
                out.append(([f"s_waitcnt lgkmcnt({w})"], m))
            else:
                out.append(m)
    return out


def g1_epilogue(a, swap):
    a("s_nop 7")
    for f in range(8):
        if not swap:
            lo, hi = V_ACC + f * 4, V_ACC + (8 + f) * 4
        else:
            lo = V_ACC + ((f & 1) * 8 + (f >> 1) * 2) * 4
            hi = lo + 4
        t = V_T + (f & 1) * 4
        a(f"v_cvt_pk_bf16_f32 v{t}, v{lo}, v{lo+1}\nv_cvt_pk_bf16_f32 v{t+1}, v{lo+2}, v{lo+3}")
        a(f"v_cvt_pk_bf16_f32 v{t+2}, v{hi}, v{hi+1}\nv_cvt_pk_bf16_f32 v{t+3}, v{hi+2}, v{hi+3}")
        if not swap:
            a(f"buffer_store_dwordx4 v[{t}:{t+3}], v{V_OWN}, s[16:19], s24 offen offset:{(f&3)*1024}")
            if f == 3:
                a("s_add_u32 s24, s24, 4096")
        else:
            a(f"buffer_store_dwordx4 v[{t}:{t+3}], v{V_OWN}, s[16:19], s24 offen offset:{(f&1)*1024}")
            if f & 1:
                a("s_add_u32 s24, s24, 4096")


def g1_role(a, L, swap, sh_stride, n_iter, iters_per_tile, own_jump, sh_jump, ntS, ntO):
    sh_step = 64 * sh_stride
    multi = iters_per_tile < n_iter
    for s in range(AHEAD):
        for g in g1_loads(s, ntS, ntO, sh_step):
            a("\n".join(g))

    def step(s, first, loads, vm, nstores=0):
        a(f"s_waitcnt vmcnt({vm})")
        a("s_barrier")
        lg = g1_loads((s + AHEAD) % NSLOT, ntS, ntO, sh_step) if loads else [[]] * 8
        rd0 = g1_reads(s, 0, 0)
        rd1 = g1_reads(s, 1, 1)
        if loads and multi and s == NSLOT - AHEAD:
            a("s_add_u32 s20, s20, s26\ns_add_u32 s21, s21, s27")
        if first == "start":
            for r in rd0:
                a(r)
            for g in lg[:4]:
                a("\n".join(g))
        else:
            oth = {i: [rd0[i]] for i in range(16)}
            for k in range(4):
                oth[4 * k + 1] = oth[4 * k + 1] + lg[k]
            interleave(a, g1_mfmas((s - 1) % NSLOT, 1, 1, swap), oth)
        zero = False
        if first == "start":
            zero = True
        if first == "maybe":
            a(f"s_and_b32 s28, s23, {iters_per_tile-1}\ns_cmp_lg_u32 s28, 0\ns_cbranch_scc1 {L}_noepi")
            g1_epilogue(a, swap)
            a("s_nop 1")
            for i in range(64):
                a(f"v_mov_b32 v{V_ACC+i}, 0")
            a(f"{L}_noepi:")
        oth = {i: [rd1[i]] for i in range(16)}
        for k in range(4):
            oth[4 * k + 1] = oth[4 * k + 1] + lg[4 + k]
        interleave(a, g1_mfmas(s, 0, 0, swap, zero=zero), oth)

    vm = (AHEAD - 1) * 8

    def set_jumps():
        if multi:
            a(f"s_add_u32 s28, s23, 1\ns_and_b32 s28, s28, {iters_per_tile-1}\ns_cmp_eq_u32 s28, 0")
            a(f"s_cselect_b32 s26, {own_jump & 0xffffffff}, 0\ns_cselect_b32 s27, {sh_jump & 0xffffffff}, 0")
    a("s_mov_b32 s23, 0")
    set_jumps()
    stamp(a, 1)
    step(0, "start", True, vm)
    stamp(a, 2)
    a(f"s_branch {L}_s1")
    a(f"{L}_loop:")
    set_jumps()
    step(0, "maybe" if multi else None, True, vm)
    a(f"{L}_s1:")
    step(1, None, True, vm)
    a(f"s_cmp_eq_u32 s23, {n_iter-1}\ns_cbranch_scc1 {L}_tail")
    for s in range(2, NSLOT):
        step(s, None, True, vm)
    a(f"s_add_u32 s23, s23, 1\ns_branch {L}_loop")
    a(f"{L}_tail:")
    stamp(a, 3)
    for s in range(2, NSLOT):
        step(s, None, False, (NSLOT - 1 - s) * 8)
    interleave(a, g1_mfmas(NSLOT - 1, 1, 1, swap, wait=lambda c: 14 - 2 * c), {})
    stamp(a, 4)
    g1_epilogue(a, swap)
    stamp_out(a, 1, 5, 30)
    a("s_endpgm")


def gen_gemm1(a, opt):
    ntV = " nt" if opt.get("v_nt", 0) else ""
    head(a, "gemm1_kernel")
    a("s_cmp_ge_u32 s2, 256\ns_cbranch_scc1 Lg1_end")
    stamp(a, 0)
    a("s_load_dwordx4 s[4:7], s[0:1], 32")
    a("s_load_dwordx2 s[30:31], s[0:1], 64")
    a("v_lshrrev_b32 v1, 6, v0")
    a("v_and_b32 v0, 63, v0")
    a("v_readfirstlane_b32 s3, v1")
    a(f"v_lshlrev_b32 v{V_OWN}, 4, v0")
    a("v_bfe_u32 v2, v0, 2, 3\nv_mul_u32_u24 v2, 1056, v2")
    a("v_lshrrev_b32 v3, 5, v0\nv_lshl_add_u32 v2, v3, 8, v2")
    a(f"v_and_b32 v3, 3, v0\nv_lshl_add_u32 v{V_RD}, v3, 3, v2")
    a(f"v_add_u32 v{V_RD+1}, {3*SLOT}, v{V_RD}\nv_add_u32 v{V_RD+2}, {6*SLOT}, v{V_RD}")
    a("s_mul_i32 s22, s3, 4224")
    a("v_lshrrev_b32 v2, 4, v0")
    a("v_and_b32 v3, 15, v0\nv_lshlrev_b32 v3, 4, v3")
    a("s_and_b32 s28, s2, 7\ns_lshr_b32 s29, s2, 3")
    a("s_cmp_ge_u32 s29, 28\ns_cbranch_scc1 Lg1_xr")
    if opt.get("map1", "2x4") == "2x4":
        a("s_and_b32 s32, s28, 1\ns_lshl_b32 s32, s32, 2\ns_and_b32 s33, s29, 3\ns_add_u32 s32, s32, s33")
        a("s_lshr_b32 s33, s28, 1\ns_mul_i32 s33, s33, 7\ns_lshr_b32 s34, s29, 2\ns_add_u32 s33, s33, s34")
    else:
        a("s_mul_i32 s33, s28, 28\ns_add_u32 s33, s33, s29\ns_and_b32 s32, s33, 7\ns_lshr_b32 s33, s33, 3")
    a("s_lshl_b32 s32, s32, 2\ns_add_u32 s32, s32, s3")
    a(f"s_mul_i32 s20, s32, {112*2048}")
    a("s_lshr_b32 s34, s3, 1\ns_lshl_b32 s34, s34, 5\ns_and_b32 s35, s3, 1\ns_lshl_b32 s35, s35, 2\ns_add_u32 s34, s34, s35")
    a("s_mul_i32 s21, s34, 7168\ns_lshl_b32 s35, s33, 8\ns_add_u32 s21, s21, s35")
    a(f"v_mul_u32_u24 v2, {8*7168}, v2\nv_add_u32 v{V_DMA}, v2, v3")
    for j in range(1, 4):
        a(f"v_add_u32 v{V_DMA+j}, {j*(7168-1056)}, v{V_DMA}")
    a(f"s_mul_i32 s24, s32, {224*1024}\ns_lshl_b32 s35, s33, 13\ns_add_u32 s24, s24, s35")
    a("s_waitcnt lgkmcnt(0)")
    srd(a, 8, 30, SZ_WQF, WS_WQF)
    srd(a, 12, 6, F * F * 2)
    srd(a, 16, 30, SZ_WQF, WS_WPF)
    g1_role(a, "Lw", False, 7168, 7, 8, 0, 0, ntV, "")
    a("Lg1_xr:")
    a("s_lshr_b32 s32, s28, 1\ns_lshl_b32 s32, s32, 2\ns_add_u32 s32, s32, s29\ns_sub_u32 s32, s32, 28")
    a("s_and_b32 s33, s28, 1\ns_lshl_b32 s33, s33, 2")
    a("s_lshl_b32 s32, s32, 2\ns_add_u32 s32, s32, s3")
    a("s_lshl_b32 s20, s32, 16")
    a("s_lshr_b32 s34, s3, 1\ns_lshl_b32 s34, s34, 5\ns_and_b32 s35, s3, 1\ns_lshl_b32 s35, s35, 3\ns_add_u32 s34, s34, s35")
    a("s_lshl_b32 s21, s34, 11\ns_lshl_b32 s35, s33, 8\ns_add_u32 s21, s21, s35")
    a("v_and_b32 v4, 1, v2\nv_lshlrev_b32 v4, 2, v4\nv_lshrrev_b32 v2, 1, v2\nv_add_u32 v2, v2, v4")
    a(f"v_lshl_add_u32 v{V_DMA}, v2, 13, v3")
    for j in range(1, 4):
        a(f"v_add_u32 v{V_DMA+j}, {j*(2048-1056)}, v{V_DMA}")
    a("s_lshr_b32 s24, s32, 1\ns_lshl_b32 s24, s24, 17\ns_lshl_b32 s35, s33, 14\ns_add_u32 s24, s24, s35")
    a("s_and_b32 s35, s32, 1\ns_lshl_b32 s35, s35, 11\ns_add_u32 s24, s24, s35")
    a("s_waitcnt lgkmcnt(0)")
    srd(a, 8, 30, SZ_XF, WS_XF)
    srd(a, 12, 4, D * D * 2)
    srd(a, 16, 30, SZ_XF, WS_XRF)
    g1_role(a, "Lx", True, 2048, 8, 2, -16 * 4096, -1024 * 2048 + 256, "", "")
    a("Lg1_end:\ns_endpgm")


SLOT2 = 28 * 1024
NS2 = 4
W_ACC = 0
W_SH = 112
W_L16 = 168
W_RD = 169
W_T = 172


def g2_loads(slot):
    dma = []
    for j in range(7):
        g = []
        if j == 0:
            g += [f"s_add_u32 m0, s22, {slot*SLOT2}", "s_nop 0"]
        if j == 4:
            g += [f"s_add_u32 m0, s22, {slot*SLOT2+4096}", "s_add_u32 s21, s21, 4096"]
        g.append(f"buffer_load_dwordx4 v{W_L16}, s[12:15], s21 offen offset:{(j&3)*1024} lds")
        if j == 6:
            g.append(f"s_add_u32 s21, s21, {4*224*1024-4096}")
        dma.append(g)
    own = []
    for j in range(16):
        r = slot * 64 + j * 4
        g = [f"buffer_load_dwordx4 a[{r}:{r+3}], v{W_L16}, s[8:11], s20 offen offset:{(j&3)*1024}"]
        if (j & 3) == 3:
            g.append("s_add_u32 s20, s20, 4096")
        own.append(g)
    out = []
    for j in range(16):
        if j < 7:
            out.append(dma[j])
        out.append(own[j])
    return out


def g2_reads(slot, ks, buf):
    base = W_RD + slot // 2
    off = (slot % 2) * SLOT2 + ks * 7168
    return [f"ds_read_b128 v[{W_SH+buf*28+c*4}:{W_SH+buf*28+c*4+3}], v{base} offset:{off+c*1024}" for c in range(7)]


def g2_mfmas(slot, ks, buf, zero=False, wait=6):
    out = []
    for c in range(7):
        for mt in range(4):
            acc = W_ACC + (c * 4 + mt) * 4
            own = slot * 64 + (ks * 4 + mt) * 4
            sh = W_SH + buf * 28 + c * 4
            C = "0" if zero else f"v[{acc}:{acc+3}]"
            m = f"v_mfma_f32_16x16x32_bf16 v[{acc}:{acc+3}], v[{sh}:{sh+3}], a[{own}:{own+3}], {C}"
            if mt == 0:
                w = wait if isinstance(wait, int) else wait(c)
                out.append(([f"s_waitcnt lgkmcnt({w})"], m))
            else:
                out.append(m)
    return out


def gen_gemm2(a, opt):
    head(a, "gemm2_kernel")
    a("s_cmp_ge_u32 s2, 256\ns_cbranch_scc1 Lg2_end")
    stamp(a, 0)
    a("s_load_dwordx2 s[4:5], s[0:1], 48")
    a("s_load_dwordx2 s[30:31], s[0:1], 64")
    a("v_lshrrev_b32 v1, 6, v0")
    a("v_and_b32 v0, 63, v0")
    a("v_readfirstlane_b32 s3, v1")
    a(f"v_lshlrev_b32 v{W_L16}, 4, v0")
    a(f"v_mov_b32 v{W_RD}, v{W_L16}\nv_add_u32 v{W_RD+1}, {2*SLOT2}, v{W_L16}")
    a(f"v_mov_b32 v{W_T+15}, v0")
    a("s_and_b32 s28, s2, 7\ns_lshr_b32 s29, s2, 3")
    a("s_and_b32 s32, s28, 1\ns_lshl_b32 s32, s32, 2\ns_and_b32 s33, s29, 3\ns_add_u32 s32, s32, s33")
    a("s_lshr_b32 s33, s28, 1\ns_lshl_b32 s33, s33, 3\ns_lshr_b32 s34, s29, 2\ns_add_u32 s33, s33, s34")
    a("s_lshl_b32 s32, s32, 2\ns_add_u32 s32, s32, s3")
    a("s_lshl_b32 s20, s32, 17")
    a(f"s_mul_i32 s21, s3, {224*1024}\ns_mul_i32 s35, s33, 7168\ns_add_u32 s21, s21, s35")
    a("s_mul_i32 s22, s3, 7168")
    a(f"s_mul_i32 s24, s32, {64*7168}\ns_mul_i32 s35, s33, 224\ns_add_u32 s24, s24, s35")
    a("s_waitcnt lgkmcnt(0)")
    srd(a, 8, 30, SZ_XF, WS_XRF)
    srd(a, 12, 30, SZ_WQF, WS_WPF)
    srd(a, 16, 4, S * F * 2)
    AH = 2
    NST = 8
    for s in range(AH):
        for g in g2_loads(s):
            a("\n".join(g))
    for s in range(NST):
        loads = s + AH < NST
        if s == 0: stamp(a, 1)
        a(f"s_waitcnt vmcnt({23 if s + 1 < NST else 0})")
        a("s_barrier")
        if s == 0: stamp(a, 2)
        if s == 4: stamp(a, 3)
        lg = g2_loads((s + AH) % NS2) if loads else []
        li = 0
        for q in range(4):
            rd = g2_reads(s % NS2, q, q & 1)
            oth = {4 * i: [rd[i]] for i in range(7)}
            for i in range(6):
                if li < len(lg):
                    oth.setdefault(4 * i + 2, [])
                    oth[4 * i + 2] = oth[4 * i + 2] + lg[li]
                    li += 1
            if s == 0 and q == 0:
                for i in sorted(oth):
                    a("\n".join(oth[i]))
            else:
                ps, pq = (s, q - 1) if q else (s - 1, 3)
                interleave(a, g2_mfmas(ps % NS2, pq, pq & 1, zero=(ps == 0 and pq == 0)), oth)
        assert li == len(lg)
    interleave(a, g2_mfmas((NST - 1) % NS2, 3, 1, wait=lambda c: 6 - c), {})
    stamp(a, 4)
    a("s_barrier")
    T = W_T
    lane = T + 15
    a(f"s_mul_i32 s28, s3, {64*240}")
    a(f"v_and_b32 v{T}, 15, v{lane}\nv_lshrrev_b32 v{T+1}, 4, v{lane}")
    a(f"v_mul_u32_u24 v{T+2}, 240, v{T}\nv_lshl_add_u32 v{T+2}, v{T+1}, 3, v{T+2}\nv_add_u32 v{T+2}, s28, v{T+2}")
    a(f"v_mul_u32_u24 v{T+3}, 240, v{T+1}\nv_lshl_add_u32 v{T+3}, v{T}, 4, v{T+3}\nv_add_u32 v{T+3}, s28, v{T+3}")
    a(f"v_mul_u32_u24 v{T+4}, 7168, v{T+1}\nv_lshl_add_u32 v{T+4}, v{T}, 4, v{T+4}")
    a(f"v_cmp_gt_u32 s[34:35], 14, v{T}")
    for mt in range(4):
        for c in range(7):
            acc = W_ACC + (c * 4 + mt) * 4
            t = T + 6 + (c & 1) * 2
            a(f"v_cvt_pk_bf16_f32 v{t}, v{acc}, v{acc+1}\nv_cvt_pk_bf16_f32 v{t+1}, v{acc+2}, v{acc+3}")
            a(f"ds_write_b64 v{T+2}, v[{t}:{t+1}] offset:{mt*16*240 + c*32}")
    a("s_waitcnt lgkmcnt(0)")
    a("s_mov_b64 exec, s[34:35]")
    for it in range(16):
        a(f"ds_read_b128 v[{it*4}:{it*4+3}], v{T+3} offset:{it*4*240}")
    for it in range(16):
        a(f"s_waitcnt lgkmcnt({15-it})")
        a(f"buffer_store_dwordx4 v[{it*4}:{it*4+3}], v{T+4}, s[16:19], s24 offen")
        a(f"s_add_u32 s24, s24, {4*7168}")
    stamp_out(a, 2, 5, 30)
    a("Lg2_end:\ns_endpgm")


def gen(opt):
    global STAMP
    STAMP = bool(opt.get("stamp", 0))
    a = Asm()
    a(HDR.rstrip())
    a("; @launch kernel=prep_kernel grid=(576,1,1) block=(256,1,1) lds=0")
    a(f"; @launch kernel=gemm1_kernel grid=(256,1,1) block=(256,1,1) lds={NSLOT*SLOT}")
    a(f"; @launch kernel=gemm2_kernel grid=(256,1,1) block=(256,1,1) lds={NS2*SLOT2}")
    if "diag" in opt:
        a("; @launch kernel=diag_kernel grid=(1,1,1) block=(64,1,1) lds=0")
    for i in range(opt.get("empties", 0)):
        a("; @launch kernel=empty_kernel grid=(256,1,1) block=(256,1,1) lds=0")
    a('.amdgcn_target "amdgcn-amd-amdhsa--gfx950"\n.text')
    if opt.get("empties", 0):
        head(a, "empty_kernel")
        a("s_endpgm")
    if "diag" in opt:
        from diag import diag_kernel
        p = opt["diag"].split(",")
        n = [576, 256, 256]
        ka, kb = int(p[0]), int(p[3])
        diag_kernel(a, srd, WS_STAMP, ka, n[ka], int(p[1]), p[2], kb, n[kb], int(p[4]), p[5], int(p[6]))
    gen_prep(a, opt)
    gen_gemm1(a, opt)
    gen_gemm2(a, opt)
    a('.section .rodata,"a"\n.p2align 6')
    if opt.get("empties", 0):
        a(kd("empty_kernel", 64, 64))
        a(".p2align 6")
    if "diag" in opt:
        a(kd("diag_kernel", 64, 64))
        a(".p2align 6")
    a(kd("prep_kernel", 64, 64))
    a(".p2align 6")
    a(kd("gemm1_kernel", 160 + 128, 160))
    a(".p2align 6")
    a(kd("gemm2_kernel", 192 + 256, 192))
    return a.text()


if __name__ == "__main__":
    opt = dict(kv.split("=") for kv in sys.argv[2:])
    opt = {k: (int(v) if v.lstrip("-").isdigit() else v) for k, v in opt.items()}
    open(sys.argv[1], "w").write(gen(opt))
```

```python
import sys
from asm import Asm, kd

NAME = "standalone__weight_only_int_quip__prompt_kernel"
S, D, F = 2048, 1024, 3584
WS_FLAG = 0
FA1, FA2, FB, FX, EPOCH = 0, 8192, 16384, 24576, 28672
SZ_FLAG = 32768
WS_WQ = 1 << 20
WS_XRF = 9 << 20
WS_WPF = 16 << 20
WS_STAMP = 64 << 20
SZ_W = D * F * 2
SZ_X = S * D * 2
SPIN_MAX = 1 << 15

HDR = """; Kernarg layout (72 bytes, ptrs only, base s[0:1]):
"""
sX, sQW, sSC, sZE, sU, sV, sOUT, sWS, sNONCE = 36, 38, 40, 42, 44, 46, 48, 30, 52

OPT = {}


def srd(a, d, b, nbytes, add=0):
    if add:
        a(f"s_add_u32 s{d}, s{b}, {add}")
        a(f"s_addc_u32 s{d+1}, s{b+1}, 0")
    else:
        a(f"s_mov_b32 s{d}, s{b}")
        a(f"s_mov_b32 s{d+1}, s{b+1}")
    a(f"s_mov_b32 s{d+2}, {nbytes}")
    a(f"s_mov_b32 s{d+3}, 0x20000")


def interleave(a, mf, others):
    for i, m in enumerate(mf):
        if isinstance(m, tuple):
            for p in m[0]:
                a(p)
            a(m[1])
        else:
            a(m)
        for o in others.get(i, []):
            a(o)


NSTAMP = 12
def stamp(a, idx):
    if not OPT.get("stamp"): return
    a(f"s_memrealtime s[{60+2*idx}:{61+2*idx}]")
    if idx == 0:
        a("s_memtime s[86:87]")
        for i in range(1, NSTAMP): a(f"s_mov_b32 s{60+2*i}, 0")


def stamp_out(a, loader):
    if not OPT.get("stamp"): return
    a("s_mov_b64 exec, -1\ns_waitcnt vmcnt(0)")
    a(f"s_memrealtime s[84:85]\ns_memtime s[88:89]\ns_waitcnt lgkmcnt(0)")
    a("s_sub_u32 s88, s88, s86")
    srd(a, 92, sWS, 1 << 20, WS_STAMP)
    a(f"s_lshl_b32 s90, s2, 3\ns_add_u32 s90, s90, s3\ns_add_u32 s90, s90, {4 if loader else 0}\ns_lshl_b32 s90, s90, 6")
    a("v_mov_b32 v0, 0")
    vals = [f"s{60+2*i}" for i in range(NSTAMP + 1)] + ["s88"]
    for i, v in enumerate(vals):
        a(f"v_mov_b32 v1, {v}\nbuffer_store_dword v1, v0, s[92:95], s90 offen offset:{4*i}")


def mfma(acc, A, B, zero=False):
    C = "0" if zero else f"v[{acc}:{acc+3}]"
    return f"v_mfma_f32_16x16x32_bf16 v[{acc}:{acc+3}], v[{A}:{A+3}], v[{B}:{B+3}], {C}"


def flag_store(a, soff, vt):
    a(f"v_mov_b32 v{vt}, s{sNONCE}\ns_mov_b64 exec, 1")
    a(f"buffer_store_dword v{vt}, off, s[56:59], {soff} sc1")
    a("s_mov_b64 exec, -1")


def flag_poll(a, L, soff, vidx, vt):
    a(f"s_mov_b32 s53, {SPIN_MAX}")
    a(f"{L}:")
    a(f"buffer_load_dword v{vt}, v{vidx}, s[56:59], {soff} offen sc1")
    a("s_sub_u32 s53, s53, 1\ns_cmp_eq_u32 s53, 0")
    a(f"s_cbranch_scc1 {L}_x")
    a("s_waitcnt vmcnt(0)")
    a(f"v_cmp_ne_u32 vcc, s{sNONCE}, v{vt}")
    a(f"s_cbranch_vccnz {L}")
    a(f"{L}_x:")


def dq_loads(a, B):
    a(f"v_lshrrev_b32 v{B}, 3, v0\nv_and_b32 v{B+1}, 7, v0")
    a(f"v_mul_u32_u24 v{B+2}, 14336, v{B}\nv_lshl_add_u32 v{B+2}, v{B+1}, 4, v{B+2}")
    a(f"v_lshlrev_b32 v{B+3}, 3, v{B+1}\nv_lshlrev_b32 v{B+4}, 4, v0")
    a(f"s_lshl_b32 s14, s32, 2\ns_add_u32 s14, s14, s3")
    a(f"s_mul_i32 s28, s14, {32*14336}\ns_lshl_b32 s29, s15, 8\ns_add_u32 s28, s28, s29")
    a("s_lshr_b32 s14, s14, 1\ns_mul_i32 s29, s14, 7168\ns_lshl_b32 s14, s15, 7\ns_add_u32 s29, s29, s14")
    srd(a, 16, sQW, D * F * 4)
    srd(a, 20, sSC, 16 * F * 2)
    srd(a, 24, sZE, 16 * F * 2)


def dq_issue(a, B):
    nt = " nt" if OPT.get("dq_nt", 1) else ""
    for t in range(2):
        a(f"buffer_load_dwordx2 v[{B+8+2*t}:{B+9+2*t}], v{B+3}, s[20:23], s29 offen offset:{64*t}")
        a(f"buffer_load_dwordx2 v[{B+12+2*t}:{B+13+2*t}], v{B+3}, s[24:27], s29 offen offset:{64*t}")
    for rg in range(4):
        for t in range(2):
            r = B + 32 + rg * 8 + t * 4
            a(f"buffer_load_dwordx4 v[{r}:{r+3}], v{B+2}, s[16:19], s28 offen offset:{128*t}{nt}")
        if rg < 3:
            a(f"s_add_u32 s28, s28, {8*14336}")


def dq_finish(a, B):
    a(f"s_mul_i32 s28, s32, 56\ns_add_u32 s28, s28, s15\ns_lshl_b32 s28, s28, 2\ns_add_u32 s28, s28, s3\ns_lshl_b32 s28, s28, 12")
    a("s_waitcnt vmcnt(8)")
    for j in range(4):
        a(f"v_lshlrev_b32 v{B+16+2*j}, 16, v{B+8+j}\nv_and_b32 v{B+17+2*j}, 0xffff0000, v{B+8+j}")
        a(f"v_lshlrev_b32 v{B+24+2*j}, 16, v{B+12+j}\nv_and_b32 v{B+25+2*j}, 0xffff0000, v{B+12+j}")
    for rg in range(4):
        a(f"s_waitcnt vmcnt({6 - 2*rg + rg})")
        r = B + 32 + rg * 8
        for e in range(8):
            a(f"v_cvt_f32_i32 v{r+e}, v{r+e}")
        for e in range(8):
            a(f"v_sub_f32 v{r+e}, v{r+e}, v{B+24+e}")
        for p in range(4):
            a(f"v_cvt_pk_bf16_f32 v{B+8+p}, v{r+2*p}, v{r+2*p+1}")
        for p in range(4):
            a(f"v_lshlrev_b32 v{r+2*p}, 16, v{B+8+p}\nv_and_b32 v{r+2*p+1}, 0xffff0000, v{B+8+p}")
        for e in range(8):
            a(f"v_mul_f32 v{r+e}, v{r+e}, v{B+16+e}")
        for p in range(4):
            a(f"v_cvt_pk_bf16_f32 v{r+p}, v{r+2*p}, v{r+2*p+1}")
        a(f"buffer_store_dwordx4 v[{r}:{r+3}], v{B+4}, s[8:11], s28 offen offset:{rg*1024} sc1")


SL = 16384 + 16 * 1056
NSL = 4
SLX = 32768 + 16 * 1056
CQ0 = 3 * SL
SQ = 16 * 1040
LDS_BYTES = max(NSL * SL, 3 * SLX, CQ0 + 3 * SQ)

B_FR = 64
B_PA = 128
B_TA = 132
V_L16 = 248
V_T = 240
RD_ORDER = [("P", 0, 0), ("T", 0, 0), ("T", 0, 1), ("T", 1, 0), ("T", 1, 1), ("P", 1, 0), ("T", 2, 0), ("T", 2, 1),
            ("P", 2, 0), ("T", 3, 0), ("T", 3, 1), ("P", 3, 0)]
MF_ORDER = [(0, 0), (0, 1), (1, 1), (1, 0), (1, 2), (0, 2), (2, 2), (2, 1), (2, 0), (2, 3), (1, 3), (0, 3), (3, 3), (3, 2), (3, 1), (3, 0)]


def b_reads(slot, ks, buf):
    out = []
    for kind, i, t in RD_ORDER:
        if kind == "P":
            r = B_FR + buf * 32 + i * 4
            out.append(f"ds_read_b128 v[{r}:{r+3}], v{B_PA + (slot//2)*2 + ks} offset:{(slot%2)*SL + i*2048}")
        else:
            r = B_FR + buf * 32 + 16 + i * 4 + t * 2
            out.append(f"ds_read_b64_tr_b16 v[{r}:{r+1}], v{B_TA + slot//2} offset:{(slot%2)*SL + 16384 + ks*8448 + t*512 + i*32}")
    return out


def b_mfmas(buf, waits):
    out = []
    for n, (rt, c) in enumerate(MF_ORDER):
        m = mfma((rt * 4 + c) * 4, B_FR + buf * 32 + rt * 4, B_FR + buf * 32 + 16 + c * 4)
        out.append(([f"s_waitcnt lgkmcnt({waits[n]})"], m) if n in waits else m)
    return out


def row_read_base(a, dst, t0, wshift):
    a(f"v_and_b32 v{t0}, 15, v0\nv_lshrrev_b32 v{t0+1}, 4, v0")
    a(f"v_lshrrev_b32 v{t0+2}, 1, v{t0}\nv_xor_b32 v{t0+2}, v{t0+2}, v{t0+1}\nv_lshlrev_b32 v{t0+2}, 4, v{t0+2}\nv_lshl_add_u32 v{t0+2}, v{t0}, 7, v{t0+2}")
    a(f"s_lshr_b32 s14, s3, 1\ns_lshl_b32 s14, s14, {wshift}\nv_add_u32 v{dst}, s14, v{t0+2}\nv_xor_b32 v{dst+1}, 64, v{dst}")


def tr_read_base(a, dst, t0):
    a(f"v_bfe_u32 v{t0}, v0, 2, 3\nv_mul_u32_u24 v{t0}, 1056, v{t0}\nv_lshrrev_b32 v{t0+1}, 5, v0\nv_lshl_add_u32 v{t0}, v{t0+1}, 8, v{t0}")
    a(f"v_and_b32 v{t0+1}, 3, v0\nv_lshl_add_u32 v{t0}, v{t0+1}, 3, v{t0}\ns_and_b32 s14, s3, 1\ns_lshl_b32 s14, s14, 7")
    a(f"v_add_u32 v{dst}, s14, v{t0}")


C_FR = 128
C_PA = 224
C_QA = 227
C_WA = 228
C_SA = 229


def c_reads(slot, ks, buf):
    P = [f"ds_read_b128 v[{C_FR+buf*48+rt*4}:{C_FR+buf*48+rt*4+3}], v{C_PA+slot} offset:{ks*16384 + rt*1024}" for rt in range(4)]
    Q = [f"ds_read_b128 v[{C_FR+buf*48+16+c*4}:{C_FR+buf*48+16+c*4+3}], v{C_QA} offset:{slot*SQ + ks*8320 + c*16}" for c in range(8)]
    return [P[0]] + Q + P[1:]


def c_mfmas(buf, zero=False):
    out = []
    for rt in range(4):
        for cc in range(8):
            c = cc if rt % 2 == 0 else 7 - cc
            out.append(mfma((rt * 8 + c) * 4, C_FR + buf * 48 + rt * 4, C_FR + buf * 48 + 16 + c * 4, zero))
    return out


def spread(rd, every=2):
    return {every * i: [r] for i, r in enumerate(rd)}


def w_compute(a):
    DQ = 144
    a("s_add_u32 s15, s33, 28")
    dq_loads(a, DQ)
    srd(a, 8, sWS, SZ_W, WS_WQ)
    a("s_barrier")
    dq_issue(a, DQ)
    a(f"v_lshlrev_b32 v{V_L16}, 4, v0")
    row_read_base(a, B_PA, V_T, 13)
    a(f"v_add_u32 v{B_PA+2}, {2*SL}, v{B_PA}\nv_add_u32 v{B_PA+3}, {2*SL}, v{B_PA+1}")
    tr_read_base(a, B_TA, V_T)
    a(f"v_add_u32 v{B_TA+1}, {2*SL}, v{B_TA}")
    a(f"s_lshl_b32 s14, s3, 12\nv_add_u32 v{C_PA}, s14, v{V_L16}\nv_add_u32 v{C_PA+1}, {SL}, v{C_PA}\nv_add_u32 v{C_PA+2}, {2*SL}, v{C_PA}")
    a(f"v_bfe_u32 v{V_T}, v0, 1, 3\nv_mul_u32_u24 v{V_T}, 1040, v{V_T}\nv_lshrrev_b32 v{V_T+1}, 4, v0\nv_lshl_add_u32 v{V_T}, v{V_T+1}, 8, v{V_T}")
    a(f"v_and_b32 v{V_T+2}, 1, v0\nv_lshl_add_u32 v{V_T}, v{V_T+2}, 7, v{V_T}\nv_add_u32 v{C_QA}, {CQ0}, v{V_T}")
    a(f"s_lshr_b32 s14, s3, 1\ns_mul_i32 s14, s14, {SQ}\ns_and_b32 s34, s3, 1\ns_mul_i32 s34, s34, {4*1040}\ns_add_u32 s14, s14, s34\ns_add_u32 s14, s14, {CQ0}")
    a(f"v_add_u32 v{C_WA}, s14, v{V_L16}")
    a(f"v_mul_u32_u24 v{V_T+1}, {4*7168}, v{V_T+1}\nv_and_b32 v{V_T+2}, 15, v0\nv_lshl_add_u32 v{C_SA}, v{V_T+2}, 4, v{V_T+1}")
    for i in list(range(64)) + list(range(B_FR + 32, B_FR + 64)):
        a(f"v_mov_b32 v{i}, 0")
    dq_finish(a, DQ)
    stamp(a, 1)
    a(f"s_lshr_b32 s34, s3, 1\ns_lshl_b32 s24, s32, 1\ns_add_u32 s24, s24, s34\ns_mul_i32 s24, s24, {2*224*1024}")
    a("s_and_b32 s34, s3, 1\ns_lshl_b32 s35, s33, 1\ns_add_u32 s34, s34, s35\ns_lshl_b32 s34, s34, 12\ns_add_u32 s24, s24, s34")
    srd(a, 16, sWS, SZ_W, WS_WPF)
    a(f"s_lshl_b32 s25, s32, 2\ns_add_u32 s25, s25, s3\ns_lshl_b32 s26, s25, 8\ns_lshl_b32 s34, s33, 2\ns_add_u32 s26, s26, s34\ns_add_u32 s26, s26, {FA2}")
    a(f"s_lshl_b32 s27, s33, 8\ns_lshl_b32 s34, s25, 2\ns_add_u32 s27, s27, s34\ns_add_u32 s27, s27, {FB}")
    a(f"s_mov_b32 s23, {56 // NSL}")
    a("Lb_loop:")
    for s in range(NSL):
        a("s_barrier")
        if s == 0 and OPT.get("stamp"):
            a(f"s_cmp_lg_u32 s23, {56 // NSL}\ns_cbranch_scc1 Lb_ns")
            stamp(a, 2)
            a("Lb_ns:")
        rd = b_reads(s, 0, 0)
        interleave(a, b_mfmas(1, {}), {i: [rd[i]] for i in range(12)})
        rd = b_reads(s, 1, 1)
        oth = {i: [rd[i]] for i in range(12)}
        if s == NSL - 1:
            oth[12] = [f"s_cmp_eq_u32 s23, {56 // NSL}", "s_cbranch_scc1 Lb_sig"]
            oth[13] = ["s_sub_u32 s23, s23, 1"]
            oth[14] = ["s_cmp_lg_u32 s23, 0"]
            oth[12].append("Lb_sigdone:")
        interleave(a, b_mfmas(0, {0: 4, 6: 6}), oth)
        a("s_waitcnt lgkmcnt(0)")
    a("s_cbranch_scc1 Lb_loop")
    a("s_barrier")
    stamp(a, 3)
    interleave(a, b_mfmas(1, {}), {})
    a("s_nop 7")
    for f in range(8):
        pair, o = f >> 2, f & 3
        lo, hi = ((2 * pair) * 4 + o) * 4, ((2 * pair + 1) * 4 + o) * 4
        t = V_T + (f & 1) * 4
        a(f"v_cvt_pk_bf16_f32 v{t}, v{lo}, v{lo+1}\nv_cvt_pk_bf16_f32 v{t+1}, v{lo+2}, v{lo+3}")
        a(f"v_cvt_pk_bf16_f32 v{t+2}, v{hi}, v{hi+1}\nv_cvt_pk_bf16_f32 v{t+3}, v{hi+2}, v{hi+3}")
        a(f"buffer_store_dwordx4 v[{t}:{t+3}], v{V_L16}, s[16:19], s24 offen offset:{o*1024} sc1")
        a(f"ds_write_b128 v{C_WA}, v[{t}:{t+3}] offset:{pair*8320 + o*1040}")
        if f == 3:
            a(f"s_add_u32 s24, s24, {224*1024}")
    srd(a, 16, sOUT, S * F * 2)
    a(f"s_mul_i32 s24, s25, {64*7168}\ns_lshl_b32 s34, s33, 8\ns_add_u32 s24, s24, s34")
    a("s_waitcnt lgkmcnt(0)")
    stamp(a, 4)
    a("s_barrier")
    for r in c_reads(0, 0, 0):
        a(r)
    a("s_mov_b32 s23, 5")
    a("s_waitcnt lgkmcnt(0)")
    interleave(a, c_mfmas(0, zero=True), spread(c_reads(0, 1, 1)))
    a("s_waitcnt vmcnt(0)")
    flag_store(a, "s27", V_T)
    stamp(a, 5)
    a("s_waitcnt lgkmcnt(0)")
    a("Lc_loop:")
    for s in (1, 2, 0):
        a("s_barrier")
        if s == 2 and OPT.get("stamp"):
            a(f"s_cmp_lg_u32 s23, 5\ns_cbranch_scc1 Lc_ns")
            stamp(a, 6)
            a("Lc_ns:")
        interleave(a, c_mfmas(1), spread(c_reads(s, 0, 0)))
        a("s_waitcnt lgkmcnt(0)")
        oth = spread(c_reads(s, 1, 1))
        if s == 0:
            oth[27] = ["s_sub_u32 s23, s23, 1"]
            oth[29] = ["s_cmp_lg_u32 s23, 0"]
        interleave(a, c_mfmas(0), oth)
        a("s_waitcnt lgkmcnt(0)")
    a("s_cbranch_scc1 Lc_loop")
    stamp(a, 7)
    ynt = {0: "", 1: " nt", 2: " sc1", 3: " sc0 sc1"}[OPT.get("y_nt", 0)]

    def row_out(rt, r):
        t = C_FR + ((rt * 4 + r) % 8) * 4
        o = []
        for p in range(4):
            o.append(f"v_cvt_pk_bf16_f32 v{t+p}, v{(rt*8+2*p)*4+r}, v{(rt*8+2*p+1)*4+r}")
        o.append(f"buffer_store_dwordx4 v[{t}:{t+3}], v{C_SA}, s[16:19], s24 offen{ynt}")
        o.append(f"s_add_u32 s24, s24, {7168 if r < 3 else 13*7168}")
        return o
    oth = {}
    for rt in range(2):
        for r in range(4):
            oth[16 + rt * 8 + 2 * r] = row_out(rt, r)
    interleave(a, c_mfmas(1), oth)
    for rt in range(2, 4):
        for r in range(4):
            a("\n".join(row_out(rt, r)))
    stamp(a, 8)
    a("s_or_b32 s14, s2, s3\ns_cmp_lg_u32 s14, 0\ns_cbranch_scc1 Lc_end")
    a(f"s_mov_b32 s14, {EPOCH}")
    flag_store(a, "s14", V_T)
    a("Lc_end:")
    stamp_out(a, False)
    a("s_endpgm")
    a("Lb_sig:")
    a("s_waitcnt vmcnt(0)")
    flag_store(a, "s26", V_T)
    a("s_branch Lb_sigdone")


L_T = 64
L_P = 68
L_TP = 72
L_TT = 73
L_Q = 74
L_L16 = 78
L_FI = 79
L_TMP = 80


def rot_table(a, n, W, phi, psi, v):
    a(f"v_add_u32 v{v}, {psi}, v0\nv_add_u32 v{v+1}, {phi}, v{v}\nv_and_b32 v{v+1}, {W-1}, v{v+1}\nv_and_b32 v{v}, {(~(W-1)) & 0xff}, v{v}")
    a(f"v_subrev_u32 v{v}, {psi}, v{v}")
    a(f"v_cmp_ge_u32 vcc, {n-W}, v{v}")
    a(f"v_add_u32 v{v}, v{v}, v{v+1}")
    a("s_nop 0")
    a(f"v_cndmask_b32 v{v}, v0, v{v}, vcc")


def t_voffs(a, t_row, natural):
    t = L_TMP
    a(f"v_lshrrev_b32 v{t}, 4, v0\nv_and_b32 v{t+1}, 1, v{t}\nv_lshrrev_b32 v{t}, 1, v{t}")
    if natural:
        a(f"v_lshlrev_b32 v{t+1}, 4, v{t+1}\nv_lshl_add_u32 v{t}, v{t}, 2, v{t+1}")
    else:
        a(f"v_lshlrev_b32 v{t+1}, 3, v{t+1}\nv_lshl_add_u32 v{t}, v{t}, 5, v{t+1}")
    a(f"v_mul_u32_u24 v{t}, {t_row}, v{t}\nv_and_b32 v{t+1}, 15, v0\nv_lshl_add_u32 v{L_T}, v{t+1}, 4, v{t}")
    for j in range(1, 4):
        a(f"v_add_u32 v{L_T+j}, {j*(t_row-1056)}, v{L_T}")


def p_voffs(a, p_row):
    t = L_TMP
    a(f"v_lshrrev_b32 v{t}, 3, v0\nv_mul_u32_u24 v{t}, {p_row}, v{t}\nv_lshrrev_b32 v{t+1}, 4, v0\nv_and_b32 v{t+2}, 7, v0\nv_xor_b32 v{t+1}, v{t+1}, v{t+2}")
    a(f"v_lshl_add_u32 v{L_P}, v{t+1}, 4, v{t}\nv_xor_b32 v{L_P+1}, 64, v{L_P}")
    d = 8 * p_row - 1024
    a(f"v_add_u32 v{L_P+2}, {2*d}, v{L_P}\nv_add_u32 v{L_P+3}, {3*d}, v{L_P+1}\nv_add_u32 v{L_P+1}, {d}, v{L_P+1}")


def w_loader(a):
    DQ = 4
    a("s_mov_b32 s15, s33")
    dq_loads(a, DQ)
    dq_issue(a, DQ)
    a("s_barrier")
    srd(a, 8, sWS, SZ_W, WS_WQ)
    W = OPT.get("W", 4)
    a(f"s_mul_i32 s34, s32, {OPT.get('pm',1)}\ns_mul_i32 s35, s33, {OPT.get('pn',0)}\ns_add_u32 s34, s34, s35")
    a(f"s_mul_i32 s35, s33, {OPT.get('qn',1)}\ns_mul_i32 s14, s32, {OPT.get('qm',0)}\ns_add_u32 s35, s35, s14\ns_and_b32 s35, s35, {W-1}")
    t = L_TMP + 4
    rot_table(a, 56, W, "s34", "s35", t)
    a(f"s_mul_i32 s34, s32, {56*16384}\ns_lshl_b32 s22, s3, 12\ns_add_u32 s34, s34, s22")
    a(f"v_lshl_add_u32 v{L_TP}, v{t}, 14, s34")
    a("s_lshr_b32 s34, s3, 1\ns_lshl_b32 s34, s34, 4\ns_and_b32 s35, s3, 1\ns_lshl_b32 s35, s35, 2\ns_add_u32 s34, s34, s35")
    a("s_mul_i32 s34, s34, 7168\ns_lshl_b32 s35, s33, 8\ns_add_u32 s34, s34, s35")
    a(f"v_mul_u32_u24 v{t}, {64*7168}, v{t}\nv_add_u32 v{L_TT}, s34, v{t}")
    p_voffs(a, 128)
    a(f"v_lshlrev_b32 v{L_L16}, 4, v0")
    for j in range(4):
        a(f"v_add_u32 v{L_Q+j}, {64 - 16*j}, v{L_L16}")
    a(f"v_min_u32 v{L_FI}, 27, v0\nv_lshlrev_b32 v{L_FI}, 2, v{L_FI}")
    dq_finish(a, DQ)
    stamp(a, 1)
    a("s_nop 0")
    t_voffs(a, 7168, False)
    srd(a, 12, sV, F * F * 2)
    a("s_mul_i32 s29, s3, 4224\ns_add_u32 s29, s29, 16384")
    a(f"s_lshl_b32 s26, s32, 2\ns_add_u32 s26, s26, s3\ns_lshl_b32 s26, s26, 8")
    a("s_lshl_b32 s27, s33, 2\ns_add_u32 s27, s27, s26")

    def T(j): a(f"buffer_load_dwordx4 v{L_T+j}, s[12:15], s21 offen offset:{j*1056} lds")
    def P(j): a(f"buffer_load_dwordx4 v{L_P+j}, s[8:11], s20 offen offset:{j*1024} sc1 lds")
    def Tst(st):
        a(f"v_readlane_b32 s21, v{L_TT}, {st}\ns_add_u32 m0, s29, {st*SL}\ns_nop 3")
        for j in range(4): T(j)
    def Pst(st):
        a(f"v_readlane_b32 s20, v{L_TP}, {st}\ns_add_u32 m0, s22, {st*SL}\ns_nop 3")
        for j in range(4): P(j)
    for st in range(3):
        Tst(st)
    a("s_waitcnt vmcnt(12)")
    flag_store(a, "s27", L_TMP)
    stamp(a, 2)
    flag_poll(a, "Lw_pa1", "s26", L_FI, L_TMP + 1)
    stamp(a, 3)
    Pst(0)
    Pst(1)
    a("s_waitcnt vmcnt(4)\ns_barrier")
    Pst(2)
    Tst(3)
    Pst(3)
    a(f"v_readlane_b32 s21, v{L_TT}, 4\ns_mov_b32 m0, s29\ns_mov_b32 s25, 4\ns_mov_b32 s28, 0\ns_add_u32 s26, s26, {FA2}")
    a("s_waitcnt vmcnt(12)\ns_barrier")
    a("s_branch Lw_go")
    CHK = OPT.get("chk", 16)
    a("Lw_loop:")
    P(3)
    a("s_add_u32 m0, s28, s29")
    a("s_waitcnt vmcnt(16)\ns_barrier")
    a("Lw_go:")
    T(0)
    a(f"v_readlane_b32 s20, v{L_TP}, s25\ns_add_u32 s25, s25, 1")
    T(1)
    a(f"s_add_u32 s34, s28, s22\ns_add_u32 s28, s28, {SL}")
    T(2)
    a(f"s_cmp_eq_u32 s28, {NSL*SL}\ns_cselect_b32 s28, 0, s28")
    T(3)
    a(f"s_mov_b32 m0, s34\nv_readlane_b32 s21, v{L_TT}, s25")
    P(0)
    a(f"s_cmp_eq_u32 s25, {CHK}\ns_cbranch_scc1 Lw_chk")
    a("Lw_chkdone:")
    P(1)
    a(f"s_cmp_lt_u32 s25, 56")
    P(2)
    a("s_cbranch_scc1 Lw_loop")
    P(3)
    stamp(a, 4)
    a(f"s_lshl_b32 s26, s32, 8\ns_add_u32 s26, s26, {FX}")
    a(f"v_and_b32 v{L_FI}, 31, v0\nv_lshlrev_b32 v{L_FI}, 2, v{L_FI}")
    a(f"s_lshl_b32 s34, s32, 1\nv_add_u32 v{t}, s34, v0\nv_and_b32 v{t}, 15, v{t}")
    a(f"s_lshl_b32 s34, s32, 19\ns_lshl_b32 s22, s3, 13\ns_add_u32 s34, s34, s22\nv_lshl_add_u32 v{L_TP}, v{t}, 15, s34")
    a(f"s_lshr_b32 s34, s3, 1\ns_mul_i32 s34, s34, {224*1024}\ns_and_b32 s35, s3, 1\ns_lshl_b32 s14, s33, 1\ns_add_u32 s35, s35, s14\ns_lshl_b32 s35, s35, 12\ns_add_u32 s34, s34, s35")
    a(f"v_mul_u32_u24 v{t}, {2*224*1024}, v{t}\nv_add_u32 v{L_TT}, s34, v{t}")
    a(f"s_mul_i32 s29, s3, {4*1040}\ns_add_u32 s29, s29, {CQ0}")
    srd(a, 8, sWS, SZ_X, WS_XRF)
    srd(a, 12, sWS, SZ_W + 64, WS_WPF - 64)
    a("s_waitcnt vmcnt(16)\ns_barrier")
    flag_poll(a, "Lw_px", "s26", L_FI, L_TMP + 1)
    stamp(a, 5)

    def PC(st, slot):
        a(f"v_readlane_b32 s20, v{L_TP}, {st}\ns_add_u32 m0, s22, {slot}\ns_nop 3")
        for j in range(8):
            if j == 4: a("s_add_u32 m0, m0, 4096\ns_add_u32 s20, s20, 4096")
            a(f"buffer_load_dwordx4 v{L_L16}, s[8:11], s20 offen offset:{(j&3)*1024} sc1 lds")
    def QC(st, slot):
        a(f"v_readlane_b32 s21, v{L_TT}, {st}\ns_add_u32 m0, s29, {slot}\ns_nop 3")
        for j in range(4):
            a(f"buffer_load_dwordx4 v{L_Q+j}, s[12:15], s21 offen offset:{j*1040} sc1 lds")
    PC(0, 0)
    a("s_barrier")
    PC(1, SL)
    a("s_barrier")
    PC(2, 2 * SL)
    a("s_barrier")
    a(f"s_lshl_b32 s26, s33, 8\ns_add_u32 s26, s26, {FB}")
    a("s_waitcnt vmcnt(16)\ns_barrier")
    a("s_waitcnt vmcnt(8)\ns_barrier")
    stamp(a, 6)
    flag_poll(a, "Lw_pb", "s26", L_FI, L_TMP + 1)
    stamp(a, 7)
    QC(2, 2 * SQ)
    a("s_mov_b32 s25, 3\ns_mov_b32 s28, 0\ns_mov_b32 s27, 0")
    a("Lw_cloop:")
    QC("s25", "s27")
    PC("s25", "s28")
    a(f"s_add_u32 s27, s27, {SQ}\ns_add_u32 s28, s28, {SL}\ns_cmp_eq_u32 s28, {3*SL}\ns_cselect_b32 s28, 0, s28\ns_cselect_b32 s27, 0, s27")
    a("s_add_u32 s25, s25, 1\ns_cmp_lt_u32 s25, 16")
    a("s_waitcnt vmcnt(12)\ns_barrier")
    a("s_cbranch_scc1 Lw_cloop")
    a("s_waitcnt vmcnt(0)\ns_barrier")
    stamp_out(a, True)
    a("s_endpgm")
    a("Lw_chk:")
    flag_poll(a, "Lw_pa2", "s26", L_FI, L_TMP + 1)
    a("s_branch Lw_chkdone")


X_FR = 128
X_A = 224


def x_reads(slot, ks, buf):
    P = [f"ds_read_b128 v[{X_FR+buf*48+rt*4}:{X_FR+buf*48+rt*4+3}], v{X_A+slot*3+ks} offset:{rt*2048}" for rt in range(8)]
    T = [f"ds_read_b64_tr_b16 v[{X_FR+buf*48+32+c*4+t*2}:{X_FR+buf*48+32+c*4+t*2+1}], v{X_A+slot*3+2} offset:{32768 + ks*8448 + t*512 + c*32}"
         for c in range(4) for t in range(2)]
    return T + P


def x_mfmas(buf, zero=False):
    out = []
    for rt in range(8):
        for cc in range(4):
            c = cc if rt % 2 == 0 else 3 - cc
            out.append(mfma((rt * 4 + c) * 4, X_FR + buf * 48 + 32 + c * 4, X_FR + buf * 48 + rt * 4, zero))
    return out


def x_spread(rd):
    return {(3 * i) // 2: [r] for i, r in enumerate(rd)}


def x_compute(a):
    a(f"v_lshlrev_b32 v{V_L16}, 4, v0")
    row_read_base(a, X_A, V_T, 14)
    tr_read_base(a, X_A + 2, V_T)
    for i in range(3, 9):
        a(f"v_add_u32 v{X_A+i}, {SLX}, v{X_A+i-3}")
    a("s_lshl_b32 s24, s32, 19\ns_lshl_b32 s34, s33, 1\ns_and_b32 s35, s3, 1\ns_add_u32 s34, s34, s35\ns_lshl_b32 s34, s34, 15\ns_add_u32 s24, s24, s34")
    a("s_lshr_b32 s35, s3, 1\ns_lshl_b32 s35, s35, 13\ns_add_u32 s24, s24, s35")
    a(f"s_lshl_b32 s27, s33, 2\ns_add_u32 s27, s27, s3\ns_lshl_b32 s27, s27, 2\ns_lshl_b32 s34, s32, 8\ns_add_u32 s27, s27, s34\ns_add_u32 s27, s27, {FX}")
    srd(a, 16, sWS, SZ_X, WS_XRF)
    a("s_mov_b32 s25, 2")
    a("Lx_tile:")
    a("s_barrier")
    for r in x_reads(0, 0, 0):
        a(r)
    a("s_mov_b32 s23, 5")
    a("s_waitcnt lgkmcnt(0)")
    interleave(a, x_mfmas(0, zero=True), x_spread(x_reads(0, 1, 1)))
    a("s_waitcnt lgkmcnt(0)")
    a("Lx_loop:")
    for s in (1, 2, 0):
        a("s_barrier")
        interleave(a, x_mfmas(1), x_spread(x_reads(s, 0, 0)))
        a("s_waitcnt lgkmcnt(0)")
        oth = x_spread(x_reads(s, 1, 1))
        if s == 0:
            oth[27] = ["s_sub_u32 s23, s23, 1"]
            oth[29] = ["s_cmp_lg_u32 s23, 0"]
        interleave(a, x_mfmas(0), oth)
        a("s_waitcnt lgkmcnt(0)")
    a("s_cbranch_scc1 Lx_loop")
    interleave(a, x_mfmas(1), {})
    for i in range(3):
        a(f"v_mov_b32 v{V_T}, v{X_A+i}\nv_mov_b32 v{X_A+i}, v{X_A+3+i}\nv_mov_b32 v{X_A+3+i}, v{X_A+6+i}\nv_mov_b32 v{X_A+6+i}, v{V_T}")
    for f in range(16):
        pair, rt = f >> 3, f & 7
        lo = (rt * 4 + 2 * pair) * 4
        hi = lo + 4
        t = V_T + (f & 1) * 4
        a(f"v_cvt_pk_bf16_f32 v{t}, v{lo}, v{lo+1}\nv_cvt_pk_bf16_f32 v{t+1}, v{lo+2}, v{lo+3}")
        a(f"v_cvt_pk_bf16_f32 v{t+2}, v{hi}, v{hi+1}\nv_cvt_pk_bf16_f32 v{t+3}, v{hi+2}, v{hi+3}")
        a(f"buffer_store_dwordx4 v[{t}:{t+3}], v{V_L16}, s[16:19], s24 offen offset:{(rt&3)*1024} sc1")
        if rt == 3: a("s_add_u32 s24, s24, 4096")
        if rt == 7: a(f"s_add_u32 s24, s24, {16384-4096 if pair == 0 else 65536-16384-4096}")
    a("s_sub_u32 s25, s25, 1\ns_cmp_lg_u32 s25, 0\ns_cbranch_scc1 Lx_tile")
    a("s_waitcnt vmcnt(0)")
    flag_store(a, "s27", V_T)
    a("s_add_u32 s27, s27, 16")
    flag_store(a, "s27", V_T)
    stamp_out(a, False)
    a("s_endpgm")


def x_loader(a):
    t = L_TMP + 4
    W = OPT.get("xW", 2)
    a(f"v_and_b32 v{t+2}, 15, v0\nv_add_u32 v{t+1}, s35, v0\nv_and_b32 v{t+1}, {W-1}, v{t+1}\nv_and_b32 v{t}, {(~(W-1)) & 15}, v0\nv_add_u32 v{t}, v{t}, v{t+1}")
    a(f"s_lshl_b32 s34, s32, 2\ns_add_u32 s34, s34, s3\ns_lshl_b32 s34, s34, 17\nv_lshl_add_u32 v{L_TP}, v{t}, 7, s34")
    a("s_lshr_b32 s34, s3, 1\ns_lshl_b32 s34, s34, 5\ns_and_b32 s14, s3, 1\ns_lshl_b32 s14, s14, 3\ns_add_u32 s34, s34, s14")
    a("s_lshl_b32 s34, s34, 11\ns_lshl_b32 s14, s33, 8\ns_add_u32 s34, s34, s14")
    a(f"v_lshl_add_u32 v{t}, v{t}, 17, s34\nv_lshrrev_b32 v{t+1}, 4, v0\nv_lshl_add_u32 v{L_TT}, v{t+1}, 8, v{t}")
    t_voffs(a, 2048, True)
    p_voffs(a, 2048)
    srd(a, 8, sX, SZ_X)
    srd(a, 12, sU, D * D * 2)
    a("s_lshl_b32 s22, s3, 13\ns_mul_i32 s29, s3, 4224\ns_add_u32 s29, s29, 32768")
    a("s_mov_b32 s25, 0\ns_mov_b32 s28, 0")
    a("Lxl_loop:")
    a(f"v_readlane_b32 s21, v{L_TT}, s25\nv_readlane_b32 s20, v{L_TP}, s25\ns_add_u32 m0, s28, s29\ns_add_u32 s25, s25, 1\ns_nop 2")
    for j in range(4):
        a(f"buffer_load_dwordx4 v{L_T+j}, s[12:15], s21 offen offset:{j*1056} lds")
    a(f"s_add_u32 m0, s28, s22\ns_add_u32 s28, s28, {SLX}")
    for j in range(8):
        if j == 4: a(f"s_add_u32 m0, m0, 4096\ns_add_u32 s20, s20, {32*2048}")
        a(f"buffer_load_dwordx4 v{L_P+(j&3)}, s[8:11], s20 offen offset:{(j&3)*1024} lds")
    a(f"s_cmp_eq_u32 s28, {3*SLX}\ns_cselect_b32 s28, 0, s28")
    a("s_cmp_lt_u32 s25, 2\ns_cbranch_scc1 Lxl_loop")
    a("s_cmp_lt_u32 s25, 32")
    a("s_waitcnt vmcnt(12)\ns_barrier")
    a("s_cbranch_scc1 Lxl_loop")
    a("s_waitcnt vmcnt(0)\ns_barrier")
    stamp_out(a, True)
    a("s_endpgm")


def gen(opt):
    global OPT
    OPT = opt
    a = Asm()
    a(HDR.rstrip())
    a(f"; @launch grid=(256,1,1) block=(512,1,1) lds={LDS_BYTES}")
    a('.amdgcn_target "amdgcn-amd-amdhsa--gfx950"\n.text')
    a(f".globl {NAME}\n.p2align 8\n.type {NAME},@function\n{NAME}:")
    a("s_cmp_ge_u32 s2, 256\ns_cbranch_scc1 L_end")
    stamp(a, 0)
    a("s_load_dwordx16 s[36:51], s[0:1], 0")
    a(f"s_load_dwordx2 s[{sWS}:{sWS+1}], s[0:1], 64")
    a("v_lshrrev_b32 v1, 6, v0")
    a("v_and_b32 v0, 63, v0")
    a("v_readfirstlane_b32 s4, v1")
    a("s_and_b32 s28, s2, 7\ns_lshr_b32 s29, s2, 3")
    a("s_and_b32 s3, s4, 3")
    a("s_waitcnt lgkmcnt(0)")
    a(f"s_load_dword s{sNONCE}, s[{sWS}:{sWS+1}], {WS_FLAG + EPOCH}")
    srd(a, 56, sWS, SZ_FLAG, WS_FLAG)
    a("s_cmp_ge_u32 s29, 28\ns_cbranch_scc1 L_x")
    if OPT.get("map1", "2x4") == "2x4":
        a("s_and_b32 s32, s28, 1\ns_lshl_b32 s32, s32, 2\ns_and_b32 s33, s29, 3\ns_add_u32 s32, s32, s33")
        a("s_lshr_b32 s33, s28, 1\ns_mul_i32 s33, s33, 7\ns_lshr_b32 s34, s29, 2\ns_add_u32 s33, s33, s34")
    else:
        a("s_mul_i32 s33, s28, 28\ns_add_u32 s33, s33, s29\ns_and_b32 s32, s33, 7\ns_lshr_b32 s33, s33, 3")
    a("s_cmp_ge_u32 s4, 4\ns_cbranch_scc1 L_wl")
    nonce = f"s_waitcnt lgkmcnt(0)\ns_mul_i32 s{sNONCE}, s{sNONCE}, 1664525\ns_add_u32 s{sNONCE}, s{sNONCE}, 1013904223"
    b = Asm(); w_compute(b)
    a(b.text().replace("s_barrier", "s_barrier", 1).replace("s_waitcnt vmcnt(8)", nonce + "\ns_waitcnt vmcnt(8)", 1).rstrip())
    a("L_wl:")
    b = Asm(); w_loader(b)
    a(b.text().replace("s_waitcnt vmcnt(8)", nonce + "\ns_waitcnt vmcnt(8)", 1).rstrip())
    a("L_x:")
    a("s_sub_u32 s29, s29, 28")
    a("s_lshr_b32 s32, s28, 1\ns_lshl_b32 s32, s32, 1\ns_and_b32 s34, s29, 1\ns_add_u32 s32, s32, s34")
    a("s_and_b32 s33, s28, 1\ns_lshl_b32 s33, s33, 2\ns_and_b32 s35, s29, 2\ns_add_u32 s33, s33, s35")
    a("s_lshr_b32 s35, s35, 1\ns_add_u32 s35, s35, s34")
    a("s_cmp_ge_u32 s4, 4\ns_cbranch_scc1 L_xl")
    a(nonce)
    x_compute(a)
    a("L_xl:")
    x_loader(a)
    a("L_end:\ns_endpgm")
    a('.section .rodata,"a"\n.p2align 6')
    a(kd(NAME, 256, 256))
    return a.text()


if __name__ == "__main__":
    opt = dict(kv.split("=") for kv in sys.argv[2:])
    opt = {k: (int(v) if v.lstrip("-").isdigit() else v) for k, v in opt.items()}
    open(sys.argv[1], "w").write(gen(opt))
```

```python
import sys
from asm import Asm, kd

NAME = "standalone__weight_only_int_quip__prompt_kernel"
S, D, F = 2048, 1024, 3584
WS_FLAG = 0
FA1, FA2, FB, FX, EPOCH = 0, 64 << 10, 128 << 10, 192 << 10, 224 << 10
SZ_FLAG = 256 << 10
WS_WQ = 1 << 20
WS_XRF = 9 << 20
WS_WPF = 16 << 20
WS_STAMP = 64 << 20
SZ_W = D * F * 2
SZ_X = S * D * 2
SPIN_MAX = 1 << 15

HDR = """; Kernarg layout (72 bytes, ptrs only, base s[0:1]):
"""
sX, sQW, sSC, sZE, sU, sV, sOUT, sWS, sNONCE = 36, 38, 40, 42, 44, 46, 48, 30, 52

OPT = {}


def srd(a, d, b, nbytes, add=0):
    if add:
        a(f"s_add_u32 s{d}, s{b}, {add}")
        a(f"s_addc_u32 s{d+1}, s{b+1}, 0")
    else:
        a(f"s_mov_b32 s{d}, s{b}")
        a(f"s_mov_b32 s{d+1}, s{b+1}")
    a(f"s_mov_b32 s{d+2}, {nbytes}")
    a(f"s_mov_b32 s{d+3}, 0x20000")


def interleave(a, mf, others):
    for i, m in enumerate(mf):
        if isinstance(m, tuple):
            for p in m[0]:
                a(p)
            a(m[1])
        else:
            a(m)
        for o in others.get(i, []):
            a(o)


NSTAMP = 12
def stamp(a, idx):
    if not OPT.get("stamp"): return
    a(f"s_memrealtime s[{60+2*idx}:{61+2*idx}]")
    if idx == 0:
        a("s_memtime s[86:87]")
        for i in range(1, NSTAMP): a(f"s_mov_b32 s{60+2*i}, 0")


def stamp_out(a, loader):
    if not OPT.get("stamp"): return
    a("s_mov_b64 exec, -1\ns_waitcnt vmcnt(0)")
    a(f"s_memrealtime s[84:85]\ns_memtime s[88:89]\ns_waitcnt lgkmcnt(0)")
    a("s_sub_u32 s88, s88, s86")
    srd(a, 92, sWS, 1 << 20, WS_STAMP)
    a(f"s_lshl_b32 s90, s2, 3\ns_add_u32 s90, s90, s3\ns_add_u32 s90, s90, {4 if loader else 0}\ns_lshl_b32 s90, s90, 6")
    a("v_mov_b32 v0, 0")
    a("s_getreg_b32 s89, hwreg(HW_REG_XCC_ID)\ns_getreg_b32 s91, hwreg(HW_REG_HW_ID)")
    vals = [f"s{60+2*i}" for i in range(NSTAMP + 1)] + ["s88", "s89", "s91"]
    for i, v in enumerate(vals):
        a(f"v_mov_b32 v1, {v}\nbuffer_store_dword v1, v0, s[92:95], s90 offen offset:{4*i}")


def mfma(acc, A, B, zero=False):
    C = "0" if zero else f"v[{acc}:{acc+3}]"
    return f"v_mfma_f32_16x16x32_bf16 v[{acc}:{acc+3}], v[{A}:{A+3}], v[{B}:{B+3}], {C}"


def flag_store(a, soff, vt, lane16):
    for i in range(4): a(f"v_mov_b32 v{vt+i}, s{sNONCE}")
    a("s_mov_b64 exec, 0xff")
    a(f"buffer_store_dwordx4 v[{vt}:{vt+3}], v{lane16}, s[56:59], {soff} offen sc1")
    a("s_mov_b64 exec, -1")


def flag_load(a, soff, n, vidx, vt):
    a(f"v_mov_b32 v{vt}, s{sNONCE}\ns_mov_b64 exec, {hex((1 << n) - 1)}")
    a(f"buffer_load_dword v{vt}, v{vidx}, s[56:59], {soff} offen sc1")
    a("s_mov_b64 exec, -1")


def flag_poll(a, L, soff, n, vidx, vt, loaded=False):
    a(f"s_mov_b32 s53, {SPIN_MAX}")
    if loaded: a(f"s_branch {L}_c")
    a(f"{L}:")
    flag_load(a, soff, n, vidx, vt)
    a("s_sub_u32 s53, s53, 1\ns_cmp_eq_u32 s53, 0")
    a(f"s_cbranch_scc1 {L}_x")
    a("s_waitcnt vmcnt(0)")
    a(f"{L}_c:")
    a(f"v_cmp_ne_u32 vcc, s{sNONCE}, v{vt}")
    a(f"s_cbranch_vccnz {L}")
    a(f"{L}_x:")


def get_args(a):
    a("s_waitcnt lgkmcnt(0)")
    a(f"s_load_dword s{sNONCE}, s[{sWS}:{sWS+1}], {WS_FLAG + EPOCH}")


def get_nonce(a):
    srd(a, 56, sWS, SZ_FLAG, WS_FLAG)
    a(f"s_waitcnt lgkmcnt(0)\ns_mul_i32 s{sNONCE}, s{sNONCE}, 1664525\ns_add_u32 s{sNONCE}, s{sNONCE}, 1013904223")


def dq_loads(a, B):
    a(f"s_lshl_b32 s14, s32, 2\ns_add_u32 s14, s14, s3")
    a(f"s_mul_i32 s28, s14, {32*14336}\ns_lshl_b32 s29, s15, 8\ns_add_u32 s28, s28, s29")
    a("s_lshr_b32 s14, s14, 1\ns_mul_i32 s29, s14, 7168\ns_lshl_b32 s14, s15, 7\ns_add_u32 s29, s29, s14")
    a(f"v_lshrrev_b32 v{B}, 3, v0\nv_and_b32 v{B+5}, 7, v0")
    a(f"v_mul_u32_u24 v{B}, 14336, v{B}\nv_lshl_add_u32 v{B}, v{B+5}, 4, v{B}\nv_add_u32 v{B}, s28, v{B}")
    for rg in range(1, 4):
        a(f"v_add_u32 v{B+rg}, {rg*8*14336}, v{B}")
    a(f"v_lshl_add_u32 v{B+5}, v{B+5}, 3, s29\nv_lshlrev_b32 v{B+4}, 4, v0")


def dq_issue(a, B):
    nt = " nt" if OPT.get("dq_nt", 1) else ""
    for t in range(2):
        a(f"global_load_dwordx2 v[{B+8+2*t}:{B+9+2*t}], v{B+5}, s[{sSC}:{sSC+1}] offset:{64*t}")
        a(f"global_load_dwordx2 v[{B+12+2*t}:{B+13+2*t}], v{B+5}, s[{sZE}:{sZE+1}] offset:{64*t}")
    for rg in range(4):
        for t in range(2):
            r = B + 32 + rg * 8 + t * 4
            a(f"global_load_dwordx4 v[{r}:{r+3}], v{B+rg}, s[{sQW}:{sQW+1}] offset:{128*t}{nt}")


def dq_finish(a, B, hook=lambda rg: None, extra=0):
    a(f"s_mul_i32 s28, s32, 56\ns_add_u32 s28, s28, s15\ns_lshl_b32 s28, s28, 2\ns_add_u32 s28, s28, s3\ns_lshl_b32 s28, s28, 12")
    a(f"s_waitcnt vmcnt({8 + extra})")
    for j in range(4):
        a(f"v_lshlrev_b32 v{B+16+2*j}, 16, v{B+8+j}\nv_and_b32 v{B+17+2*j}, 0xffff0000, v{B+8+j}")
        a(f"v_lshlrev_b32 v{B+24+2*j}, 16, v{B+12+j}\nv_and_b32 v{B+25+2*j}, 0xffff0000, v{B+12+j}")
    for rg in range(4):
        a(f"s_waitcnt vmcnt({6 - 2*rg + rg + extra})")
        hook(rg)
        r = B + 32 + rg * 8
        for e in range(8):
            a(f"v_cvt_f32_i32 v{r+e}, v{r+e}")
        for e in range(8):
            a(f"v_sub_f32 v{r+e}, v{r+e}, v{B+24+e}")
        for p in range(4):
            a(f"v_cvt_pk_bf16_f32 v{B+8+p}, v{r+2*p}, v{r+2*p+1}")
        for p in range(4):
            a(f"v_lshlrev_b32 v{r+2*p}, 16, v{B+8+p}\nv_and_b32 v{r+2*p+1}, 0xffff0000, v{B+8+p}")
        for e in range(8):
            a(f"v_mul_f32 v{r+e}, v{r+e}, v{B+16+e}")
        for p in range(4):
            a(f"v_cvt_pk_bf16_f32 v{r+p}, v{r+2*p}, v{r+2*p+1}")
        a(f"buffer_store_dwordx4 v[{r}:{r+3}], v{B+4}, s[8:11], s28 offen offset:{rg*1024} sc1")


SL = 16384 + 16 * 1056
NSL = 4
SLX = 32768 + 16 * 1056
CQ0 = 3 * SL
SQ = 16 * 1040
LDS_CNT = max(NSL * SL, 3 * SLX, CQ0 + 3 * SQ)
LDS_BYTES = LDS_CNT + 16

B_FR = 64
B_PA = 128
B_TA = 132
V_L16 = 248
V_T = 240
RD_ORDER = [("P", 0, 0), ("T", 0, 0), ("T", 0, 1), ("T", 1, 0), ("T", 1, 1), ("P", 1, 0), ("T", 2, 0), ("T", 2, 1),
            ("P", 2, 0), ("T", 3, 0), ("T", 3, 1), ("P", 3, 0)]
MF_ORDER = [(0, 0), (0, 1), (1, 1), (1, 0), (1, 2), (0, 2), (2, 2), (2, 1), (2, 0), (2, 3), (1, 3), (0, 3), (3, 3), (3, 2), (3, 1), (3, 0)]


def b_reads(slot, ks, buf):
    out = []
    for kind, i, t in RD_ORDER:
        if kind == "P":
            r = B_FR + buf * 32 + i * 4
            out.append(f"ds_read_b128 v[{r}:{r+3}], v{B_PA + (slot//2)*2 + ks} offset:{(slot%2)*SL + i*2048}")
        else:
            r = B_FR + buf * 32 + 16 + i * 4 + t * 2
            out.append(f"ds_read_b64_tr_b16 v[{r}:{r+1}], v{B_TA + slot//2} offset:{(slot%2)*SL + 16384 + ks*8448 + t*512 + i*32}")
    return out


def b_mfmas(buf, waits):
    out = []
    for n, (rt, c) in enumerate(MF_ORDER):
        m = mfma((rt * 4 + c) * 4, B_FR + buf * 32 + rt * 4, B_FR + buf * 32 + 16 + c * 4)
        out.append(([f"s_waitcnt lgkmcnt({waits[n]})"], m) if n in waits else m)
    return out


def row_read_base(a, dst, t0, wshift):
    a(f"v_and_b32 v{t0}, 15, v0\nv_lshrrev_b32 v{t0+1}, 4, v0")
    a(f"v_lshrrev_b32 v{t0+2}, 1, v{t0}\nv_xor_b32 v{t0+2}, v{t0+2}, v{t0+1}\nv_lshlrev_b32 v{t0+2}, 4, v{t0+2}\nv_lshl_add_u32 v{t0+2}, v{t0}, 7, v{t0+2}")
    a(f"s_lshr_b32 s14, s3, 1\ns_lshl_b32 s14, s14, {wshift}\nv_add_u32 v{dst}, s14, v{t0+2}\nv_xor_b32 v{dst+1}, 64, v{dst}")


def tr_read_base(a, dst, t0):
    a(f"v_bfe_u32 v{t0}, v0, 2, 3\nv_mul_u32_u24 v{t0}, 1056, v{t0}\nv_lshrrev_b32 v{t0+1}, 5, v0\nv_lshl_add_u32 v{t0}, v{t0+1}, 8, v{t0}")
    a(f"v_and_b32 v{t0+1}, 3, v0\nv_lshl_add_u32 v{t0}, v{t0+1}, 3, v{t0}\ns_and_b32 s14, s3, 1\ns_lshl_b32 s14, s14, 7")
    a(f"v_add_u32 v{dst}, s14, v{t0}")


C_FR = 128
C_PA = 224
C_QA = 227
C_WA = 228
C_SA = 229


def c_reads(slot, ks, buf):
    P = [f"ds_read_b128 v[{C_FR+buf*48+rt*4}:{C_FR+buf*48+rt*4+3}], v{C_PA+slot} offset:{ks*16384 + rt*1024}" for rt in range(4)]
    Q = [f"ds_read_b128 v[{C_FR+buf*48+16+c*4}:{C_FR+buf*48+16+c*4+3}], v{C_QA} offset:{slot*SQ + ks*8320 + c*16}" for c in range(8)]
    return [P[0]] + Q + P[1:]


def c_mfmas(buf, zero=False):
    out = []
    for rt in range(4):
        for cc in range(8):
            c = cc if rt % 2 == 0 else 7 - cc
            out.append(mfma((rt * 8 + c) * 4, C_FR + buf * 48 + rt * 4, C_FR + buf * 48 + 16 + c * 4, zero))
    return out


def spread(rd, every=2):
    return {every * i: [r] for i, r in enumerate(rd)}


def w_compute(a):
    DQ = 144
    S1 = OPT.get("amode", 0) == 1
    a("s_lshl_b32 s15, s33, 1" if S1 else "s_add_u32 s15, s33, 28")
    dq_loads(a, DQ)
    a(f"v_mov_b32 v{V_T}, {LDS_CNT}\nv_mov_b32 v{V_T+1}, 0\nds_write_b32 v{V_T}, v{V_T+1}")
    get_args(a)
    if S1: dq_issue(a, DQ)
    srd(a, 8, sWS, SZ_W, WS_WQ)
    a(f"v_lshlrev_b32 v{V_L16}, 4, v0")
    row_read_base(a, B_PA, V_T, 13)
    a(f"v_add_u32 v{B_PA+2}, {2*SL}, v{B_PA}\nv_add_u32 v{B_PA+3}, {2*SL}, v{B_PA+1}")
    tr_read_base(a, B_TA, V_T)
    a(f"v_add_u32 v{B_TA+1}, {2*SL}, v{B_TA}")
    a(f"s_lshl_b32 s14, s3, 12\nv_add_u32 v{C_PA}, s14, v{V_L16}\nv_add_u32 v{C_PA+1}, {SL}, v{C_PA}\nv_add_u32 v{C_PA+2}, {2*SL}, v{C_PA}")
    a(f"v_bfe_u32 v{V_T}, v0, 1, 3\nv_mul_u32_u24 v{V_T}, 1040, v{V_T}\nv_lshrrev_b32 v{V_T+1}, 4, v0\nv_lshl_add_u32 v{V_T}, v{V_T+1}, 8, v{V_T}")
    a(f"v_and_b32 v{V_T+2}, 1, v0\nv_lshl_add_u32 v{V_T}, v{V_T+2}, 7, v{V_T}\nv_add_u32 v{C_QA}, {CQ0}, v{V_T}")
    a(f"s_lshr_b32 s14, s3, 1\ns_mul_i32 s14, s14, {SQ}\ns_and_b32 s34, s3, 1\ns_mul_i32 s34, s34, {4*1040}\ns_add_u32 s14, s14, s34\ns_add_u32 s14, s14, {CQ0}")
    a(f"v_add_u32 v{C_WA}, s14, v{V_L16}")
    a(f"v_mul_u32_u24 v{V_T+1}, {4*7168}, v{V_T+1}\nv_and_b32 v{V_T+2}, 15, v0\nv_lshl_add_u32 v{C_SA}, v{V_T+2}, 4, v{V_T+1}")
    for i in list(range(64)) + list(range(B_FR + 32, B_FR + 64)):
        a(f"v_mov_b32 v{i}, 0")
    if not S1:
        a("s_barrier")
        dq_issue(a, DQ)
    dq_finish(a, DQ)
    stamp(a, 1)
    get_nonce(a)
    if S1: a("s_waitcnt vmcnt(0)\ns_barrier")
    a(f"s_lshr_b32 s34, s3, 1\ns_lshl_b32 s24, s32, 1\ns_add_u32 s24, s24, s34\ns_mul_i32 s24, s24, {2*224*1024}")
    a("s_and_b32 s34, s3, 1\ns_lshl_b32 s35, s33, 1\ns_add_u32 s34, s34, s35\ns_lshl_b32 s34, s34, 12\ns_add_u32 s24, s24, s34")
    srd(a, 16, sWS, SZ_W, WS_WPF)
    a(f"s_lshl_b32 s25, s32, 2\ns_add_u32 s25, s25, s3")
    a(f"s_mov_b32 s23, {56 // NSL}")
    a("Lb_loop:")
    for s in range(NSL):
        a("s_barrier")
        if s == 0 and OPT.get("stamp"):
            a(f"s_cmp_lg_u32 s23, {56 // NSL}\ns_cbranch_scc1 Lb_ns")
            stamp(a, 2)
            a("Lb_ns:")
        rd = b_reads(s, 0, 0)
        interleave(a, b_mfmas(1, {}), {i: [rd[i]] for i in range(12)})
        rd = b_reads(s, 1, 1)
        oth = {i: [rd[i]] for i in range(12)}
        if s == NSL - 1:
            oth[13] = ["s_sub_u32 s23, s23, 1"]
            oth[14] = ["s_cmp_lg_u32 s23, 0"]
        interleave(a, b_mfmas(0, {0: 4, 6: 6}), oth)
        a("s_waitcnt vmcnt(0) lgkmcnt(0)" if s == NSL - 1 else "s_waitcnt lgkmcnt(0)")
    a("s_cbranch_scc1 Lb_loop")
    a("s_barrier")
    stamp(a, 3)
    interleave(a, b_mfmas(1, {}), {})
    a("s_nop 7")
    for f in range(8):
        pair, o = f >> 2, f & 3
        lo, hi = ((2 * pair) * 4 + o) * 4, ((2 * pair + 1) * 4 + o) * 4
        t = V_T + (f & 1) * 4
        a(f"v_cvt_pk_bf16_f32 v{t}, v{lo}, v{lo+1}\nv_cvt_pk_bf16_f32 v{t+1}, v{lo+2}, v{lo+3}")
        a(f"v_cvt_pk_bf16_f32 v{t+2}, v{hi}, v{hi+1}\nv_cvt_pk_bf16_f32 v{t+3}, v{hi+2}, v{hi+3}")
        a(f"buffer_store_dwordx4 v[{t}:{t+3}], v{V_L16}, s[16:19], s24 offen offset:{o*1024} sc1")
        a(f"ds_write_b128 v{C_WA}, v[{t}:{t+3}] offset:{pair*8320 + o*1040}")
        if f == 3:
            a(f"s_add_u32 s24, s24, {224*1024}")
    srd(a, 16, sOUT, S * F * 2)
    a(f"s_mul_i32 s24, s25, {64*7168}\ns_lshl_b32 s34, s33, 8\ns_add_u32 s24, s24, s34")
    a("s_waitcnt lgkmcnt(0)")
    stamp(a, 4)
    a("s_barrier")
    for r in c_reads(0, 0, 0):
        a(r)
    a("s_mov_b32 s23, 5")
    a("s_waitcnt lgkmcnt(0)")
    interleave(a, c_mfmas(0, zero=True), spread(c_reads(0, 1, 1)))
    a("s_waitcnt vmcnt(0) lgkmcnt(0)")
    stamp(a, 5)
    a("Lc_loop:")
    for s in (1, 2, 0):
        a("s_barrier")
        if s == 2 and OPT.get("stamp"):
            a(f"s_cmp_lg_u32 s23, 5\ns_cbranch_scc1 Lc_ns")
            stamp(a, 6)
            a("Lc_ns:")
        interleave(a, c_mfmas(1), spread(c_reads(s, 0, 0)))
        a("s_waitcnt lgkmcnt(0)")
        oth = spread(c_reads(s, 1, 1))
        if s == 0:
            oth[27] = ["s_sub_u32 s23, s23, 1"]
            oth[29] = ["s_cmp_lg_u32 s23, 0"]
        interleave(a, c_mfmas(0), oth)
        a("s_waitcnt lgkmcnt(0)")
    a("s_cbranch_scc1 Lc_loop")
    stamp(a, 7)
    ynt = {0: "", 1: " nt", 2: " sc1", 3: " sc0 sc1"}[OPT.get("y_nt", 0)]

    def row_out(rt, r):
        t = C_FR + ((rt * 4 + r) % 8) * 4
        o = []
        for p in range(4):
            o.append(f"v_cvt_pk_bf16_f32 v{t+p}, v{(rt*8+2*p)*4+r}, v{(rt*8+2*p+1)*4+r}")
        o.append(f"buffer_store_dwordx4 v[{t}:{t+3}], v{C_SA}, s[16:19], s24 offen{ynt}")
        o.append(f"s_add_u32 s24, s24, {7168 if r < 3 else 13*7168}")
        return o
    oth = {}
    for rt in range(2):
        for r in range(4):
            oth[16 + rt * 8 + 2 * r] = row_out(rt, r)
    interleave(a, c_mfmas(1), oth)
    for rt in range(2, 4):
        for r in range(4):
            a("\n".join(row_out(rt, r)))
    stamp(a, 8)
    a("s_or_b32 s14, s2, s3\ns_cmp_lg_u32 s14, 0\ns_cbranch_scc1 Lc_end")
    a(f"s_mov_b32 s14, {EPOCH}")
    flag_store(a, "s14", V_T, V_L16)
    a("Lc_end:")
    stamp_out(a, False)
    a("s_endpgm")


L_T = 68
L_P = 72
L_TP = 76
L_TT = 77
L_Q = 78
L_L16 = 82
L_FI = 83
L_TMP = 84
L_FL = 92


def rot_table(a, n, W, phi, psi, v):
    a(f"v_add_u32 v{v}, {psi}, v0\nv_add_u32 v{v+1}, {phi}, v{v}\nv_and_b32 v{v+1}, {W-1}, v{v+1}\nv_and_b32 v{v}, {(~(W-1)) & 0xff}, v{v}")
    a(f"v_subrev_u32 v{v}, {psi}, v{v}")
    if OPT.get("id0", 0):
        a(f"v_subrev_u32 v{v+2}, 1, v{v}\nv_cmp_ge_u32 vcc, {n-W-1}, v{v+2}")
    else:
        a(f"v_cmp_ge_u32 vcc, {n-W}, v{v}")
    a(f"v_add_u32 v{v}, v{v}, v{v+1}")
    a("s_nop 0")
    a(f"v_cndmask_b32 v{v}, v0, v{v}, vcc")


def t_voffs(a, t_row, natural):
    t = L_TMP
    a(f"v_lshrrev_b32 v{t}, 4, v0\nv_and_b32 v{t+1}, 1, v{t}\nv_lshrrev_b32 v{t}, 1, v{t}")
    if natural:
        a(f"v_lshlrev_b32 v{t+1}, 4, v{t+1}\nv_lshl_add_u32 v{t}, v{t}, 2, v{t+1}")
    else:
        a(f"v_lshlrev_b32 v{t+1}, 3, v{t+1}\nv_lshl_add_u32 v{t}, v{t}, 5, v{t+1}")
    a(f"v_mul_u32_u24 v{t}, {t_row}, v{t}\nv_and_b32 v{t+1}, 15, v0\nv_lshl_add_u32 v{L_T}, v{t+1}, 4, v{t}")
    for j in range(1, 4):
        a(f"v_add_u32 v{L_T+j}, {j*(t_row-1056)}, v{L_T}")


def p_voffs(a, p_row):
    t = L_TMP
    a(f"v_lshrrev_b32 v{t}, 3, v0\nv_mul_u32_u24 v{t}, {p_row}, v{t}\nv_lshrrev_b32 v{t+1}, 4, v0\nv_and_b32 v{t+2}, 7, v0\nv_xor_b32 v{t+1}, v{t+1}, v{t+2}")
    a(f"v_lshl_add_u32 v{L_P}, v{t+1}, 4, v{t}\nv_xor_b32 v{L_P+1}, 64, v{L_P}")
    d = 8 * p_row - 1024
    a(f"v_add_u32 v{L_P+2}, {2*d}, v{L_P}\nv_add_u32 v{L_P+3}, {3*d}, v{L_P+1}\nv_add_u32 v{L_P+1}, {d}, v{L_P+1}")


def w_loader(a):
    DQ = 4
    S1 = OPT.get("amode", 0) == 1
    a("s_lshl_b32 s15, s33, 1\ns_add_u32 s15, s15, 1" if S1 else "s_mov_b32 s15, s33")
    dq_loads(a, DQ)
    get_args(a)
    stamp(a, 8)
    dq_issue(a, DQ)
    ABAR = 99 if S1 else OPT.get("abar", -1)
    TE = OPT.get("tearly", 0)
    if ABAR == -1: a("s_barrier")
    srd(a, 8, sWS, SZ_W, WS_WQ)
    W = OPT.get("W", 4)
    a(f"s_mul_i32 s34, s32, {OPT.get('pm',1)}\ns_mul_i32 s35, s33, {OPT.get('pn',0)}\ns_add_u32 s34, s34, s35")
    a(f"s_mul_i32 s35, s33, {OPT.get('qn',1)}\ns_mul_i32 s14, s32, {OPT.get('qm',0)}\ns_add_u32 s35, s35, s14\ns_and_b32 s35, s35, {W-1}")
    t = L_TMP + 4
    rot_table(a, 56, W, "s34", "s35", t)
    a(f"s_mul_i32 s34, s32, {56*16384}\ns_lshl_b32 s22, s3, 12\ns_add_u32 s34, s34, s22")
    a(f"v_lshl_add_u32 v{L_TP}, v{t}, 14, s34")
    a("s_lshr_b32 s34, s3, 1\ns_lshl_b32 s34, s34, 4\ns_and_b32 s35, s3, 1\ns_lshl_b32 s35, s35, 2\ns_add_u32 s34, s34, s35")
    a("s_mul_i32 s34, s34, 7168\ns_lshl_b32 s35, s33, 8\ns_add_u32 s34, s34, s35")
    a(f"v_mul_u32_u24 v{t}, {64*7168}, v{t}\nv_add_u32 v{L_TT}, s34, v{t}")
    t_voffs(a, 7168, False)
    srd(a, 16, sV, F * F * 2)
    a("s_mul_i32 s29, s3, 4224\ns_add_u32 s29, s29, 16384")

    AUX = {0: "", 1: " sc1", 2: " sc0 sc1", 3: " sc0"}
    PAUX, TAUX = AUX[OPT.get("psc1", 1)], AUX[OPT.get("tsc1", 0)]
    def T(j): a(f"buffer_load_dwordx4 v{L_T+j}, s[16:19], s21 offen offset:{j*1056}{TAUX} lds")
    def P(j): a(f"buffer_load_dwordx4 v{L_P+j}, s[8:11], s20 offen offset:{j*1024}{PAUX} lds")
    def Tst(st):
        a(f"v_readlane_b32 s21, v{L_TT}, {st}\ns_add_u32 m0, s29, {st*SL}\ns_nop 3")
        for j in range(4): T(j)
    def Pst(st):
        a(f"v_readlane_b32 s20, v{L_TP}, {st}\ns_add_u32 m0, s22, {st*SL}\ns_nop 3")
        for j in range(4): P(j)
    for st in range(TE):
        Tst(st)
    if ABAR == -2: a("s_barrier")
    p_voffs(a, 128)
    a(f"v_lshlrev_b32 v{L_L16}, 4, v0\nv_lshlrev_b32 v{L_FI}, 8, v0")
    for j in range(4):
        a(f"v_add_u32 v{L_Q+j}, {64 - 16*j}, v{L_L16}")
    a("s_lshl_b32 s26, s32, 13\ns_lshl_b32 s27, s33, 8\ns_add_u32 s27, s27, s26")
    a(f"v_mov_b32 v{L_TMP+4}, {LDS_CNT}\nv_mov_b32 v{L_TMP+5}, 1")
    def hook(rg):
        if rg == 0: stamp(a, 9)
        if rg == 3: stamp(a, 10)
        if rg == ABAR: a("s_barrier")
    dq_finish(a, DQ, hook, 4 * TE)
    if ABAR == 4: a("s_barrier")
    stamp(a, 1)
    get_nonce(a)
    if S1:
        TM = OPT.get("tmid", 2)
        for st in range(TE, TM):
            Tst(st)
        a("s_cmp_lg_u32 s3, 0")
        a(f"s_waitcnt vmcnt({4*(TM-TE)})\ns_barrier")
        a("s_cbranch_scc1 Lw_nf")
        TE = TM
    else:
        a("s_waitcnt vmcnt(0)\ns_mov_b64 exec, 1")
        a(f"ds_add_rtn_u32 v{L_TMP+6}, v{L_TMP+4}, v{L_TMP+5}\ns_waitcnt lgkmcnt(0)\nv_readfirstlane_b32 s34, v{L_TMP+6}\ns_mov_b64 exec, -1")
        a("s_cmp_lg_u32 s34, 3\ns_cbranch_scc1 Lw_nf")
    flag_store(a, "s27", L_TMP, L_L16)
    a("Lw_nf:")
    stamp(a, 2)
    for st in range(TE, 3):
        Tst(st)
    a("s_waitcnt vmcnt(0)")
    stamp(a, 11)
    flag_poll(a, "Lw_pa1", "s26", 28, L_FI, L_FL)
    stamp(a, 3)
    Pst(0)
    Pst(1)
    a("s_waitcnt vmcnt(4)\ns_barrier")
    Pst(2)
    Tst(3)
    Pst(3)
    a(f"v_readlane_b32 s21, v{L_TT}, 4\ns_mov_b32 m0, s29\ns_mov_b32 s25, 4\ns_mov_b32 s28, 0")
    EV = [8, 14, 17, 44, 47]
    a(f"s_cmp_eq_u32 s3, 0\ns_cselect_b32 s54, {EV[3] if S1 else EV[0]}, 255")
    a("s_waitcnt vmcnt(12)\ns_barrier")
    a("s_branch Lw_go")
    a("Lw_loop:")
    P(3)
    a("s_add_u32 m0, s28, s29")
    a("s_waitcnt vmcnt(16)\ns_barrier")
    a("Lw_go:")
    T(0)
    a(f"v_readlane_b32 s20, v{L_TP}, s25\ns_add_u32 s25, s25, 1")
    T(1)
    a(f"s_add_u32 s34, s28, s22\ns_add_u32 s28, s28, {SL}")
    T(2)
    a(f"s_cmp_eq_u32 s28, {NSL*SL}\ns_cselect_b32 s28, 0, s28")
    T(3)
    a(f"s_mov_b32 m0, s34\nv_readlane_b32 s21, v{L_TT}, s25")
    P(0)
    a(f"s_cmp_eq_u32 s25, s54\ns_cbranch_scc1 Lw_ev")
    a("Lw_evdone:")
    P(1)
    a(f"s_cmp_lt_u32 s25, 56")
    P(2)
    a("s_cbranch_scc1 Lw_loop")
    P(3)
    stamp(a, 4)
    a(f"s_lshl_b32 s34, s32, 1\nv_add_u32 v{t}, s34, v0\nv_and_b32 v{t}, 15, v{t}")
    a(f"s_lshl_b32 s34, s32, 19\ns_lshl_b32 s22, s3, 13\ns_add_u32 s34, s34, s22\nv_lshl_add_u32 v{L_TP}, v{t}, 15, s34")
    a(f"s_lshr_b32 s34, s3, 1\ns_mul_i32 s34, s34, {224*1024}\ns_and_b32 s35, s3, 1\ns_lshl_b32 s14, s33, 1\ns_add_u32 s35, s35, s14\ns_lshl_b32 s35, s35, 12\ns_add_u32 s34, s34, s35")
    a(f"v_mul_u32_u24 v{t}, {2*224*1024}, v{t}\nv_add_u32 v{L_TT}, s34, v{t}")
    a(f"s_mul_i32 s29, s3, {4*1040}\ns_add_u32 s29, s29, {CQ0}")
    srd(a, 8, sWS, SZ_X, WS_XRF)
    srd(a, 16, sWS, SZ_W + 64, WS_WPF - 64)

    def PC(st, slot):
        a(f"v_readlane_b32 s20, v{L_TP}, {st}\ns_add_u32 m0, s22, {slot}\ns_nop 3")
        for j in range(8):
            if j == 4: a("s_add_u32 m0, m0, 4096\ns_add_u32 s20, s20, 4096")
            a(f"buffer_load_dwordx4 v{L_L16}, s[8:11], s20 offen offset:{(j&3)*1024} sc1 lds")
    def QC(st, slot):
        a(f"v_readlane_b32 s21, v{L_TT}, {st}\ns_add_u32 m0, s29, {slot}\ns_nop 3")
        for j in range(4):
            a(f"buffer_load_dwordx4 v{L_Q+j}, s[16:19], s21 offen offset:{j*1040} sc1 lds")
    a("s_waitcnt vmcnt(16)\ns_barrier")
    PC(0, 0)
    a("s_waitcnt vmcnt(16)\ns_barrier")
    PC(1, SL)
    a("s_waitcnt vmcnt(16)\ns_barrier")
    PC(2, 2 * SL)
    a("s_barrier")
    a(f"s_lshl_b32 s26, s33, 11\ns_add_u32 s26, s26, {FB}\ns_lshl_b32 s27, s32, 8\ns_add_u32 s27, s27, s26")
    a("s_waitcnt vmcnt(16)\ns_barrier")
    a("s_cmp_lg_u32 s3, 0")
    a("s_waitcnt vmcnt(8)\ns_barrier")
    a("s_cbranch_scc1 Lw_nfb")
    flag_store(a, "s27", L_TMP, L_L16)
    a("Lw_nfb:")
    stamp(a, 6)
    PC(3, 0)
    a(f"s_waitcnt vmcnt({OPT.get('fbw', 0)})")
    stamp(a, 5)
    flag_poll(a, "Lw_pb", "s26", 8, L_FI, L_FL)
    stamp(a, 7)
    QC(2, 2 * SQ)
    QC(3, 0)
    a(f"s_mov_b32 s25, 4\ns_mov_b32 s28, {SL}\ns_mov_b32 s27, {SQ}")
    a(f"s_lshl_b32 s26, s32, 11\ns_add_u32 s26, s26, {FX + 1024}")
    a("s_cmp_eq_u32 s3, 0\ns_cselect_b32 s54, 7, 255")
    a("s_waitcnt vmcnt(4)\ns_barrier")
    a("Lw_cloop:")
    a("s_cmp_lg_u32 s25, s54\ns_cbranch_scc1 Lw_c1")
    flag_load(a, "s26", 4, L_FI, L_FL)
    a("Lw_c1:")
    QC("s25", "s27")
    PC("s25", "s28")
    a(f"s_add_u32 s27, s27, {SQ}\ns_add_u32 s28, s28, {SL}\ns_cmp_eq_u32 s28, {3*SL}\ns_cselect_b32 s28, 0, s28\ns_cselect_b32 s27, 0, s27")
    a("s_cmp_lg_u32 s25, s54")
    a("s_waitcnt vmcnt(12)")
    a("s_cbranch_scc1 Lw_c2")
    flag_poll(a, "Lw_px2", "s26", 4, L_FI, L_FL, loaded=True)
    a("Lw_c2:")
    a("s_add_u32 s25, s25, 1\ns_cmp_lt_u32 s25, 16")
    a("s_barrier")
    a("s_cbranch_scc1 Lw_cloop")
    a("s_waitcnt vmcnt(0)\ns_barrier")
    stamp_out(a, True)
    a("s_endpgm")
    a("Lw_ev:")
    for i, e in enumerate(EV):
        nxt = EV[i + 1] if i + 1 < len(EV) else 255
        if i + 1 < len(EV): a(f"s_cmp_lg_u32 s25, {e}\ns_cbranch_scc1 Lw_ev{i+1}")
        if i == 0:
            a(f"s_add_u32 s27, s27, {FA2}\ns_add_u32 s26, s26, {FA2}")
            flag_store(a, "s27", L_TMP, L_L16)
        elif i == 1:
            flag_load(a, "s26", 28, L_FI, L_FL)
        elif i == 2:
            flag_poll(a, "Lw_pa2", "s26", 28, L_FI, L_FL, loaded=True)
        elif i == 3:
            a(f"s_lshl_b32 s26, s32, 11\ns_add_u32 s26, s26, {FX}")
            flag_load(a, "s26", 4, L_FI, L_FL)
        else:
            flag_poll(a, "Lw_px1", "s26", 4, L_FI, L_FL, loaded=True)
        a(f"s_mov_b32 s54, {nxt}\ns_branch Lw_evdone")
        if i + 1 < len(EV): a(f"Lw_ev{i+1}:")


X_FR = 128
X_A = 224


def x_reads(slot, ks, buf):
    P = [f"ds_read_b128 v[{X_FR+buf*48+rt*4}:{X_FR+buf*48+rt*4+3}], v{X_A+slot*3+ks} offset:{rt*2048}" for rt in range(8)]
    T = [f"ds_read_b64_tr_b16 v[{X_FR+buf*48+32+c*4+t*2}:{X_FR+buf*48+32+c*4+t*2+1}], v{X_A+slot*3+2} offset:{32768 + ks*8448 + t*512 + c*32}"
         for c in range(4) for t in range(2)]
    return T + P


def x_mfmas(buf, zero=False):
    out = []
    for rt in range(8):
        for cc in range(4):
            c = cc if rt % 2 == 0 else 3 - cc
            out.append(mfma((rt * 4 + c) * 4, X_FR + buf * 48 + 32 + c * 4, X_FR + buf * 48 + rt * 4, zero))
    return out


def x_spread(rd):
    return {(3 * i) // 2: [r] for i, r in enumerate(rd)}


def x_compute(a):
    a(f"v_lshlrev_b32 v{V_L16}, 4, v0")
    row_read_base(a, X_A, V_T, 14)
    tr_read_base(a, X_A + 2, V_T)
    for i in range(3, 9):
        a(f"v_add_u32 v{X_A+i}, {SLX}, v{X_A+i-3}")
    a("s_lshl_b32 s26, s32, 19\ns_lshl_b32 s34, s33, 1\ns_and_b32 s35, s3, 1\ns_add_u32 s34, s34, s35\ns_lshl_b32 s34, s34, 15\ns_add_u32 s26, s26, s34")
    a("s_lshr_b32 s35, s3, 1\ns_lshl_b32 s35, s35, 13\ns_add_u32 s26, s26, s35\ns_mov_b32 s24, s26")
    get_args(a)
    srd(a, 16, sWS, SZ_X, WS_XRF)
    get_nonce(a)
    a("s_mov_b32 s25, 2")
    a("Lx_tile:")
    a("s_barrier")
    for r in x_reads(0, 0, 0):
        a(r)
    a("s_mov_b32 s23, 5")
    a("s_waitcnt lgkmcnt(0)")
    interleave(a, x_mfmas(0, zero=True), x_spread(x_reads(0, 1, 1)))
    a("s_waitcnt vmcnt(0) lgkmcnt(0)")
    a("Lx_loop:")
    for s in (1, 2, 0):
        a("s_barrier")
        interleave(a, x_mfmas(1), x_spread(x_reads(s, 0, 0)))
        a("s_waitcnt lgkmcnt(0)")
        oth = x_spread(x_reads(s, 1, 1))
        if s == 0:
            oth[27] = ["s_sub_u32 s23, s23, 1"]
            oth[29] = ["s_cmp_lg_u32 s23, 0"]
        interleave(a, x_mfmas(0), oth)
        a("s_waitcnt lgkmcnt(0)")
    a("s_cbranch_scc1 Lx_loop")
    interleave(a, x_mfmas(1), {})
    stamp(a, 1)
    for i in range(3):
        a(f"v_mov_b32 v{V_T}, v{X_A+i}\nv_mov_b32 v{X_A+i}, v{X_A+3+i}\nv_mov_b32 v{X_A+3+i}, v{X_A+6+i}\nv_mov_b32 v{X_A+6+i}, v{V_T}")
    for f in range(16):
        pair, rt = f >> 3, f & 7
        lo = (rt * 4 + 2 * pair) * 4
        hi = lo + 4
        t = V_T + (f & 1) * 4
        a(f"v_cvt_pk_bf16_f32 v{t}, v{lo}, v{lo+1}\nv_cvt_pk_bf16_f32 v{t+1}, v{lo+2}, v{lo+3}")
        a(f"v_cvt_pk_bf16_f32 v{t+2}, v{hi}, v{hi+1}\nv_cvt_pk_bf16_f32 v{t+3}, v{hi+2}, v{hi+3}")
        a(f"buffer_store_dwordx4 v[{t}:{t+3}], v{V_L16}, s[16:19], s24 offen offset:{(rt&3)*1024} sc1")
        if rt == 3: a("s_add_u32 s24, s24, 4096")
        if rt == 7: a(f"s_add_u32 s24, s24, {16384-4096}" if pair == 0 else f"s_xor_b32 s24, s26, {4 << 16}")
    stamp(a, 2)
    a("s_sub_u32 s25, s25, 1\ns_cmp_lg_u32 s25, 0\ns_cbranch_scc1 Lx_tile")
    a("s_waitcnt vmcnt(0)\ns_barrier")
    a("s_cmp_lg_u32 s3, 0\ns_cbranch_scc1 Lx_end")
    a("s_add_u32 s27, s27, 1024")
    flag_store(a, "s27", V_T, V_L16)
    a("Lx_end:")
    stamp_out(a, False)
    a("s_endpgm")


def x_loader(a):
    t = L_TMP + 4
    W = OPT.get("xW", 4)
    XAUX = " sc1" if OPT.get("xsc1", 0) else ""
    a(f"v_and_b32 v{t+2}, 15, v0\nv_add_u32 v{t+1}, s35, v0\nv_and_b32 v{t+1}, {W-1}, v{t+1}\nv_and_b32 v{t}, {(~(W-1)) & 15}, v0\nv_add_u32 v{t}, v{t}, v{t+1}")
    a(f"v_add_u32 v{t}, s55, v{t}\nv_and_b32 v{t}, 15, v{t}")
    a(f"s_lshl_b32 s34, s32, 2\ns_add_u32 s34, s34, s3\ns_lshl_b32 s34, s34, 17\nv_lshl_add_u32 v{L_TP}, v{t}, 7, s34")
    a("s_lshr_b32 s34, s3, 1\ns_lshl_b32 s34, s34, 5\ns_and_b32 s14, s3, 1\ns_lshl_b32 s14, s14, 3\ns_add_u32 s34, s34, s14")
    a("s_lshl_b32 s34, s34, 11\ns_lshl_b32 s14, s33, 8\ns_add_u32 s34, s34, s14")
    a(f"v_lshl_add_u32 v{t}, v{t}, 17, s34\nv_and_b32 v{t+1}, 16, v0\nv_lshlrev_b32 v{t+1}, 6, v{t+1}\nv_xor_b32 v{L_TT}, v{t+1}, v{t}")
    t_voffs(a, 2048, True)
    p_voffs(a, 2048)
    a(f"v_lshlrev_b32 v{L_L16}, 4, v0")
    a("s_cmp_eq_u32 s3, 0\ns_cselect_b32 s54, 20, 255")
    get_args(a)
    srd(a, 8, sX, SZ_X)
    srd(a, 12, sU, D * D * 2)
    a("s_lshl_b32 s22, s3, 13\ns_mul_i32 s29, s3, 4224\ns_add_u32 s29, s29, 32768")
    a("s_mov_b32 s25, 0\ns_mov_b32 s28, 0")
    a("Lxl_loop:")
    a(f"v_readlane_b32 s21, v{L_TT}, s25\nv_readlane_b32 s20, v{L_TP}, s25\ns_add_u32 m0, s28, s29\ns_add_u32 s25, s25, 1\ns_nop 2")
    for j in range(4):
        a(f"buffer_load_dwordx4 v{L_T+j}, s[12:15], s21 offen offset:{j*1056}{XAUX} lds")
    a(f"s_add_u32 m0, s28, s22\ns_add_u32 s28, s28, {SLX}")
    for j in range(8):
        if j == 4: a(f"s_add_u32 m0, m0, 4096\ns_add_u32 s20, s20, {32*2048}")
        a(f"buffer_load_dwordx4 v{L_P+(j&3)}, s[8:11], s20 offen offset:{(j&3)*1024}{XAUX} lds")
    a(f"s_cmp_eq_u32 s28, {3*SLX}\ns_cselect_b32 s28, 0, s28")
    a("s_cmp_lt_u32 s25, 2\ns_cbranch_scc1 Lxl_loop")
    a("s_cmp_lg_u32 s25, s54\ns_cbranch_scc1 Lxl_nf")
    get_nonce(a)
    a("s_waitcnt vmcnt(12)")
    flag_store(a, "s27", L_TMP, L_L16)
    a("Lxl_nf:")
    a("s_cmp_lt_u32 s25, 32")
    a("s_waitcnt vmcnt(12)\ns_barrier")
    a("s_cbranch_scc1 Lxl_loop")
    a("s_waitcnt vmcnt(0)\ns_barrier")
    stamp_out(a, True)
    a("s_endpgm")


def gen(opt):
    global OPT
    OPT = opt
    a = Asm()
    a(HDR.rstrip())
    a(f"; @launch grid=(256,1,1) block=(512,1,1) lds={LDS_BYTES}")
    a('.amdgcn_target "amdgcn-amd-amdhsa--gfx950"\n.text')
    a(f".globl {NAME}\n.p2align 8\n.type {NAME},@function\n{NAME}:")
    a("s_cmp_ge_u32 s2, 256\ns_cbranch_scc1 L_end")
    stamp(a, 0)
    a("s_load_dwordx16 s[36:51], s[0:1], 0")
    a(f"s_load_dwordx2 s[{sWS}:{sWS+1}], s[0:1], 64")
    a("v_lshrrev_b32 v1, 6, v0")
    a("v_and_b32 v0, 63, v0")
    a("v_readfirstlane_b32 s4, v1")
    a("s_and_b32 s28, s2, 7\ns_lshr_b32 s29, s2, 3")
    a("s_and_b32 s3, s4, 3")
    a("s_cmp_ge_u32 s29, 28\ns_cbranch_scc1 L_x")
    if OPT.get("map1", "2x4") == "2x4":
        a("s_and_b32 s32, s28, 1\ns_lshl_b32 s32, s32, 2\ns_and_b32 s33, s29, 3\ns_add_u32 s32, s32, s33")
        a("s_lshr_b32 s33, s28, 1\ns_mul_i32 s33, s33, 7\ns_lshr_b32 s34, s29, 2\ns_add_u32 s33, s33, s34")
    else:
        a("s_mul_i32 s33, s28, 28\ns_add_u32 s33, s33, s29\ns_and_b32 s32, s33, 7\ns_lshr_b32 s33, s33, 3")
    a("s_cmp_lt_u32 s4, 4\ns_cbranch_scc1 L_wc")
    w_loader(a)
    a("L_wc:")
    w_compute(a)
    a("L_x:")
    a("s_sub_u32 s29, s29, 28\ns_mov_b32 s32, s28\ns_add_u32 s33, s28, s29\ns_and_b32 s33, s33, 7")
    a(f"s_lshl_b32 s27, s32, 3\ns_add_u32 s27, s27, s29\ns_lshl_b32 s27, s27, 8\ns_add_u32 s27, s27, {FX}")
    a(f"s_mul_i32 s35, s29, {OPT.get('xp', 1)}\ns_mul_i32 s55, s28, {OPT.get('xq', 2)}")
    a("s_cmp_ge_u32 s4, 4\ns_cbranch_scc1 L_xl")
    x_compute(a)
    a("L_xl:")
    x_loader(a)
    a("L_end:\ns_endpgm")
    a('.section .rodata,"a"\n.p2align 6')
    a(kd(NAME, 256, 256))
    return a.text()


if __name__ == "__main__":
    opt = dict(kv.split("=") for kv in sys.argv[2:])
    opt = {k: (int(v) if v.lstrip("-").isdigit() else v) for k, v in opt.items()}
    open(sys.argv[1], "w").write(gen(opt))
```

```python
import sys
from asm import Asm, kd

NAME = "standalone__weight_only_int_quip__prompt_kernel"
S, D, F = 2048, 1024, 3584
WS_FLAG = 0
FA, FX, FB, EPOCH, FA1 = 0, 128 << 10, 192 << 10, 252 << 10, 256 << 10
SZ_FLAG = 288 << 10
WS_WQ = 1 << 20
WS_XRF = 13 << 20
WS_WPF = 20 << 20
WS_STAMP = 64 << 20
SZ_W = D * F * 2
SZ_X = S * D * 2
SZ_WQ = 8 * 56 * 24576
SPIN_MAX = 1 << 15

HDR = """; Kernarg layout (72 bytes, ptrs only, base s[0:1]):
"""
sX, sQW, sSC, sZE, sU, sV, sOUT, sWS, sNONCE = 36, 38, 40, 42, 44, 46, 48, 30, 52

OPT = {}


def srd(a, d, b, nbytes, add=0):
    if add:
        a(f"s_add_u32 s{d}, s{b}, {add}")
        a(f"s_addc_u32 s{d+1}, s{b+1}, 0")
    else:
        a(f"s_mov_b32 s{d}, s{b}")
        a(f"s_mov_b32 s{d+1}, s{b+1}")
    a(f"s_mov_b32 s{d+2}, {nbytes}")
    a(f"s_mov_b32 s{d+3}, 0x20000")


def interleave(a, mf, others):
    for i, m in enumerate(mf):
        if isinstance(m, tuple):
            for p in m[0]:
                a(p)
            a(m[1])
        else:
            a(m)
        for o in others.get(i, []):
            a(o)


NSTAMP = 12
def stamp(a, idx):
    if not OPT.get("stamp"): return
    a(f"s_memrealtime s[{60+2*idx}:{61+2*idx}]")
    if idx == 0:
        a("s_memtime s[86:87]")
        for i in range(1, NSTAMP): a(f"s_mov_b32 s{60+2*i}, 0")


def stamp_out(a, loader):
    if not OPT.get("stamp"): return
    a("s_mov_b64 exec, -1\ns_waitcnt vmcnt(0)")
    a(f"s_memrealtime s[84:85]\ns_memtime s[88:89]\ns_waitcnt lgkmcnt(0)")
    a("s_sub_u32 s88, s88, s86")
    srd(a, 92, sWS, 1 << 20, WS_STAMP)
    a(f"s_lshl_b32 s90, s2, 3\ns_add_u32 s90, s90, s3\ns_add_u32 s90, s90, {4 if loader else 0}\ns_lshl_b32 s90, s90, 6")
    a("v_mov_b32 v0, 0")
    a("s_getreg_b32 s89, hwreg(HW_REG_XCC_ID)\ns_getreg_b32 s91, hwreg(HW_REG_HW_ID)")
    vals = [f"s{60+2*i}" for i in range(NSTAMP + 1)] + ["s88", "s89", "s91"]
    for i, v in enumerate(vals):
        a(f"v_mov_b32 v1, {v}\nbuffer_store_dword v1, v0, s[92:95], s90 offen offset:{4*i}")


def trace(a):
    if not OPT.get("trace"): return
    a("s_waitcnt lgkmcnt(0)\ns_mov_b32 m0, s25\nv_writelane_b32 v100, s96, m0\ns_memrealtime s[96:97]")


def trace_out(a):
    if not OPT.get("trace"): return
    srd(a, 92, sWS, 1 << 20, WS_STAMP + (1 << 20))
    a(f"s_lshl_b32 s90, s2, 2\ns_add_u32 s90, s90, s3\ns_lshl_b32 s90, s90, 8\nv_lshlrev_b32 v1, 2, v0")
    a("buffer_store_dword v100, v1, s[92:95], s90 offen")


def mfma(acc, A, B, zero=False):
    C = "0" if zero else f"v[{acc}:{acc+3}]"
    return f"v_mfma_f32_16x16x32_bf16 v[{acc}:{acc+3}], v[{A}:{A+3}], v[{B}:{B+3}], {C}"


def flag_store(a, soff, vt, lane16):
    for i in range(4): a(f"v_mov_b32 v{vt+i}, s{sNONCE}")
    a("s_mov_b64 exec, 0xff")
    a(f"buffer_store_dwordx4 v[{vt}:{vt+3}], v{lane16}, s[56:59], {soff} offen sc1")
    a("s_mov_b64 exec, -1")


def flag_load(a, soff, n, vidx, vt):
    a(f"s_mov_b64 exec, {hex((1 << n) - 1)}")
    a(f"buffer_load_dword v{vt}, v{vidx}, s[56:59], {soff} offen sc1")
    a("s_mov_b64 exec, -1")


def flag_poll(a, L, soff, n, vidx, vt, loaded=False):
    a(f"s_mov_b32 s53, {SPIN_MAX}")
    if loaded: a(f"s_branch {L}_c")
    a(f"{L}:")
    flag_load(a, soff, n, vidx, vt)
    a("s_sub_u32 s53, s53, 1\ns_cmp_eq_u32 s53, 0")
    a(f"s_cbranch_scc1 {L}_x")
    a("s_waitcnt vmcnt(0)")
    a(f"{L}_c:")
    a(f"v_cmp_ne_u32 vcc, s{sNONCE}, v{vt}")
    a(f"s_and_b32 vcc_lo, vcc_lo, {hex((1 << n) - 1)}")
    a(f"s_cbranch_scc1 {L}")
    a(f"{L}_x:")


def sflag_sample(a):
    a(f"s_add_u32 s12, s{sWS}, s26\ns_addc_u32 s13, s{sWS+1}, 0")
    for q in range(4):
        a(f"s_load_dword s{98+q}, s[12:13], {WS_FLAG + q*256}")


def sflag_check(a, L, vidx, vt):
    a("s_waitcnt lgkmcnt(0)")
    a(f"s_xor_b32 s14, s98, s{sNONCE}")
    for q in range(1, 4):
        a(f"s_xor_b32 s15, s{98+q}, s{sNONCE}\ns_or_b32 s14, s14, s15")
    a(f"s_cbranch_scc0 {L}_x")
    flag_poll(a, L, "s26", 4, vidx, vt)


def get_args(a):
    a("s_waitcnt lgkmcnt(0)")
    a(f"s_load_dword s{sNONCE}, s[{sWS}:{sWS+1}], {WS_FLAG + EPOCH}")


def get_nonce(a):
    srd(a, 56, sWS, SZ_FLAG, WS_FLAG)
    a(f"s_waitcnt lgkmcnt(0)\ns_mul_i32 s{sNONCE}, s{sNONCE}, 1664525\ns_add_u32 s{sNONCE}, s{sNONCE}, 1013904223")


def dq_addr(a, B, nrg, wreg, sout):
    sh = {2: 3, 4: 2}[nrg]
    a(f"s_lshl_b32 s14, s32, {sh}\ns_add_u32 s14, s14, {wreg}")
    a(f"s_mul_i32 s34, s14, {nrg*8*14336}\ns_lshl_b32 s35, s15, 8\ns_add_u32 s34, s34, s35")
    a(f"s_lshr_b32 s14, s14, {sh-1}\ns_mul_i32 s35, s14, 7168\ns_lshl_b32 s14, s15, 7\ns_add_u32 s35, s35, s14")
    a(f"v_lshrrev_b32 v{B}, 3, v0\nv_and_b32 v{B+5}, 7, v0")
    a(f"v_mul_u32_u24 v{B}, 14336, v{B}\nv_lshl_add_u32 v{B}, v{B+5}, 4, v{B}\nv_add_u32 v{B}, s34, v{B}")
    for rg in range(1, nrg):
        a(f"v_add_u32 v{B+rg}, {rg*8*14336}, v{B}")
    a(f"v_lshl_add_u32 v{B+5}, v{B+5}, 3, s35\nv_lshlrev_b32 v{B+4}, 4, v0")
    a(f"s_mul_i32 {sout}, s32, 56\ns_add_u32 {sout}, {sout}, s15\ns_lshl_b32 {sout}, {sout}, {sh}\ns_add_u32 {sout}, {sout}, {wreg}\ns_lshl_b32 {sout}, {sout}, {14-sh}")


def dq_issue(a, B, rgs, scales=True):
    nt = " nt" if OPT.get("dq_nt", 1) else ""
    if scales:
        for t in range(2):
            a(f"global_load_dwordx2 v[{B+8+2*t}:{B+9+2*t}], v{B+5}, s[{sSC}:{sSC+1}] offset:{64*t}")
            a(f"global_load_dwordx2 v[{B+12+2*t}:{B+13+2*t}], v{B+5}, s[{sZE}:{sZE+1}] offset:{64*t}")
    for rg in rgs:
        for t in range(2):
            r = B + 32 + rg * 8 + t * 4
            a(f"global_load_dwordx4 v[{r}:{r+3}], v{B+rg}, s[{sQW}:{sQW+1}] offset:{128*t}{nt}")


def dq_unpack(B):
    o = []
    for j in range(4):
        o += [f"v_lshlrev_b32 v{B+16+2*j}, 16, v{B+8+j}", f"v_and_b32 v{B+17+2*j}, 0xffff0000, v{B+8+j}"]
        o += [f"v_lshlrev_b32 v{B+24+2*j}, 16, v{B+12+j}", f"v_and_b32 v{B+25+2*j}, 0xffff0000, v{B+12+j}"]
    return o


def dq_rows(B, rg, sout, vaddr=None):
    r = B + 32 + rg * 8
    o = [f"v_cvt_f32_i32 v{r+e}, v{r+e}" for e in range(8)]
    o += [f"v_sub_f32 v{r+e}, v{r+e}, v{B+24+e}" for e in range(8)]
    o += [f"v_cvt_pk_bf16_f32 v{B+8+p}, v{r+2*p}, v{r+2*p+1}" for p in range(4)]
    for p in range(4):
        o += [f"v_lshlrev_b32 v{r+2*p}, 16, v{B+8+p}", f"v_and_b32 v{r+2*p+1}, 0xffff0000, v{B+8+p}"]
    o += [f"v_mul_f32 v{r+e}, v{r+e}, v{B+16+e}" for e in range(8)]
    o += [f"v_cvt_pk_bf16_f32 v{r+p}, v{r+2*p}, v{r+2*p+1}" for p in range(4)]
    o.append(f"buffer_store_dwordx4 v[{r}:{r+3}], v{vaddr or B+4}, s[8:11], {sout} offen offset:{rg*1024} sc1")
    return o


def dq_now(a, B, nrg, sout):
    a(f"s_waitcnt vmcnt({2*nrg})")
    a("\n".join(dq_unpack(B)))
    for rg in range(nrg):
        a(f"s_waitcnt vmcnt({2*nrg - 2 - 2*rg + rg})")
        a("\n".join(dq_rows(B, rg, sout)))


SL = 16384 + 16 * 1056
NSL = 4
CQ0 = 3 * SL
SQ = 16 * 1040
LDS_BYTES = max(NSL * SL, CQ0 + 3 * SQ)

B_FR = 64
B_PA = 128
B_TA = 132
V_L16 = 248
V_T = 240
RD_ORDER = [("P", 0, 0), ("T", 0, 0), ("T", 0, 1), ("T", 1, 0), ("T", 1, 1), ("P", 1, 0), ("T", 2, 0), ("T", 2, 1),
            ("P", 2, 0), ("T", 3, 0), ("T", 3, 1), ("P", 3, 0)]
MF_ORDER = [(0, 0), (0, 1), (1, 1), (1, 0), (1, 2), (0, 2), (2, 2), (2, 1), (2, 0), (2, 3), (1, 3), (0, 3), (3, 3), (3, 2), (3, 1), (3, 0)]


def b_reads(slot, ks, buf):
    out = []
    for kind, i, t in RD_ORDER:
        if kind == "P":
            r = B_FR + buf * 32 + i * 4
            out.append(f"ds_read_b128 v[{r}:{r+3}], v{B_PA + (slot//2)*2 + ks} offset:{(slot%2)*SL + i*2048}")
        else:
            r = B_FR + buf * 32 + 16 + i * 4 + t * 2
            out.append(f"ds_read_b64_tr_b16 v[{r}:{r+1}], v{B_TA + slot//2} offset:{(slot%2)*SL + 16384 + ks*8448 + t*512 + i*32}")
    return out


def b_mfmas(buf, waits):
    out = []
    for n, (rt, c) in enumerate(MF_ORDER):
        m = mfma((rt * 4 + c) * 4, B_FR + buf * 32 + rt * 4, B_FR + buf * 32 + 16 + c * 4)
        out.append(([f"s_waitcnt lgkmcnt({waits[n]})"], m) if n in waits else m)
    return out


def row_read_base(a, dst, t0, wshift):
    a(f"v_and_b32 v{t0}, 15, v0\nv_lshrrev_b32 v{t0+1}, 4, v0")
    a(f"v_lshrrev_b32 v{t0+2}, 1, v{t0}\nv_xor_b32 v{t0+2}, v{t0+2}, v{t0+1}\nv_lshlrev_b32 v{t0+2}, 4, v{t0+2}\nv_lshl_add_u32 v{t0+2}, v{t0}, 7, v{t0+2}")
    a(f"s_lshr_b32 s14, s3, 1\ns_lshl_b32 s14, s14, {wshift}\nv_add_u32 v{dst}, s14, v{t0+2}\nv_xor_b32 v{dst+1}, 64, v{dst}")


def tr_read_base(a, dst, t0):
    a(f"v_bfe_u32 v{t0}, v0, 2, 3\nv_mul_u32_u24 v{t0}, 1056, v{t0}\nv_lshrrev_b32 v{t0+1}, 5, v0\nv_lshl_add_u32 v{t0}, v{t0+1}, 8, v{t0}")
    a(f"v_and_b32 v{t0+1}, 3, v0\nv_lshl_add_u32 v{t0}, v{t0+1}, 3, v{t0}\ns_and_b32 s14, s3, 1\ns_lshl_b32 s14, s14, 7")
    a(f"v_add_u32 v{dst}, s14, v{t0}")


C_FR = 128
C_PA = 224
C_QA = 227
C_WA = 228
C_SA = 229


def c_reads(slot, ks, buf):
    P = [f"ds_read_b128 v[{C_FR+buf*48+rt*4}:{C_FR+buf*48+rt*4+3}], v{C_PA+slot} offset:{ks*16384 + rt*1024}" for rt in range(4)]
    Q = [f"ds_read_b128 v[{C_FR+buf*48+16+c*4}:{C_FR+buf*48+16+c*4+3}], v{C_QA} offset:{slot*SQ + ks*8320 + c*16}" for c in range(8)]
    return [P[0]] + Q + P[1:]


def c_mfmas(buf, zero=False):
    out = []
    for rt in range(4):
        for cc in range(8):
            c = cc if rt % 2 == 0 else 7 - cc
            out.append(mfma((rt * 8 + c) * 4, C_FR + buf * 48 + rt * 4, C_FR + buf * 48 + 16 + c * 4, zero))
    return out


def spread(rd, every=2):
    return {every * i: [r] for i, r in enumerate(rd)}


X_ACC = 136
X_FR = 168
X_PA = 216
X_TA = 220


def x_reads(slot, ks, buf):
    b = X_FR + buf * 24
    P = [f"ds_read_b128 v[{b+rt*4}:{b+rt*4+3}], v{X_PA + (slot//2)*2 + ks} offset:{(slot%2)*SL + rt*2048}" for rt in range(4)]
    T = [f"ds_read_b64_tr_b16 v[{b+16+c*4+t*2}:{b+16+c*4+t*2+1}], v{X_TA + slot//2} offset:{(slot%2)*SL + 16384 + ks*8448 + t*512 + c*32}"
         for c in range(2) for t in range(2)]
    return [T[0], T[1], P[0], T[2], T[3], P[1], P[2], P[3]]


def x_mfmas(buf, waits):
    b = X_FR + buf * 24
    out = []
    for n in range(8):
        rt, c = n >> 1, (n ^ (n >> 1)) & 1
        m = mfma(X_ACC + (rt * 2 + c) * 4, b + 16 + c * 4, b + rt * 4)
        out.append(([f"s_waitcnt lgkmcnt({waits[n]})"], m) if n in waits else m)
    return out


def x_epilogue(a):
    for rt in range(4):
        lo = X_ACC + rt * 8
        t = V_T + (rt & 1) * 4
        for p in range(4):
            a(f"v_cvt_pk_bf16_f32 v{t+p}, v{lo+2*p}, v{lo+2*p+1}")
        a(f"buffer_store_dwordx4 v[{t}:{t+3}], v{V_L16}, s[16:19], s24 offen offset:{rt*1024} sc1")


def own_fx(a):
    a(f"s_lshl_b32 s27, s6, 3\ns_add_u32 s27, s27, s7\ns_lshl_b32 s27, s27, 8\ns_add_u32 s27, s27, {FX}")


def compute(a):
    DQ = 64
    WSH = OPT.get("wsh", 2)
    if WSH == 4:
        a("s_and_b32 s15, s32, 4\ns_xor_b32 s15, s15, s54")
        dq_addr(a, DQ, 4, "s3", "s28")
    else:
        a("s_lshr_b32 s15, s54, 1\ns_and_b32 s29, s54, 1\ns_lshl_b32 s29, s29, 2\ns_add_u32 s29, s29, s3")
        dq_addr(a, DQ, 2, "s29", "s28")
    get_args(a)
    a("s_cmp_ge_u32 s54, 16\ns_cbranch_scc1 Lc_nodq0")
    dq_issue(a, DQ, range(WSH))
    a("Lc_nodq0:")
    srd(a, 8, sWS, SZ_WQ, WS_WQ)
    a(f"v_lshlrev_b32 v{V_L16}, 4, v0")
    row_read_base(a, B_PA, V_T, 13)
    a(f"v_mov_b32 v{X_PA}, v{V_T+2}\nv_xor_b32 v{X_PA+1}, 64, v{X_PA}")
    tr_read_base(a, B_TA, V_T)
    a(f"s_lshl_b32 s14, s3, 6\nv_add_u32 v{X_TA}, s14, v{V_T}")
    for r_ in (B_PA, X_PA):
        a(f"v_add_u32 v{r_+2}, {2*SL}, v{r_}\nv_add_u32 v{r_+3}, {2*SL}, v{r_+1}")
    for r_ in (B_TA, X_TA):
        a(f"v_add_u32 v{r_+1}, {2*SL}, v{r_}")
    a(f"s_lshl_b32 s14, s3, 12\nv_add_u32 v{C_PA}, s14, v{V_L16}\nv_add_u32 v{C_PA+1}, {SL}, v{C_PA}\nv_add_u32 v{C_PA+2}, {2*SL}, v{C_PA}")
    a(f"v_bfe_u32 v{V_T}, v0, 1, 3\nv_mul_u32_u24 v{V_T}, 1040, v{V_T}\nv_lshrrev_b32 v{V_T+1}, 4, v0\nv_lshl_add_u32 v{V_T}, v{V_T+1}, 8, v{V_T}")
    a(f"v_and_b32 v{V_T+2}, 1, v0\nv_lshl_add_u32 v{V_T}, v{V_T+2}, 7, v{V_T}\nv_add_u32 v{C_QA}, {CQ0}, v{V_T}")
    a(f"s_lshr_b32 s14, s3, 1\ns_mul_i32 s14, s14, {SQ}\ns_and_b32 s34, s3, 1\ns_mul_i32 s34, s34, {4*1040}\ns_add_u32 s14, s14, s34\ns_add_u32 s14, s14, {CQ0}")
    a(f"v_add_u32 v{C_WA}, s14, v{V_L16}")
    a(f"v_mul_u32_u24 v{V_T+1}, {4*7168}, v{V_T+1}\nv_and_b32 v{V_T+2}, 15, v0\nv_lshl_add_u32 v{C_SA}, v{V_T+2}, 4, v{V_T+1}")
    for i in list(range(64)) + list(range(X_ACC, X_ACC + 32)):
        a(f"v_mov_b32 v{i}, 0")
    a("s_lshr_b32 s24, s6, 2\ns_lshl_b32 s24, s24, 5\ns_lshl_b32 s34, s7, 2\ns_add_u32 s24, s24, s34\ns_add_u32 s24, s24, s3")
    a("s_lshl_b32 s24, s24, 2\ns_and_b32 s34, s6, 3\ns_add_u32 s24, s24, s34\ns_lshl_b32 s24, s24, 12")
    srd(a, 16, sWS, SZ_X, WS_XRF)
    get_nonce(a)
    a("s_cmp_ge_u32 s54, 16\ns_cbranch_scc1 Lc_nodq1")
    dq_now(a, DQ, WSH, "s28")
    a("Lc_nodq1:")
    stamp(a, 1)
    XW = {0: 5, 1: 4, 2: 4, 4: 5, 6: 6}
    a("s_mov_b32 s23, 4\ns_barrier")
    stamp(a, 9)
    for r in x_reads(0, 0, 0): a(r)
    a("s_branch Lx_mid")
    a("Lx_loop:")
    for s in range(NSL):
        a("s_barrier")
        interleave(a, x_mfmas(1, {}), spread(x_reads(s, 0, 0), 1))
        if s == 0: a("Lx_mid:")
        interleave(a, x_mfmas(0, XW), spread(x_reads(s, 1, 1), 1))
        if s == NSL - 1:
            a("s_sub_u32 s23, s23, 1\ns_cmp_lg_u32 s23, 0")
        a("s_waitcnt vmcnt(0) lgkmcnt(0)" if s == OPT.get("xack", 3) - 1 else "s_waitcnt lgkmcnt(0)")
    a("s_cbranch_scc1 Lx_loop")
    stamp(a, 10)
    a("s_cmp_lg_u32 s5, 0\ns_cbranch_scc1 Lc_h")
    a("s_barrier")
    stamp(a, 2)
    rd = b_reads(0, 0, 0)
    interleave(a, x_mfmas(1, {}), spread(rd[:8], 1))
    for r in rd[8:]: a(r)
    a(f"s_lshl_b32 s25, s32, 2\ns_add_u32 s25, s25, s3\ns_mov_b32 s23, {56 // NSL}\ns_nop 0")
    x_epilogue(a)
    a(f"s_lshr_b32 s34, s3, 1\ns_lshl_b32 s24, s32, 1\ns_add_u32 s24, s24, s34\ns_mul_i32 s24, s24, {2*224*1024}")
    a("s_and_b32 s34, s3, 1\ns_lshl_b32 s35, s33, 1\ns_add_u32 s34, s34, s35\ns_lshl_b32 s34, s34, 12\ns_add_u32 s24, s24, s34")
    srd(a, 16, sWS, SZ_W, WS_WPF)
    a("s_branch Lb_mid")
    a("Lb_loop:")
    for s in range(NSL):
        a("s_barrier")
        rd = b_reads(s, 0, 0)
        interleave(a, b_mfmas(1, {}), {i: [rd[i]] for i in range(12)})
        if s == 0: a("Lb_mid:")
        rd = b_reads(s, 1, 1)
        oth = {i: [rd[i]] for i in range(12)}
        if s == NSL - 1:
            oth[13] = ["s_sub_u32 s23, s23, 1"]
            oth[14] = ["s_cmp_lg_u32 s23, 0"]
        interleave(a, b_mfmas(0, {0: 4, 6: 6}), oth)
        a("s_waitcnt vmcnt(0) lgkmcnt(0)" if s == NSL - 1 else "s_waitcnt lgkmcnt(0)")
    a("s_cbranch_scc1 Lb_loop")
    a("s_barrier")
    stamp(a, 3)
    interleave(a, b_mfmas(1, {}), {})
    a("s_nop 7")
    for f in range(8):
        pair, o = f >> 2, f & 3
        lo, hi = ((2 * pair) * 4 + o) * 4, ((2 * pair + 1) * 4 + o) * 4
        t = V_T + (f & 1) * 4
        a(f"v_cvt_pk_bf16_f32 v{t}, v{lo}, v{lo+1}\nv_cvt_pk_bf16_f32 v{t+1}, v{lo+2}, v{lo+3}")
        a(f"v_cvt_pk_bf16_f32 v{t+2}, v{hi}, v{hi+1}\nv_cvt_pk_bf16_f32 v{t+3}, v{hi+2}, v{hi+3}")
        a(f"buffer_store_dwordx4 v[{t}:{t+3}], v{V_L16}, s[16:19], s24 offen offset:{o*1024} sc1")
        a(f"ds_write_b128 v{C_WA}, v[{t}:{t+3}] offset:{pair*8320 + o*1040}")
        if f == 3:
            a(f"s_add_u32 s24, s24, {224*1024}")
    srd(a, 16, sOUT, S * F * 2)
    a(f"s_mul_i32 s24, s25, {64*7168}\ns_lshl_b32 s34, s33, 8\ns_add_u32 s24, s24, s34")
    a("s_waitcnt lgkmcnt(0)")
    stamp(a, 4)
    a("s_barrier")
    for r in c_reads(0, 0, 0):
        a(r)
    a("s_mov_b32 s23, 5")
    a("s_waitcnt lgkmcnt(0)")
    interleave(a, c_mfmas(0, zero=True), spread(c_reads(0, 1, 1)))
    a("s_waitcnt vmcnt(0) lgkmcnt(0)")
    stamp(a, 5)
    a("Lc_loop:")
    for s in (1, 2, 0):
        a("s_barrier")
        if s == 2 and OPT.get("stamp"):
            a(f"s_cmp_lg_u32 s23, 5\ns_cbranch_scc1 Lc_ns")
            stamp(a, 6)
            a("Lc_ns:")
        interleave(a, c_mfmas(1), spread(c_reads(s, 0, 0)))
        a("s_waitcnt lgkmcnt(0)")
        oth = spread(c_reads(s, 1, 1))
        if s == 0:
            oth[27] = ["s_sub_u32 s23, s23, 1"]
            oth[29] = ["s_cmp_lg_u32 s23, 0"]
        interleave(a, c_mfmas(0), oth)
        a("s_waitcnt lgkmcnt(0)")
    a("s_cbranch_scc1 Lc_loop")
    stamp(a, 7)
    ynt = {0: "", 1: " nt", 2: " sc1", 3: " sc0 sc1"}[OPT.get("y_nt", 2)]

    def row_out(rt, r):
        t = C_FR + ((rt * 4 + r) % 8) * 4
        o = []
        for p in range(4):
            o.append(f"v_cvt_pk_bf16_f32 v{t+p}, v{(rt*8+2*p)*4+r}, v{(rt*8+2*p+1)*4+r}")
        o.append(f"buffer_store_dwordx4 v[{t}:{t+3}], v{C_SA}, s[16:19], s24 offen{ynt}")
        o.append(f"s_add_u32 s24, s24, {7168 if r < 3 else 13*7168}")
        return o
    oth = {}
    for rt in range(2):
        for r in range(4):
            oth[16 + rt * 8 + 2 * r] = row_out(rt, r)
    interleave(a, c_mfmas(1), oth)
    for rt in range(2, 4):
        for r in range(4):
            a("\n".join(row_out(rt, r)))
    stamp(a, 8)
    a("s_or_b32 s14, s2, s3\ns_cmp_lg_u32 s14, 0\ns_cbranch_scc1 Lc_end")
    a(f"s_mov_b32 s14, {EPOCH}")
    flag_store(a, "s14", V_T, V_L16)
    a("Lc_end:")
    stamp_out(a, False)
    a("s_endpgm")
    a("Lc_h:")
    interleave(a, x_mfmas(1, {}), {})
    a("s_nop 7")
    x_epilogue(a)
    a("s_waitcnt vmcnt(0)\ns_barrier")
    a("s_cmp_lg_u32 s3, 0\ns_cbranch_scc1 Lc_end")
    own_fx(a)
    flag_store(a, "s27", V_T, V_L16)
    a("s_branch Lc_end")


L_T = 68
L_P = 72
L_TP = 76
L_TT = 77
L_Q = 78
L_L16 = 82
L_FI = 83
L_TMP = 84
L_FL = 92


def rot_table(a, n, W, phi, psi, v, pw=0):
    lg = W.bit_length() - 1
    wmin = OPT.get("wmin", 1)
    a(f"s_add_u32 s14, {psi}, {n - wmin}\ns_lshr_b32 s14, s14, {lg}")
    a(f"v_add_u32 v{v+3}, {psi}, v0\nv_lshrrev_b32 v{v+3}, {lg}, v{v+3}\nv_min_u32 v{v+3}, s14, v{v+3}")
    a(f"v_cmp_eq_u32 vcc, s14, v{v+3}")
    a(f"v_lshlrev_b32 v{v}, {lg}, v{v+3}\nv_subrev_u32 v{v}, {psi}, v{v}")
    a(f"v_add_u32 v{v+1}, {W}, v{v}\nv_mov_b32 v{v+2}, {n}\nv_cndmask_b32 v{v+1}, v{v+1}, v{v+2}, vcc")
    a(f"v_max_i32 v{v}, 0, v{v}\nv_sub_u32 v{v+1}, v{v+1}, v{v}")
    a(f"v_mul_u32_u24 v{v+3}, {pw}, v{v+3}")
    a(f"v_add_u32 v{v+3}, {phi}, v{v+3}\nv_and_b32 v{v+3}, {W-1}, v{v+3}\nv_sub_u32 v{v+2}, v0, v{v}\nv_add_u32 v{v+2}, v{v+3}, v{v+2}")
    for i in range(W - 1):
        a(f"v_sub_u32 v{v+3}, v{v+2}, v{v+1}\nv_min_u32 v{v+2}, v{v+2}, v{v+3}")
    a(f"v_add_u32 v{v}, v{v}, v{v+2}")


def t_voffs(a, t_row, natural, L_T=L_T):
    t = L_TMP
    a(f"v_lshrrev_b32 v{t}, 4, v0\nv_and_b32 v{t+1}, 1, v{t}\nv_lshrrev_b32 v{t}, 1, v{t}")
    if natural:
        a(f"v_lshlrev_b32 v{t+1}, 4, v{t+1}\nv_lshl_add_u32 v{t}, v{t}, 2, v{t+1}")
    else:
        a(f"v_lshlrev_b32 v{t+1}, 3, v{t+1}\nv_lshl_add_u32 v{t}, v{t}, 5, v{t+1}")
    a(f"v_mul_u32_u24 v{t}, {t_row}, v{t}\nv_and_b32 v{t+1}, 15, v0\nv_lshl_add_u32 v{L_T}, v{t+1}, 4, v{t}")
    for j in range(1, 4):
        a(f"v_add_u32 v{L_T+j}, {j*(t_row-1056)}, v{L_T}")


def p_voffs(a, p_row, L_P=L_P):
    t = L_TMP
    a(f"v_lshrrev_b32 v{t}, 3, v0\nv_mul_u32_u24 v{t}, {p_row}, v{t}\nv_lshrrev_b32 v{t+1}, 4, v0\nv_and_b32 v{t+2}, 7, v0\nv_xor_b32 v{t+1}, v{t+1}, v{t+2}")
    a(f"v_lshl_add_u32 v{L_P}, v{t+1}, 4, v{t}\nv_xor_b32 v{L_P+1}, 64, v{L_P}")
    d = 8 * p_row - 1024
    a(f"v_add_u32 v{L_P+2}, {2*d}, v{L_P}\nv_add_u32 v{L_P+3}, {3*d}, v{L_P+1}\nv_add_u32 v{L_P+1}, {d}, v{L_P+1}")


def skip1_adj(a, v):
    a(f"v_lshrrev_b32 v{v+1}, 4, v0\nv_min_u32 v{v}, 1, v{v+1}\nv_lshlrev_b32 v{v}, 8, v{v}")
    a(f"v_add_u32 v{v+1}, 9, v{v+1}\nv_lshrrev_b32 v{v+1}, 2, v{v+1}\nv_lshlrev_b32 v{v+1}, 8, v{v+1}")


def loader(a):
    t = L_TMP + 4
    XT, XP, XTP, XTT = 4, 8, 12, 13
    xW = OPT.get("xW", 4)
    a(f"s_and_b32 s34, s29, 7\ns_lshr_b32 s35, s29, 3\ns_mul_i32 s14, s34, {OPT.get('xqm',1)}\ns_mul_i32 s15, s35, {OPT.get('xqe',1)}\ns_add_u32 s15, s15, s14\ns_and_b32 s15, s15, {xW-1}")
    a(f"s_mul_i32 s34, s34, {OPT.get('xpm',0)}\ns_mul_i32 s35, s35, {OPT.get('xpe',0)}\ns_add_u32 s34, s34, s35\ns_add_u32 s34, s34, {OPT.get('xp0',xW-1)}")
    rot_table(a, 16, xW, "s34", "s15", t)
    a(f"s_mul_i32 s34, s28, {OPT.get('xs',4)}\nv_add_u32 v{t}, s34, v{t}\nv_and_b32 v{t}, 15, v{t}")
    a(f"s_lshl_b32 s34, s6, 2\ns_add_u32 s34, s34, s3\ns_lshl_b32 s34, s34, 15\nv_lshl_add_u32 v{XTP}, v{t}, 7, s34")
    a("s_lshr_b32 s34, s3, 1\ns_lshl_b32 s34, s34, 5\ns_and_b32 s14, s3, 1\ns_lshl_b32 s14, s14, 3\ns_add_u32 s34, s34, s14")
    a(f"s_lshl_b32 s34, s34, 11\ns_lshl_b32 s14, s7, 8\ns_add_u32 s34, s34, s14\nv_lshl_add_u32 v{XTT}, v{t}, 17, s34")
    t_voffs(a, 2048, True, XT)
    p_voffs(a, 2048, XP)
    a("s_lshl_b32 s22, s3, 11\ns_mul_i32 s29, s3, 4224\ns_add_u32 s29, s29, 16384")
    a(f"v_readlane_b32 s21, v{XTT}, 0\ns_mov_b32 m0, s29\ns_mov_b32 s25, 0\ns_mov_b32 s28, 0\ns_mov_b32 s55, 0")
    get_args(a)
    stamp(a, 8)
    if OPT.get("trace"): a("v_mov_b32 v100, 0\ns_mov_b32 s96, 0")
    srd(a, 8, sX, SZ_X)
    srd(a, 16, sU, D * D * 2)
    def XTl(j): a(f"buffer_load_dwordx4 v{XT+j}, s[16:19], s21 offen offset:{j*1056} lds")
    def XPl(j): a(f"buffer_load_dwordx4 v{XP+j}, s[8:11], s20 offen offset:{j*1024} lds")
    def xbody(n):
        XTl(0)
        a(f"v_readlane_b32 s20, v{XTP}, s25\ns_add_u32 s25, s25, 1")
        XTl(1)
        a(f"s_add_u32 s34, s28, s22\ns_add_u32 s28, s28, {SL}")
        XTl(2)
        a(f"s_cmp_eq_u32 s28, {NSL*SL}\ns_cselect_b32 s28, 0, s28")
        XTl(3)
        a(f"s_mov_b32 m0, s34\nv_readlane_b32 s21, v{XTT}, s25\ns_add_u32 s34, s28, s29\ns_cmp_lt_u32 s25, {n}")
        XPl(0)
    def x0():
        W = OPT.get("W", 4)
        a(f"s_mul_i32 s34, s32, {OPT.get('pm',0)}\ns_mul_i32 s35, s33, {OPT.get('pn',0)}\ns_add_u32 s34, s34, s35\ns_add_u32 s34, s34, {OPT.get('p0',3)}")
        a(f"s_mul_i32 s35, s33, {OPT.get('qn',1)}\ns_mul_i32 s14, s32, {OPT.get('qm',1)}\ns_add_u32 s35, s35, s14\ns_and_b32 s35, s35, {W-1}")
        rot_table(a, 56, W, "s34", "s35", t, OPT.get("pw", 0))
        a(f"s_and_b32 s34, s32, 4\nv_xor_b32 v{t}, s34, v{t}")
        CS = 24576 if OPT.get("skip1") else 16384
        a(f"s_mul_i32 s34, s32, {56*CS}\ns_mul_i32 s35, s3, {CS//4}\ns_add_u32 s34, s34, s35")
        a(f"v_mul_u32_u24 v{L_TP}, {CS}, v{t}\nv_add_u32 v{L_TP}, s34, v{L_TP}")
        a("s_lshr_b32 s34, s3, 1\ns_lshl_b32 s34, s34, 4\ns_and_b32 s35, s3, 1\ns_lshl_b32 s35, s35, 2\ns_add_u32 s34, s34, s35")
        a("s_mul_i32 s34, s34, 7168\ns_lshl_b32 s35, s33, 8\ns_add_u32 s34, s34, s35")
        a(f"v_mul_u32_u24 v{t}, {64*7168}, v{t}\nv_add_u32 v{L_TT}, s34, v{t}")
        t_voffs(a, 7168, False)
        p_voffs(a, 128)
        if OPT.get("skip1"):
            skip1_adj(a, L_TMP)
            a(f"v_add_u32 v{L_P}, v{L_P}, v{L_TMP}\nv_add_u32 v{L_P+1}, v{L_P+1}, v{L_TMP+1}")
            a(f"v_add_u32 v{L_P+2}, 1024, v{L_P}\nv_add_u32 v{L_P+3}, 1024, v{L_P+1}")
        a(f"v_lshlrev_b32 v{L_L16}, 4, v0\nv_lshlrev_b32 v{L_FI}, 8, v0")
        for j in range(4):
            a(f"v_add_u32 v{L_Q+j}, {64 - 16*j}, v{L_L16}")
        a(f"s_lshl_b32 s26, s32, 12\ns_add_u32 s26, s26, {FA1}\ns_lshl_b32 s27, s54, 8\ns_add_u32 s27, s27, s26")
        get_nonce(a)
        a(f"s_cmp_lt_u32 s54, 16\ns_cselect_b32 s54, {OPT.get('xack', 3) + 4}, 255\ns_cmp_eq_u32 s3, 1\ns_cselect_b32 s54, s54, 255\ns_cselect_b32 s55, 2, 0")
        a(f"s_or_b32 s14, s3, s5\ns_cmp_eq_u32 s14, 0\ns_cselect_b32 s54, 12, s54")
    a("Lxl_pro:")
    xbody(3)
    XPl(1)
    a("s_mov_b32 m0, s34\ns_cbranch_scc1 Lxl_pro")
    x0()
    a("s_branch Lxl_evdone")
    a("Lxl_loop:")
    XPl(1)
    a("s_mov_b32 m0, s34")
    a("s_cmp_eq_u32 s25, s54\ns_cbranch_scc1 Lxl_ev")
    a("Lxl_evdone:")
    a("s_waitcnt vmcnt(12)\ns_barrier")
    xbody(16)
    a("s_cbranch_scc1 Lxl_loop")
    XPl(1)
    stamp(a, 1)
    a("s_cmp_lg_u32 s5, 0\ns_cbranch_scc1 Ll_h")
    srd(a, 8, sWS, SZ_WQ, WS_WQ)
    srd(a, 16, sV, F * F * 2)
    a("s_lshl_b32 s22, s3, 12")

    AUX = {0: "", 1: " sc1", 2: " sc0 sc1", 3: " sc0"}
    PAUX, TAUX = AUX[OPT.get("psc1", 1)], AUX[OPT.get("tsc1", 0)]
    def T(j): a(f"buffer_load_dwordx4 v{L_T+j}, s[16:19], s21 offen offset:{j*1056}{TAUX} lds")
    def P(j): a(f"buffer_load_dwordx4 v{L_P+j}, s[8:11], s20 offen offset:{j*1024}{PAUX} lds")
    a(f"v_readlane_b32 s21, v{L_TT}, 0\nv_readlane_b32 s20, v{L_TP}, 0\ns_mov_b32 m0, s29")
    WSH = OPT.get("wsh", 2)
    a(f"s_mul_i32 s26, s32, {14*1024}\ns_add_u32 s26, s26, {FA + (WSH - 1) * 1024}")
    a(f"s_cmp_eq_u32 s3, 0\ns_cselect_b32 s54, {4*WSH - 4}, 255\ns_cmp_eq_u32 s3, 1\ns_cselect_b32 s54, 8, s54\ns_mov_b32 s55, 0")
    a("s_waitcnt vmcnt(12)\ns_barrier")
    for j in range(4): T(j)
    a(f"s_mov_b32 m0, s22\nv_readlane_b32 s21, v{L_TT}, 1")
    for j in range(4): P(j)
    a(f"s_add_u32 m0, s29, {SL}\ns_mov_b32 s25, 1\ns_mov_b32 s28, {SL}")
    a("s_waitcnt vmcnt(14)\ns_barrier")
    a("s_branch Lw_go")

    def head():
        P(3)
        trace(a)
        a("s_add_u32 m0, s28, s29")
        a("s_waitcnt vmcnt(16)\ns_barrier")
    def first():
        T(0)
        a(f"v_readlane_b32 s20, v{L_TP}, s25\ns_add_u32 s25, s25, 1")
    def rest(fill=()):
        n = (len(fill) + 6) // 7
        g = ["\n".join(fill[i*n:(i+1)*n]) for i in range(7)]
        def gap(i):
            if g[i]: a(g[i])
        gap(0)
        T(1)
        a(f"s_add_u32 s34, s28, s22\ns_add_u32 s28, s28, {SL}")
        gap(1)
        T(2)
        a(f"s_cmp_eq_u32 s28, {NSL*SL}\ns_cselect_b32 s28, 0, s28")
        gap(2)
        T(3)
        a(f"s_mov_b32 m0, s34\nv_readlane_b32 s21, v{L_TT}, s25")
        gap(3)
        P(0)
        gap(4)
        P(1)
        gap(5)
        a(f"s_cmp_lt_u32 s25, 56")
        P(2)
        gap(6)
    a("Lw_loop:")
    head()
    a("Lw_go:")
    first()
    a(f"s_cmp_eq_u32 s25, s54\ns_cbranch_scc1 Lw_ev")
    a("Lw_evdone:")
    rest()
    a("s_cbranch_scc1 Lw_loop")
    P(3)
    stamp(a, 4)
    a(f"s_lshl_b32 s34, s32, 1\nv_add_u32 v{t}, s34, v0\nv_and_b32 v{t}, 15, v{t}")
    a(f"s_lshl_b32 s34, s32, 19\ns_lshl_b32 s22, s3, 13\ns_add_u32 s34, s34, s22\nv_lshl_add_u32 v{L_TP}, v{t}, 15, s34")
    a(f"s_lshr_b32 s34, s3, 1\ns_mul_i32 s34, s34, {224*1024}\ns_and_b32 s35, s3, 1\ns_lshl_b32 s14, s33, 1\ns_add_u32 s35, s35, s14\ns_lshl_b32 s35, s35, 12\ns_add_u32 s34, s34, s35")
    a(f"v_mul_u32_u24 v{t}, {2*224*1024}, v{t}\nv_add_u32 v{L_TT}, s34, v{t}")
    a(f"s_mul_i32 s29, s3, {4*1040}\ns_add_u32 s29, s29, {CQ0}")
    srd(a, 8, sWS, SZ_X, WS_XRF)
    srd(a, 16, sWS, SZ_W + 64, WS_WPF - 64)

    def PC(st, slot):
        a(f"v_readlane_b32 s20, v{L_TP}, {st}\ns_add_u32 m0, s22, {slot}\ns_nop 3")
        for j in range(8):
            if j == 4: a("s_add_u32 m0, m0, 4096\ns_add_u32 s20, s20, 4096")
            a(f"buffer_load_dwordx4 v{L_L16}, s[8:11], s20 offen offset:{(j&3)*1024} sc1 lds")
    def QC(st, slot):
        a(f"v_readlane_b32 s21, v{L_TT}, {st}\ns_add_u32 m0, s29, {slot}\ns_nop 3")
        for j in range(4):
            a(f"buffer_load_dwordx4 v{L_Q+j}, s[16:19], s21 offen offset:{j*1040} sc1 lds")
    a("s_waitcnt vmcnt(16)\ns_barrier")
    PC(0, 0)
    a("s_waitcnt vmcnt(16)\ns_barrier")
    PC(1, SL)
    a("s_waitcnt vmcnt(16)\ns_barrier")
    PC(2, 2 * SL)
    a("s_barrier")
    a(f"s_lshl_b32 s26, s33, 11\ns_add_u32 s26, s26, {FB}\ns_lshl_b32 s27, s32, 8\ns_add_u32 s27, s27, s26")
    a("s_waitcnt vmcnt(16)\ns_barrier")
    a("s_cmp_lg_u32 s3, 0")
    a("s_waitcnt vmcnt(8)\ns_barrier")
    a("s_cbranch_scc1 Lw_nfb")
    flag_store(a, "s27", L_TMP, L_L16)
    a("Lw_nfb:")
    stamp(a, 6)
    PC(3, 0)
    a(f"s_waitcnt vmcnt({OPT.get('fbw', 0)})")
    stamp(a, 5)
    flag_poll(a, "Lw_pb", "s26", 8, L_FI, L_FL)
    stamp(a, 7)
    QC(2, 2 * SQ)
    QC(3, 0)
    a(f"s_mov_b32 s25, 4\ns_mov_b32 s28, {SL}\ns_mov_b32 s27, {SQ}")
    a("s_waitcnt vmcnt(4)\ns_barrier")
    a("Lw_cloop:")
    QC("s25", "s27")
    PC("s25", "s28")
    a(f"s_add_u32 s27, s27, {SQ}\ns_add_u32 s28, s28, {SL}\ns_cmp_eq_u32 s28, {3*SL}\ns_cselect_b32 s28, 0, s28\ns_cselect_b32 s27, 0, s27")
    a("s_add_u32 s25, s25, 1\ns_cmp_lt_u32 s25, 16")
    a("s_waitcnt vmcnt(12)\ns_barrier")
    a("s_cbranch_scc1 Lw_cloop")
    a("s_waitcnt vmcnt(0)\ns_barrier")
    trace_out(a)
    stamp_out(a, True)
    a("s_endpgm")
    def events(L, done, evs):
        a(f"{L}:")
        for i, ev in enumerate(evs):
            if i + 1 < len(evs): a(f"s_cmp_lg_u32 s55, {i}\ns_cbranch_scc1 {L}{i+1}")
            a(f"s_mov_b32 s55, {i+1}")
            ev()
            a(f"s_branch {done}")
            if i + 1 < len(evs): a(f"{L}{i+1}:")

    a("Lw_ev:")
    a("s_cmp_lg_u32 s3, 0\ns_cbranch_scc1 Lw_evx")
    a("s_bitcmp1_b32 s25, 0\ns_cbranch_scc1 Lw_evc")
    a("s_add_u32 s26, s26, 2048\ns_add_u32 s54, s54, 1")
    sflag_sample(a)
    a("s_branch Lw_evdone")
    a("Lw_evc:")
    sflag_check(a, "Lw_pa", L_FI, L_FL)
    a("s_add_u32 s54, s54, 7\ns_cmp_gt_u32 s54, 48\ns_cselect_b32 s54, 255, s54")
    a("s_branch Lw_evdone")
    def b0():
        own_fx(a)
        flag_store(a, "s27", L_TMP, L_L16)
        a("s_mov_b32 s54, 52")
    def b1():
        a(f"s_lshl_b32 s26, s32, 13\ns_add_u32 s26, s26, {FX}\ns_mov_b32 s54, 55")
        flag_load(a, "s26", 32, L_FI, L_FL)
    def b2():
        flag_poll(a, "Lw_px", "s26", 32, L_FI, L_FL, loaded=True)
        a("s_mov_b32 s54, 255")
    events("Lw_evx", "Lw_evdone", [b0, b1, b2])

    def x1():
        flag_load(a, "s26", 16, L_FI, L_FL)
        a("s_mov_b32 s54, 15")
    def x2():
        stamp(a, 11)
        flag_poll(a, "Lw_pa0", "s26", 16, L_FI, L_FL, loaded=True)
        stamp(a, 3)
        a("s_mov_b32 s54, 255")
    def x3():
        flag_store(a, "s27", L_TMP, L_L16)
        stamp(a, 2)
        a("s_mov_b32 s54, 255")
    events("Lxl_ev", "Lxl_evdone", [x1, x2, x3])

    a("Ll_h:")
    a("s_waitcnt vmcnt(12)\ns_barrier\ns_waitcnt vmcnt(6)\ns_barrier\ns_waitcnt vmcnt(0)\ns_barrier")
    stamp_out(a, True)
    a("s_endpgm")


def helper(a):
    BA = (4, 68)
    HQ, HS, HL = 132, 134, 135
    nt = " nt" if OPT.get("dq_nt", 1) else ""
    a("s_lshl_b32 s14, s32, 3\ns_add_u32 s14, s14, s4")
    a(f"s_mul_i32 s34, s14, {16*14336}\nv_lshrrev_b32 v1, 3, v0\nv_and_b32 v2, 7, v0")
    a(f"v_mul_u32_u24 v1, 14336, v1\nv_lshl_add_u32 v1, v2, 4, v1\nv_add_u32 v{HQ}, s34, v1\nv_add_u32 v{HQ+1}, {8*14336}, v{HQ}")
    a(f"s_lshr_b32 s34, s4, 2\ns_mul_i32 s34, s34, 7168\nv_lshl_add_u32 v{HS}, v2, 3, s34\nv_lshlrev_b32 v{HL}, 4, v0")
    CS = 24576 if OPT.get("skip1") else 16384
    if OPT.get("skip1"): skip1_adj(a, 140)
    else: a("v_mov_b32 v140, 0\nv_mov_b32 v141, 0")
    a(f"v_add_u32 v140, v140, v{HL}\nv_add_u32 v141, v141, v{HL}")
    a(f"s_mul_i32 s24, s32, {56*CS}\ns_mul_i32 s34, s4, {CS//8}\ns_add_u32 s24, s24, s34")
    def start(h):
        B = BA[h]
        a("s_add_u32 s15, s33, s23\ns_and_b32 s15, s15, 3\ns_lshl_b32 s14, s23, 2\ns_add_u32 s15, s15, s14\ns_xor_b32 s15, s15, s22\ns_min_u32 s15, s15, 55\ns_add_u32 s23, s23, 1")
        a(f"s_lshl_b32 s25, s15, 8\ns_mul_i32 s14, s15, {CS}\ns_add_u32 s{20+h}, s24, s14\ns_lshl_b32 s14, s15, 7\nv_add_u32 v{B+5}, s14, v{HS}")
        for rg in range(2):
            for t in range(2):
                r = B + 32 + rg * 8 + t * 4
                a(f"buffer_load_dwordx4 v[{r}:{r+3}], v{HQ+rg}, s[16:19], s25 offen offset:{128*t}{nt}")
    def scales(h):
        B = BA[h]
        for t in range(2):
            a(f"ds_read_b64 v[{B+8+2*t}:{B+9+2*t}], v{B+5} offset:{64*t}")
            a(f"ds_read_b64 v[{B+12+2*t}:{B+13+2*t}], v{B+5} offset:{14336 + 64*t}")
    WSH = OPT.get("wsh", 2)
    a(f"s_mov_b32 s23, {WSH}\ns_and_b32 s22, s32, 4")
    a("s_min_u32 s14, s4, 6\ns_lshl_b32 s26, s14, 11\ns_mul_i32 s35, s32, 14336\ns_add_u32 s35, s35, s26\ns_mov_b32 m0, s26")
    get_args(a)
    for i, p in enumerate((sSC, sZE)):
        srd(a, 8, p, 16 * F * 2)
        for j in range(2):
            a(f"buffer_load_dwordx4 v{HL}, s[8:11], s35 offen offset:{j*1024} lds")
        if i == 0: a("s_add_u32 m0, s26, 14336")
    srd(a, 16, sQW, D * F * 4)
    start(0)
    start(1)
    srd(a, 8, sWS, SZ_WQ, WS_WQ)
    a(f"s_mul_i32 s27, s32, 56\ns_add_u32 s27, s27, s33\ns_lshl_b32 s27, s27, 8\ns_add_u32 s27, s27, {FA + (WSH + 1) * 1024}")
    get_nonce(a)
    a("s_waitcnt vmcnt(8)\ns_barrier")
    scales(0)
    a("s_waitcnt vmcnt(4)")
    a("s_branch Lh_mid")
    a("Lh_loop:")
    for h in range(2):
        start(1 - h)
        scales(h)
        if h == 0:
            a("s_waitcnt vmcnt(6)")
        else:
            a(f"s_cmp_eq_u32 s23, {WSH + 3}\ns_cselect_b32 s14, 1, s4\ns_cmp_lg_u32 s14, 0")
            a("s_waitcnt vmcnt(6)\ns_barrier")
            a(f"s_cbranch_scc1 Lh_nf{h}")
            flag_store(a, "s27", 136, HL)
            a("s_add_u32 s27, s27, 2048")
            a(f"Lh_nf{h}:")
        if h == 0: a("Lh_mid:")
        a("s_waitcnt lgkmcnt(0)")
        a("\n".join(dq_unpack(BA[h])))
        for rg in range(2):
            a("\n".join(dq_rows(BA[h], rg, f"s{20+h}", 140 + rg)))
    a("s_cmp_lt_u32 s23, 15\ns_cbranch_scc1 Lh_loop")
    a("s_cmp_lg_u32 s4, 0")
    a("s_waitcnt vmcnt(0)\ns_barrier")
    a("s_cbranch_scc1 Lh_nf")
    flag_store(a, "s27", 136, HL)
    a("Lh_nf:")
    stamp(a, 5)
    R0, R1 = OPT.get("pf0", 14), OPT.get("pf1", 14)
    if R0 < R1:
        a("s_and_b32 s14, s32, 1\ns_lshl_b32 s14, s14, 2\ns_add_u32 s14, s14, s33\ns_lshl_b32 s14, s14, 3\ns_add_u32 s14, s14, s4")
        a(f"s_mul_i32 s14, s14, {4*7168}\ns_lshr_b32 s34, s32, 1\ns_mul_i32 s34, s34, 1792\ns_add_u32 s14, s14, s34\ns_add_u32 s14, s14, {R0*256*7168}")
        a(f"v_lshrrev_b32 v1, 4, v0\nv_mul_u32_u24 v1, 7168, v1\nv_and_b32 v2, 15, v0\nv_min_u32 v2, 13, v2\nv_lshl_add_u32 v1, v2, 7, v1")
        srd(a, 16, sV, F * F * 2)
        a(f"s_mov_b32 s23, {R1 - R0}")
        a("Lh_pf:")
        a("buffer_load_dword v2, v1, s[16:19], s14 offen")
        a(f"s_add_u32 s14, s14, {256*7168}\ns_sub_u32 s23, s23, 1\ns_cmp_lg_u32 s23, 0\ns_waitcnt vmcnt(0)\ns_cbranch_scc1 Lh_pf")
    stamp(a, 6)
    a("s_branch L_role")


def gen(opt):
    global OPT
    OPT = opt
    a = Asm()
    a(HDR.rstrip())
    a(f"; @launch grid=(256,1,1) block=(512,1,1) lds={LDS_BYTES}")
    a('.amdgcn_target "amdgcn-amd-amdhsa--gfx950"\n.text')
    a(f".globl {NAME}\n.p2align 8\n.type {NAME},@function\n{NAME}:")
    a("s_cmp_ge_u32 s2, 256\ns_cbranch_scc1 L_end")
    stamp(a, 0)
    a("s_load_dwordx16 s[36:51], s[0:1], 0")
    a(f"s_load_dwordx2 s[{sWS}:{sWS+1}], s[0:1], 64")
    a("v_lshrrev_b32 v1, 6, v0")
    a("v_and_b32 v0, 63, v0")
    a("v_readfirstlane_b32 s4, v1")
    a("s_and_b32 s28, s2, 7\ns_lshr_b32 s29, s2, 3")
    a("s_and_b32 s3, s4, 3")
    a("s_lshr_b32 s6, s28, 1\ns_lshl_b32 s6, s6, 3\ns_and_b32 s34, s29, 7\ns_add_u32 s6, s6, s34")
    a("s_and_b32 s7, s28, 1\ns_lshl_b32 s7, s7, 2\ns_lshr_b32 s34, s29, 3\ns_add_u32 s7, s7, s34")
    a("s_and_b32 s32, s28, 1\ns_lshl_b32 s32, s32, 2\ns_and_b32 s33, s29, 3\ns_add_u32 s32, s32, s33")
    a("s_lshr_b32 s33, s28, 1\ns_mul_i32 s33, s33, 7\ns_lshr_b32 s34, s29, 2\ns_add_u32 s33, s33, s34")
    a("s_add_u32 s35, s33, 2\ns_lshr_b32 s35, s35, 2\ns_sub_u32 s54, s34, s35\ns_sub_u32 s35, s33, s34\ns_add_u32 s35, s35, 2\ns_lshr_b32 s35, s35, 2\ns_add_u32 s54, s54, s35")
    a("s_cmp_ge_u32 s54, 4\ns_cselect_b32 s54, 16, s54\ns_and_b32 s35, s33, 3\ns_cmp_eq_u32 s35, 1\ns_cselect_b32 s54, 16, s54")
    a("s_lshr_b32 s35, s28, 1\ns_lshl_b32 s35, s35, 2\ns_add_u32 s54, s54, s35")
    a("s_and_b32 s34, s29, 3\ns_cmp_ge_u32 s29, 28")
    a("s_cselect_b32 s5, 1, 0\ns_cselect_b32 s32, s28, s32\ns_cselect_b32 s33, s34, s33\ns_cselect_b32 s54, 16, s54")
    a("s_cbranch_scc1 L_h")
    a("L_role:")
    a("s_cmp_lt_u32 s4, 4\ns_cbranch_scc1 L_c")
    loader(a)
    a("L_h:")
    helper(a)
    a("L_c:")
    compute(a)
    a("L_end:\ns_endpgm")
    a('.section .rodata,"a"\n.p2align 6')
    a(kd(NAME, 256, 256))
    return a.text()


if __name__ == "__main__":
    opt = dict(kv.split("=") for kv in sys.argv[2:])
    opt = {k: (int(v) if v.lstrip("-").isdigit() else v) for k, v in opt.items()}
    open(sys.argv[1], "w").write(gen(opt))
```

```python
import sys
from asm import Asm, kd

NAME = "standalone__weight_only_int_quip__prompt_kernel"
S, D, F = 2048, 1024, 3584
WS_FLAG = 0
FA, FX, FB, EPOCH, FA1 = 0, 128 << 10, 192 << 10, 252 << 10, 256 << 10
SZ_FLAG = 288 << 10
WS_WQ = 1 << 20
WS_XRF = 13 << 20
WS_WPF = 20 << 20
WS_STAMP = 64 << 20
SZ_W = D * F * 2
SZ_X = S * D * 2
SZ_WQ = 8 * 56 * 24576
SPIN_MAX = 1 << 15

HDR = """; Kernarg layout (72 bytes, ptrs only, base s[0:1]):
"""
sX, sQW, sSC, sZE, sU, sV, sOUT, sWS, sNONCE = 36, 38, 40, 42, 44, 46, 48, 30, 52

OPT = {}


def srd(a, d, b, nbytes, add=0):
    if add:
        a(f"s_add_u32 s{d}, s{b}, {add}")
        a(f"s_addc_u32 s{d+1}, s{b+1}, 0")
    else:
        a(f"s_mov_b32 s{d}, s{b}")
        a(f"s_mov_b32 s{d+1}, s{b+1}")
    a(f"s_mov_b32 s{d+2}, {nbytes}")
    a(f"s_mov_b32 s{d+3}, 0x20000")


def interleave(a, mf, others):
    for i, m in enumerate(mf):
        if isinstance(m, tuple):
            for p in m[0]:
                a(p)
            a(m[1])
        else:
            a(m)
        for o in others.get(i, []):
            a(o)


NSTAMP = 12
def stamp(a, idx):
    if not OPT.get("stamp"): return
    a(f"s_memrealtime s[{60+2*idx}:{61+2*idx}]")
    if idx == 0:
        a("s_memtime s[86:87]")
        for i in range(1, NSTAMP): a(f"s_mov_b32 s{60+2*i}, 0")


def stamp_out(a, loader):
    if not OPT.get("stamp"): return
    a("s_mov_b64 exec, -1\ns_waitcnt vmcnt(0)")
    a(f"s_memrealtime s[84:85]\ns_memtime s[88:89]\ns_waitcnt lgkmcnt(0)")
    a("s_sub_u32 s88, s88, s86")
    srd(a, 92, sWS, 1 << 20, WS_STAMP)
    a(f"s_lshl_b32 s90, s2, 3\ns_add_u32 s90, s90, s3\ns_add_u32 s90, s90, {4 if loader else 0}\ns_lshl_b32 s90, s90, 6")
    a("v_mov_b32 v0, 0")
    a("s_getreg_b32 s89, hwreg(HW_REG_XCC_ID)\ns_getreg_b32 s91, hwreg(HW_REG_HW_ID)")
    vals = [f"s{60+2*i}" for i in range(NSTAMP + 1)] + ["s88", "s89", "s91"]
    for i, v in enumerate(vals):
        a(f"v_mov_b32 v1, {v}\nbuffer_store_dword v1, v0, s[92:95], s90 offen offset:{4*i}")


def trace(a, mode=1):
    if OPT.get("trace") != mode: return
    a("s_waitcnt lgkmcnt(0)\ns_mov_b32 m0, s25\nv_writelane_b32 v100, s96, m0\ns_memrealtime s[96:97]")


def trace_out(a):
    if not OPT.get("trace"): return
    srd(a, 92, sWS, 1 << 20, WS_STAMP + (1 << 20))
    a(f"s_lshl_b32 s90, s2, 2\ns_add_u32 s90, s90, s3\ns_lshl_b32 s90, s90, 8\nv_lshlrev_b32 v1, 2, v0")
    a("buffer_store_dword v100, v1, s[92:95], s90 offen")


def mfma(acc, A, B, zero=False):
    C = "0" if zero else f"v[{acc}:{acc+3}]"
    return f"v_mfma_f32_16x16x32_bf16 v[{acc}:{acc+3}], v[{A}:{A+3}], v[{B}:{B+3}], {C}"


def flag_store(a, soff, vt, lane16):
    for i in range(4): a(f"v_mov_b32 v{vt+i}, s{sNONCE}")
    a("s_mov_b64 exec, 0xff")
    a(f"buffer_store_dwordx4 v[{vt}:{vt+3}], v{lane16}, s[56:59], {soff} offen sc1")
    a("s_mov_b64 exec, -1")


def flag_load(a, soff, n, vidx, vt):
    a(f"s_mov_b64 exec, {hex((1 << n) - 1)}")
    a(f"buffer_load_dword v{vt}, v{vidx}, s[56:59], {soff} offen sc1")
    a("s_mov_b64 exec, -1")


def flag_poll(a, L, soff, n, vidx, vt, loaded=False):
    a(f"s_mov_b32 s53, {SPIN_MAX}")
    if loaded: a(f"s_branch {L}_c")
    a(f"{L}:")
    flag_load(a, soff, n, vidx, vt)
    a("s_sub_u32 s53, s53, 1\ns_cmp_eq_u32 s53, 0")
    a(f"s_cbranch_scc1 {L}_x")
    a("s_waitcnt vmcnt(0)")
    a(f"{L}_c:")
    a(f"v_cmp_ne_u32 vcc, s{sNONCE}, v{vt}")
    a(f"s_and_b32 vcc_lo, vcc_lo, {hex((1 << n) - 1)}")
    a(f"s_cbranch_scc1 {L}")
    a(f"{L}_x:")


def sflag_sample(a):
    a(f"s_add_u32 s12, s{sWS}, s26\ns_addc_u32 s13, s{sWS+1}, 0")
    for q in range(4):
        a(f"s_load_dword s{98+q}, s[12:13], {WS_FLAG + q*256}")


def sflag_test(a):
    a("s_waitcnt lgkmcnt(0)")
    a(f"s_xor_b32 s14, s98, s{sNONCE}")
    for q in range(1, 4):
        a(f"s_xor_b32 s15, s{98+q}, s{sNONCE}\ns_or_b32 s14, s14, s15")


def sflag_check(a, L, vidx, vt):
    sflag_test(a)
    a(f"s_cbranch_scc0 {L}_x")
    flag_poll(a, L, "s26", 4, vidx, vt)


def get_args(a):
    a("s_waitcnt lgkmcnt(0)")
    a(f"s_load_dword s{sNONCE}, s[{sWS}:{sWS+1}], {WS_FLAG + EPOCH}")


def get_nonce(a):
    srd(a, 56, sWS, SZ_FLAG, WS_FLAG)
    a(f"s_waitcnt lgkmcnt(0)\ns_mul_i32 s{sNONCE}, s{sNONCE}, 1664525\ns_add_u32 s{sNONCE}, s{sNONCE}, 1013904223")


def dq_addr(a, B, nrg, wreg, sout):
    sh = {2: 3, 4: 2}[nrg]
    a(f"s_lshl_b32 s14, s32, {sh}\ns_add_u32 s14, s14, {wreg}")
    a(f"s_mul_i32 s34, s14, {nrg*8*14336}\ns_lshl_b32 s35, s15, 8\ns_add_u32 s34, s34, s35")
    a(f"s_lshr_b32 s14, s14, {sh-1}\ns_mul_i32 s35, s14, 7168\ns_lshl_b32 s14, s15, 7\ns_add_u32 s35, s35, s14")
    a(f"v_lshrrev_b32 v{B}, 3, v0\nv_and_b32 v{B+5}, 7, v0")
    a(f"v_mul_u32_u24 v{B}, 14336, v{B}\nv_lshl_add_u32 v{B}, v{B+5}, 4, v{B}\nv_add_u32 v{B}, s34, v{B}")
    for rg in range(1, nrg):
        a(f"v_add_u32 v{B+rg}, {rg*8*14336}, v{B}")
    a(f"v_lshl_add_u32 v{B+5}, v{B+5}, 3, s35\nv_lshlrev_b32 v{B+4}, 4, v0")
    a(f"s_mul_i32 {sout}, s32, 56\ns_add_u32 {sout}, {sout}, s15\ns_lshl_b32 {sout}, {sout}, {sh}\ns_add_u32 {sout}, {sout}, {wreg}\ns_lshl_b32 {sout}, {sout}, {14-sh}")


def dq_issue(a, B, rgs, scales=True):
    nt = " nt" if OPT.get("dq_nt", 1) else ""
    if scales:
        for t in range(2):
            a(f"global_load_dwordx2 v[{B+8+2*t}:{B+9+2*t}], v{B+5}, s[{sSC}:{sSC+1}] offset:{64*t}")
            a(f"global_load_dwordx2 v[{B+12+2*t}:{B+13+2*t}], v{B+5}, s[{sZE}:{sZE+1}] offset:{64*t}")
    for rg in rgs:
        for t in range(2):
            r = B + 32 + rg * 8 + t * 4
            a(f"global_load_dwordx4 v[{r}:{r+3}], v{B+rg}, s[{sQW}:{sQW+1}] offset:{128*t}{nt}")


def dq_unpack(B):
    o = []
    for j in range(4):
        o += [f"v_lshlrev_b32 v{B+16+2*j}, 16, v{B+8+j}", f"v_and_b32 v{B+17+2*j}, 0xffff0000, v{B+8+j}"]
        o += [f"v_lshlrev_b32 v{B+24+2*j}, 16, v{B+12+j}", f"v_and_b32 v{B+25+2*j}, 0xffff0000, v{B+12+j}"]
    return o


def dq_rows(B, rg, sout, vaddr=None):
    r = B + 32 + rg * 8
    o = [f"v_cvt_f32_i32 v{r+e}, v{r+e}" for e in range(8)]
    o += [f"v_sub_f32 v{r+e}, v{r+e}, v{B+24+e}" for e in range(8)]
    o += [f"v_cvt_pk_bf16_f32 v{B+8+p}, v{r+2*p}, v{r+2*p+1}" for p in range(4)]
    for p in range(4):
        o += [f"v_lshlrev_b32 v{r+2*p}, 16, v{B+8+p}", f"v_and_b32 v{r+2*p+1}, 0xffff0000, v{B+8+p}"]
    o += [f"v_mul_f32 v{r+e}, v{r+e}, v{B+16+e}" for e in range(8)]
    o += [f"v_cvt_pk_bf16_f32 v{r+p}, v{r+2*p}, v{r+2*p+1}" for p in range(4)]
    o.append(f"buffer_store_dwordx4 v[{r}:{r+3}], v{vaddr or B+4}, s[8:11], {sout} offen offset:{rg*1024} sc1")
    return o


def dq_now(a, B, nrg, sout):
    a(f"s_waitcnt vmcnt({2*nrg})")
    a("\n".join(dq_unpack(B)))
    for rg in range(nrg):
        a(f"s_waitcnt vmcnt({2*nrg - 2 - 2*rg + rg})")
        a("\n".join(dq_rows(B, rg, sout)))


SL = 16384 + 16 * 1056
NSL = 4
CQ0 = 3 * SL
SQ = 16 * 1040
LDS_BYTES = max(NSL * SL, CQ0 + 3 * SQ)

B_FR = 64
B_PA = 128
B_TA = 132
V_L16 = 248
V_T = 240
RD_ORDER = [("P", 0, 0), ("T", 0, 0), ("T", 0, 1), ("T", 1, 0), ("T", 1, 1), ("P", 1, 0), ("T", 2, 0), ("T", 2, 1),
            ("P", 2, 0), ("T", 3, 0), ("T", 3, 1), ("P", 3, 0)]
MF_ORDER = [(0, 0), (0, 1), (1, 1), (1, 0), (1, 2), (0, 2), (2, 2), (2, 1), (2, 0), (2, 3), (1, 3), (0, 3), (3, 3), (3, 2), (3, 1), (3, 0)]


def b_reads(slot, ks, buf):
    out = []
    for kind, i, t in RD_ORDER:
        if kind == "P":
            r = B_FR + buf * 32 + i * 4
            out.append(f"ds_read_b128 v[{r}:{r+3}], v{B_PA + (slot//2)*2 + ks} offset:{(slot%2)*SL + i*2048}")
        else:
            r = B_FR + buf * 32 + 16 + i * 4 + t * 2
            out.append(f"ds_read_b64_tr_b16 v[{r}:{r+1}], v{B_TA + slot//2} offset:{(slot%2)*SL + 16384 + ks*8448 + t*512 + i*32}")
    return out


def b_mfmas(buf, waits):
    out = []
    for n, (rt, c) in enumerate(MF_ORDER):
        m = mfma((rt * 4 + c) * 4, B_FR + buf * 32 + rt * 4, B_FR + buf * 32 + 16 + c * 4)
        out.append(([f"s_waitcnt lgkmcnt({waits[n]})"], m) if n in waits else m)
    return out


def row_read_base(a, dst, t0, wshift):
    a(f"v_and_b32 v{t0}, 15, v0\nv_lshrrev_b32 v{t0+1}, 4, v0")
    a(f"v_lshrrev_b32 v{t0+2}, 1, v{t0}\nv_xor_b32 v{t0+2}, v{t0+2}, v{t0+1}\nv_lshlrev_b32 v{t0+2}, 4, v{t0+2}\nv_lshl_add_u32 v{t0+2}, v{t0}, 7, v{t0+2}")
    a(f"s_lshr_b32 s14, s3, 1\ns_lshl_b32 s14, s14, {wshift}\nv_add_u32 v{dst}, s14, v{t0+2}\nv_xor_b32 v{dst+1}, 64, v{dst}")


def tr_read_base(a, dst, t0):
    a(f"v_bfe_u32 v{t0}, v0, 2, 3\nv_mul_u32_u24 v{t0}, 1056, v{t0}\nv_lshrrev_b32 v{t0+1}, 5, v0\nv_lshl_add_u32 v{t0}, v{t0+1}, 8, v{t0}")
    a(f"v_and_b32 v{t0+1}, 3, v0\nv_lshl_add_u32 v{t0}, v{t0+1}, 3, v{t0}\ns_and_b32 s14, s3, 1\ns_lshl_b32 s14, s14, 7")
    a(f"v_add_u32 v{dst}, s14, v{t0}")


C_FR = 128
C_PA = 224
C_QA = 227
C_WA = 228
C_SA = 229


def c_reads(slot, ks, buf):
    P = [f"ds_read_b128 v[{C_FR+buf*48+rt*4}:{C_FR+buf*48+rt*4+3}], v{C_PA+slot} offset:{ks*16384 + rt*1024}" for rt in range(4)]
    Q = [f"ds_read_b128 v[{C_FR+buf*48+16+c*4}:{C_FR+buf*48+16+c*4+3}], v{C_QA} offset:{slot*SQ + ks*8320 + c*16}" for c in range(8)]
    return [P[0]] + Q + P[1:]


def c_mfmas(buf, zero=False):
    out = []
    for rt in range(4):
        for cc in range(8):
            c = cc if rt % 2 == 0 else 7 - cc
            out.append(mfma((rt * 8 + c) * 4, C_FR + buf * 48 + rt * 4, C_FR + buf * 48 + 16 + c * 4, zero))
    return out


def spread(rd, every=2):
    return {every * i: [r] for i, r in enumerate(rd)}


X_ACC = 136
X_FR = 168
X_PA = 216
X_TA = 220


def x_reads(slot, ks, buf):
    b = X_FR + buf * 24
    P = [f"ds_read_b128 v[{b+rt*4}:{b+rt*4+3}], v{X_PA + (slot//2)*2 + ks} offset:{(slot%2)*SL + rt*2048}" for rt in range(4)]
    T = [f"ds_read_b64_tr_b16 v[{b+16+c*4+t*2}:{b+16+c*4+t*2+1}], v{X_TA + slot//2} offset:{(slot%2)*SL + 16384 + ks*8448 + t*512 + c*32}"
         for c in range(2) for t in range(2)]
    return [T[0], T[1], P[0], T[2], T[3], P[1], P[2], P[3]]


def x_mfmas(buf, waits):
    b = X_FR + buf * 24
    out = []
    for n in range(8):
        rt, c = n >> 1, (n ^ (n >> 1)) & 1
        m = mfma(X_ACC + (rt * 2 + c) * 4, b + 16 + c * 4, b + rt * 4)
        out.append(([f"s_waitcnt lgkmcnt({waits[n]})"], m) if n in waits else m)
    return out


def x_epilogue(a):
    for rt in range(4):
        lo = X_ACC + rt * 8
        t = V_T + (rt & 1) * 4
        for p in range(4):
            a(f"v_cvt_pk_bf16_f32 v{t+p}, v{lo+2*p}, v{lo+2*p+1}")
        a(f"buffer_store_dwordx4 v[{t}:{t+3}], v{V_L16}, s[16:19], s24 offen offset:{rt*1024} sc1")


def own_fx(a):
    a(f"s_lshl_b32 s27, s6, 3\ns_add_u32 s27, s27, s7\ns_lshl_b32 s27, s27, 8\ns_add_u32 s27, s27, {FX}")


def compute(a):
    DQ = 64
    WSH = OPT.get("wsh", 2)
    if WSH == 4:
        a("s_and_b32 s15, s32, 4\ns_xor_b32 s15, s15, s54")
        dq_addr(a, DQ, 4, "s3", "s28")
    else:
        a("s_lshr_b32 s15, s54, 1\ns_and_b32 s29, s54, 1\ns_lshl_b32 s29, s29, 2\ns_add_u32 s29, s29, s3")
        dq_addr(a, DQ, 2, "s29", "s28")
    get_args(a)
    a("s_cmp_ge_u32 s54, 16\ns_cbranch_scc1 Lc_nodq0")
    dq_issue(a, DQ, range(WSH))
    a("Lc_nodq0:")
    srd(a, 8, sWS, SZ_WQ, WS_WQ)
    a(f"v_lshlrev_b32 v{V_L16}, 4, v0")
    row_read_base(a, B_PA, V_T, 13)
    a(f"v_mov_b32 v{X_PA}, v{V_T+2}\nv_xor_b32 v{X_PA+1}, 64, v{X_PA}")
    tr_read_base(a, B_TA, V_T)
    a(f"s_lshl_b32 s14, s3, 6\nv_add_u32 v{X_TA}, s14, v{V_T}")
    for r_ in (B_PA, X_PA):
        a(f"v_add_u32 v{r_+2}, {2*SL}, v{r_}\nv_add_u32 v{r_+3}, {2*SL}, v{r_+1}")
    for r_ in (B_TA, X_TA):
        a(f"v_add_u32 v{r_+1}, {2*SL}, v{r_}")
    a(f"s_lshl_b32 s14, s3, 12\nv_add_u32 v{C_PA}, s14, v{V_L16}\nv_add_u32 v{C_PA+1}, {SL}, v{C_PA}\nv_add_u32 v{C_PA+2}, {2*SL}, v{C_PA}")
    a(f"v_bfe_u32 v{V_T}, v0, 1, 3\nv_mul_u32_u24 v{V_T}, 1040, v{V_T}\nv_lshrrev_b32 v{V_T+1}, 4, v0\nv_lshl_add_u32 v{V_T}, v{V_T+1}, 8, v{V_T}")
    a(f"v_and_b32 v{V_T+2}, 1, v0\nv_lshl_add_u32 v{V_T}, v{V_T+2}, 7, v{V_T}\nv_add_u32 v{C_QA}, {CQ0}, v{V_T}")
    a(f"s_lshr_b32 s14, s3, 1\ns_mul_i32 s14, s14, {SQ}\ns_and_b32 s34, s3, 1\ns_mul_i32 s34, s34, {4*1040}\ns_add_u32 s14, s14, s34\ns_add_u32 s14, s14, {CQ0}")
    a(f"v_add_u32 v{C_WA}, s14, v{V_L16}")
    col_lane(a, V_T + 2, V_T + 3, OPT.get("mix", 0))
    a(f"v_mul_u32_u24 v{V_T+1}, {4*7168}, v{V_T+1}\nv_add_u32 v{C_SA}, v{V_T+2}, v{V_T+1}")
    for i in list(range(64)) + list(range(X_ACC, X_ACC + 32)):
        a(f"v_mov_b32 v{i}, 0")
    a("s_lshr_b32 s24, s6, 2\ns_lshl_b32 s24, s24, 5\ns_lshl_b32 s34, s7, 2\ns_add_u32 s24, s24, s34\ns_add_u32 s24, s24, s3")
    a("s_lshl_b32 s24, s24, 2\ns_and_b32 s34, s6, 3\ns_add_u32 s24, s24, s34\ns_lshl_b32 s24, s24, 12")
    srd(a, 16, sWS, SZ_X, WS_XRF)
    get_nonce(a)
    a("s_cmp_ge_u32 s54, 16\ns_cbranch_scc1 Lc_nodq1")
    dq_now(a, DQ, WSH, "s28")
    a("Lc_nodq1:")
    stamp(a, 1)
    XW = {0: 5, 1: 4, 2: 4, 4: 5, 6: 6}
    a("s_mov_b32 s23, 4\ns_barrier")
    stamp(a, 9)
    for r in x_reads(0, 0, 0): a(r)
    a("s_branch Lx_mid")
    a("Lx_loop:")
    for s in range(NSL):
        a("s_barrier")
        interleave(a, x_mfmas(1, {}), spread(x_reads(s, 0, 0), 1))
        if s == 0: a("Lx_mid:")
        if OPT.get("xfront", 0):
            rd = x_reads(s, 1, 1)
            interleave(a, x_mfmas(0, {0: 5, 1: 5, 2: 6, 4: 9, 6: 8}), {i: rd[2*i:2*i+2] for i in range(4)})
        else:
            interleave(a, x_mfmas(0, XW), spread(x_reads(s, 1, 1), 1))
        XACK = OPT.get("xack", 3)
        if s == XACK - 5: a("s_cmp_eq_u32 s23, 4\ns_cbranch_scc1 Lx_na\ns_waitcnt vmcnt(0)\nLx_na:")
        if s == NSL - 1:
            a("s_sub_u32 s23, s23, 1\ns_cmp_lg_u32 s23, 0")
        a("s_waitcnt vmcnt(0) lgkmcnt(0)" if s == XACK - 1 else "s_waitcnt lgkmcnt(0)")
    a("s_cbranch_scc1 Lx_loop")
    stamp(a, 10)
    a("s_cmp_lg_u32 s5, 0\ns_cbranch_scc1 Lc_h")
    a("s_barrier")
    stamp(a, 2)
    rd = b_reads(0, 0, 0)
    interleave(a, x_mfmas(1, {}), spread(rd[:8], 1))
    for r in rd[8:]: a(r)
    a(f"s_lshl_b32 s25, s32, 2\ns_add_u32 s25, s25, s3\ns_mov_b32 s23, {56 // NSL}\ns_nop 0")
    x_epilogue(a)
    a(f"s_lshr_b32 s34, s3, 1\ns_lshl_b32 s24, s32, 1\ns_add_u32 s24, s24, s34\ns_mul_i32 s24, s24, {2*224*1024}")
    a("s_and_b32 s34, s3, 1\ns_lshl_b32 s35, s33, 1\ns_add_u32 s34, s34, s35\ns_lshl_b32 s34, s34, 12\ns_add_u32 s24, s24, s34")
    srd(a, 16, sWS, SZ_W, WS_WPF)
    a("s_branch Lb_mid")
    a("Lb_loop:")
    for s in range(NSL):
        a("s_barrier")
        rd = b_reads(s, 0, 0)
        LG0 = OPT.get("lg0", 1) or OPT.get("ah", 3) == 3
        interleave(a, b_mfmas(1, {} if LG0 else {0: 4, 6: 6}), {i: [rd[i]] for i in range(12)})
        if s == 0: a("Lb_mid:")
        rd = b_reads(s, 1, 1)
        oth = {i: [rd[i]] for i in range(12)}
        if s == NSL - 1:
            oth[13] = ["s_sub_u32 s23, s23, 1"]
            oth[14] = ["s_cmp_lg_u32 s23, 0"]
        interleave(a, b_mfmas(0, {0: 4, 6: 6}), oth)
        if LG0: a("s_waitcnt vmcnt(0) lgkmcnt(0)" if s == NSL - 1 else "s_waitcnt lgkmcnt(0)")
        elif s == NSL - 1: a("s_waitcnt vmcnt(0)")
    a("s_cbranch_scc1 Lb_loop")
    if not LG0: a("s_waitcnt lgkmcnt(0)")
    a("s_barrier")
    stamp(a, 3)
    def w_out(f):
        pair, o = f >> 2, f & 3
        lo, hi = ((2 * pair) * 4 + o) * 4, ((2 * pair + 1) * 4 + o) * 4
        t = B_FR + f * 4
        r = [f"v_cvt_pk_bf16_f32 v{t}, v{lo}, v{lo+1}", f"v_cvt_pk_bf16_f32 v{t+1}, v{lo+2}, v{lo+3}",
             f"v_cvt_pk_bf16_f32 v{t+2}, v{hi}, v{hi+1}", f"v_cvt_pk_bf16_f32 v{t+3}, v{hi+2}, v{hi+3}",
             f"buffer_store_dwordx4 v[{t}:{t+3}], v{V_L16}, s[16:19], s24 offen offset:{o*1024} sc1"]
        if f == 3: r.append(f"s_add_u32 s24, s24, {224*1024}")
        return r
    last = [mfma((rt * 4 + c) * 4, B_FR + 32 + rt * 4, B_FR + 48 + c * 4) for pair in range(2) for c in range(4) for rt in (2 * pair, 2 * pair + 1)]
    interleave(a, last, {9: w_out(0), 11: w_out(1), 13: w_out(2), 15: w_out(3)})
    for f in range(4, 8):
        a("\n".join(w_out(f)))
    for f in range(8):
        a(f"ds_write_b128 v{C_WA}, v[{B_FR+f*4}:{B_FR+f*4+3}] offset:{(f>>2)*8320 + (f&3)*1040}")
    srd(a, 16, sOUT, S * F * 2)
    a(f"s_lshl_b32 s34, s33, 8\ns_mul_i32 s24, s25, {64*7168}\ns_add_u32 s24, s24, s34")
    a("s_waitcnt lgkmcnt(0)")
    stamp(a, 4)
    TAIL = OPT.get("tail", 1)
    a("s_barrier")
    for r in c_reads(0, 0, 0):
        a(r)
    a(f"s_mov_b32 s23, {4 if TAIL else 5}")
    a("s_waitcnt lgkmcnt(0)")
    interleave(a, c_mfmas(0, zero=True), spread(c_reads(0, 1, 1)))
    a("s_waitcnt vmcnt(0) lgkmcnt(0)")
    stamp(a, 5)
    PEEL = OPT.get("peel", 1)
    a("Lc_loop:")
    for s in (1, 2, 0):
        if s == 2 and PEEL:
            a(f"s_cmp_eq_u32 s23, {4 if TAIL else 5}\ns_cbranch_scc1 Lc_peel")
        a("s_barrier")
        if s == 2 and OPT.get("stamp") and not PEEL:
            a(f"s_cmp_lg_u32 s23, {4 if TAIL else 5}\ns_cbranch_scc1 Lc_ns")
            stamp(a, 6)
            a("Lc_ns:")
        interleave(a, c_mfmas(1), spread(c_reads(s, 0, 0)))
        if s == 2: a("Lc_mid:")
        a("s_waitcnt lgkmcnt(0)")
        oth = spread(c_reads(s, 1, 1))
        if s == 0:
            oth[27] = ["s_sub_u32 s23, s23, 1"]
            oth[29] = ["s_cmp_lg_u32 s23, 0"]
        interleave(a, c_mfmas(0), oth)
        a("s_waitcnt lgkmcnt(0)")
    a("s_cbranch_scc1 Lc_loop")
    ynt = {0: "", 1: " nt", 2: " sc1", 3: " sc0 sc1"}[OPT.get("y_nt", 2)]

    def row_out(rt, r, t):
        o = []
        for p in range(4):
            o.append(f"v_cvt_pk_bf16_f32 v{t+p}, v{(rt*8+2*p)*4+r}, v{(rt*8+2*p+1)*4+r}")
        o.append(f"buffer_store_dwordx4 v[{t}:{t+3}], v{C_SA}, s[16:19], s24 offen{ynt}")
        o.append(f"s_add_u32 s24, s24, {7168 if r < 3 else 13*7168}")
        return o
    if not TAIL:
        stamp(a, 7)
        oth = {}
        for rt in range(2):
            for r in range(4):
                oth[16 + rt * 8 + 2 * r] = row_out(rt, r, C_FR + ((rt * 4 + r) % 8) * 4)
        interleave(a, c_mfmas(1), oth)
        for rt in range(2, 4):
            for r in range(4):
                a("\n".join(row_out(rt, r, C_FR + ((rt * 4 + r) % 8) * 4)))
    else:
        def h_reads(n):
            half, st, ks = n // 6, (n % 6) // 2, n & 1
            rd = c_reads((13 + st) % 3, ks, n & 1)
            P = [rd[0]] + rd[9:]
            return [P[2 * half]] + rd[1:9] + [P[2 * half + 1]]
        def h_mfmas(n):
            m = c_mfmas(n & 1)
            return m[16 * (n // 6):16 * (n // 6) + 16]
        a("s_barrier")
        interleave(a, c_mfmas(1), spread(h_reads(0)))
        outs = [row_out(rt, r, V_T + ((rt * 4 + r) & 1) * 4) for rt in range(2) for r in range(4)]
        for n in range(12):
            a("s_waitcnt lgkmcnt(0)")
            if n in (1, 3): a("s_barrier")
            if n == 11: stamp(a, 7)
            oth = spread(h_reads(n + 1), 1) if n < 11 else {}
            k = {6: [0], 7: [1, 2], 8: [3], 9: [4, 5], 10: [6], 11: [7]}.get(n, [])
            for i, q in enumerate(k):
                o = outs[q]
                pos = 10 + 3 * i
                oth[pos] = o[0:2]; oth[pos + 1] = o[2:4]; oth[pos + 2] = o[4:6]
            interleave(a, h_mfmas(n), oth)
        for rt in range(2, 4):
            for r in range(4):
                a("\n".join(row_out(rt, r, C_FR + ((rt * 4 + r) % 8) * 4)))
    stamp(a, 8)
    a("s_or_b32 s14, s2, s3\ns_cmp_lg_u32 s14, 0\ns_cbranch_scc1 Lc_end")
    a(f"s_mov_b32 s14, {EPOCH}")
    flag_store(a, "s14", V_T, V_L16)
    a("Lc_end:")
    stamp_out(a, False)
    a("s_endpgm")
    if PEEL:
        a("Lc_peel:")
        interleave(a, c_mfmas(1), {})
        a("s_barrier")
        stamp(a, 6)
        for r in c_reads(2, 0, 0):
            a(r)
        a("s_branch Lc_mid")
    a("Lc_h:")
    interleave(a, x_mfmas(1, {}), {})
    a("s_nop 7")
    x_epilogue(a)
    a("s_waitcnt vmcnt(0)\ns_barrier")
    a("s_cmp_lg_u32 s3, 0\ns_cbranch_scc1 Lc_end")
    own_fx(a)
    flag_store(a, "s27", V_T, V_L16)
    a("s_branch Lc_end")


L_T = 68
L_P = 72
L_TP = 76
L_TT = 77
L_Q = 78
L_L16 = 82
L_FI = 83
L_TMP = 84
L_FL = 92
L_CP = 93
L_CQ = 94


def rot_table(a, n, W, phi, psi, v, pw=0):
    lg = W.bit_length() - 1
    wmin = OPT.get("wmin", 1)
    a(f"s_add_u32 s14, {psi}, {n - wmin}\ns_lshr_b32 s14, s14, {lg}")
    a(f"v_add_u32 v{v+3}, {psi}, v0\nv_lshrrev_b32 v{v+3}, {lg}, v{v+3}\nv_min_u32 v{v+3}, s14, v{v+3}")
    a(f"v_cmp_eq_u32 vcc, s14, v{v+3}")
    a(f"v_lshlrev_b32 v{v}, {lg}, v{v+3}\nv_subrev_u32 v{v}, {psi}, v{v}")
    a(f"v_add_u32 v{v+1}, {W}, v{v}\nv_mov_b32 v{v+2}, {n}\nv_cndmask_b32 v{v+1}, v{v+1}, v{v+2}, vcc")
    a(f"v_max_i32 v{v}, 0, v{v}\nv_sub_u32 v{v+1}, v{v+1}, v{v}")
    a(f"v_mul_u32_u24 v{v+3}, {pw}, v{v+3}")
    a(f"v_add_u32 v{v+3}, {phi}, v{v+3}\nv_and_b32 v{v+3}, {W-1}, v{v+3}\nv_sub_u32 v{v+2}, v0, v{v}\nv_add_u32 v{v+2}, v{v+3}, v{v+2}")
    for i in range(W - 1):
        a(f"v_sub_u32 v{v+3}, v{v+2}, v{v+1}\nv_min_u32 v{v+2}, v{v+2}, v{v+3}")
    a(f"v_add_u32 v{v}, v{v}, v{v+2}")


def col_base(a, dst, tile, mix):
    if mix: a(f"s_lshr_b32 {dst}, {tile}, 2\ns_lshl_b32 {dst}, {dst}, 2\ns_add_u32 {dst}, {dst}, {tile}\ns_lshl_b32 {dst}, {dst}, 7")
    else: a(f"s_lshl_b32 {dst}, {tile}, 8")


def col_lane(a, dst, tmp, mix):
    a(f"v_and_b32 v{dst}, 15, v0\nv_lshlrev_b32 v{dst}, 4, v{dst}")
    if mix: a(f"v_and_b32 v{tmp}, 8, v0\nv_mul_u32_u24 v{tmp}, 48, v{tmp}\nv_add_u32 v{dst}, v{dst}, v{tmp}")


def t_voffs(a, t_row, natural, L_T=L_T, mix=0):
    t = L_TMP
    a(f"v_lshrrev_b32 v{t}, 4, v0\nv_and_b32 v{t+1}, 1, v{t}\nv_lshrrev_b32 v{t}, 1, v{t}")
    if natural:
        a(f"v_lshlrev_b32 v{t+1}, 4, v{t+1}\nv_lshl_add_u32 v{t}, v{t}, 2, v{t+1}")
    else:
        a(f"v_lshlrev_b32 v{t+1}, 3, v{t+1}\nv_lshl_add_u32 v{t}, v{t}, 5, v{t+1}")
    col_lane(a, t + 1, t + 2, mix)
    a(f"v_mul_u32_u24 v{t}, {t_row}, v{t}\nv_add_u32 v{L_T}, v{t+1}, v{t}")
    for j in range(1, 4):
        a(f"v_add_u32 v{L_T+j}, {j*(t_row-1056)}, v{L_T}")


def p_voffs(a, p_row, L_P=L_P):
    t = L_TMP
    a(f"v_lshrrev_b32 v{t}, 3, v0\nv_mul_u32_u24 v{t}, {p_row}, v{t}\nv_lshrrev_b32 v{t+1}, 4, v0\nv_and_b32 v{t+2}, 7, v0\nv_xor_b32 v{t+1}, v{t+1}, v{t+2}")
    a(f"v_lshl_add_u32 v{L_P}, v{t+1}, 4, v{t}\nv_xor_b32 v{L_P+1}, 64, v{L_P}")
    d = 8 * p_row - 1024
    a(f"v_add_u32 v{L_P+2}, {2*d}, v{L_P}\nv_add_u32 v{L_P+3}, {3*d}, v{L_P+1}\nv_add_u32 v{L_P+1}, {d}, v{L_P+1}")


def skip1_adj(a, v):
    a(f"v_lshrrev_b32 v{v+1}, 4, v0\nv_min_u32 v{v}, 1, v{v+1}\nv_lshlrev_b32 v{v}, 8, v{v}")
    a(f"v_add_u32 v{v+1}, 9, v{v+1}\nv_lshrrev_b32 v{v+1}, 2, v{v+1}\nv_lshlrev_b32 v{v+1}, 8, v{v+1}")


def loader(a):
    t = L_TMP + 4
    XT, XP, XTP, XTT = 4, 8, 12, 13
    AH = OPT.get("ah", 3)
    if OPT.get("xs", 4) == 99:
        a("s_and_b32 s34, s28, 1\ns_lshl_b32 s34, s34, 1\ns_lshr_b32 s14, s28, 1\ns_add_u32 s34, s34, s14\ns_lshl_b32 s34, s34, 2")
    else:
        a(f"s_mul_i32 s34, s28, {OPT.get('xs',4)}")
    a(f"s_add_u32 s15, s6, s7\ns_and_b32 s15, s15, 3\ns_sub_u32 s34, s34, s15")
    a(f"v_add_u32 v{t}, s15, v0\nv_add_u32 v{t+1}, 3, v{t}\nv_and_b32 v{t}, 0xfc, v{t}\nv_and_or_b32 v{t}, v{t+1}, 3, v{t}")
    a(f"v_add_u32 v{t}, s34, v{t}\nv_and_b32 v{t}, 15, v{t}")
    a(f"s_lshl_b32 s34, s6, 2\ns_add_u32 s34, s34, s3\ns_lshl_b32 s34, s34, 15\nv_lshl_add_u32 v{XTP}, v{t}, 7, s34")
    a("s_lshr_b32 s34, s3, 1\ns_lshl_b32 s34, s34, 5\ns_and_b32 s14, s3, 1\ns_lshl_b32 s14, s14, 3\ns_add_u32 s34, s34, s14")
    a(f"s_lshl_b32 s34, s34, 11\ns_lshl_b32 s14, s7, 8\ns_add_u32 s34, s34, s14\nv_lshl_add_u32 v{XTT}, v{t}, 17, s34")
    t_voffs(a, 2048, True, XT)
    p_voffs(a, 2048, XP)
    a("s_lshl_b32 s22, s3, 11\ns_mul_i32 s29, s3, 4224\ns_add_u32 s29, s29, 16384")
    a(f"v_readlane_b32 s21, v{XTT}, 0\ns_mov_b32 m0, s29\ns_mov_b32 s25, 0\ns_mov_b32 s28, 0\ns_mov_b32 s55, 0")
    get_args(a)
    stamp(a, 8)
    if OPT.get("trace"): a("v_mov_b32 v100, 0\ns_mov_b32 s96, 0")
    srd(a, 8, sX, SZ_X)
    srd(a, 16, sU, D * D * 2)
    def XTl(j): a(f"buffer_load_dwordx4 v{XT+j}, s[16:19], s21 offen offset:{j*1056} lds")
    def XPl(j): a(f"buffer_load_dwordx4 v{XP+j}, s[8:11], s20 offen offset:{j*1024} lds")
    def xbody(n, hook=False):
        XTl(0)
        a(f"v_readlane_b32 s20, v{XTP}, s25\ns_add_u32 s25, s25, 1")
        if hook:
            a("s_cmp_eq_u32 s25, s54\ns_cbranch_scc1 Lxl_ev")
            a("Lxl_evdone:")
        XTl(1)
        a(f"s_add_u32 s34, s28, s22\ns_add_u32 s28, s28, {SL}")
        XTl(2)
        a(f"s_cmp_eq_u32 s28, {NSL*SL}\ns_cselect_b32 s28, 0, s28")
        XTl(3)
        a(f"s_mov_b32 m0, s34\nv_readlane_b32 s21, v{XTT}, s25\ns_add_u32 s34, s28, s29\ns_cmp_lt_u32 s25, {n}")
        XPl(0)
    def x0():
        W = OPT.get("W", 4)
        a(f"s_mul_i32 s34, s32, {OPT.get('pm',0)}\ns_mul_i32 s35, s33, {OPT.get('pn',0)}\ns_add_u32 s34, s34, s35\ns_add_u32 s34, s34, {OPT.get('p0',3)}")
        a(f"s_mul_i32 s35, s33, {OPT.get('qn',1)}\ns_mul_i32 s14, s32, {OPT.get('qm',1)}\ns_add_u32 s35, s35, s14\ns_and_b32 s35, s35, {W-1}")
        rot_table(a, 56, W, "s34", "s35", t, OPT.get("pw", 0))
        a(f"s_and_b32 s34, s32, 4\nv_xor_b32 v{t}, s34, v{t}")
        CS = 24576 if OPT.get("skip1") else 16384
        a(f"s_mul_i32 s34, s32, {56*CS}\ns_mul_i32 s35, s3, {CS//4}\ns_add_u32 s34, s34, s35")
        a(f"v_mul_u32_u24 v{L_TP}, {CS}, v{t}\nv_add_u32 v{L_TP}, s34, v{L_TP}")
        a("s_lshr_b32 s34, s3, 1\ns_lshl_b32 s34, s34, 4\ns_and_b32 s35, s3, 1\ns_lshl_b32 s35, s35, 2\ns_add_u32 s34, s34, s35")
        col_base(a, "s35", "s33", OPT.get("mix", 0))
        a("s_mul_i32 s34, s34, 7168\ns_add_u32 s34, s34, s35")
        a(f"v_mul_u32_u24 v{t}, {64*7168}, v{t}\nv_add_u32 v{L_TT}, s34, v{t}")
        t_voffs(a, 7168, False, mix=OPT.get("mix", 0))
        p_voffs(a, 128)
        if OPT.get("skip1"):
            skip1_adj(a, L_TMP)
            a(f"v_add_u32 v{L_P}, v{L_P}, v{L_TMP}\nv_add_u32 v{L_P+1}, v{L_P+1}, v{L_TMP+1}")
            a(f"v_add_u32 v{L_P+2}, 1024, v{L_P}\nv_add_u32 v{L_P+3}, 1024, v{L_P+1}")
        a(f"v_lshrrev_b32 v{t}, 1, v0\nv_add_u32 v{t+1}, 3, v{t}\nv_xor_b32 v{t+1}, s32, v{t+1}\nv_and_b32 v{t+1}, 4, v{t+1}")
        a(f"v_add_u32 v{t}, s32, v{t}\nv_and_or_b32 v{t}, v{t}, 3, v{t+1}\nv_and_b32 v{t+1}, 1, v0\nv_lshl_add_u32 v{t}, v{t}, 1, v{t+1}")
        a(f"s_lshl_b32 s34, s32, 19\ns_lshl_b32 s35, s3, 13\ns_add_u32 s34, s34, s35\nv_lshl_add_u32 v{L_CP}, v{t}, 15, s34")
        a(f"s_lshr_b32 s34, s3, 1\ns_mul_i32 s34, s34, {224*1024}\ns_and_b32 s35, s3, 1\ns_lshl_b32 s14, s33, 1\ns_add_u32 s35, s35, s14\ns_lshl_b32 s35, s35, 12\ns_add_u32 s34, s34, s35")
        a(f"v_mul_u32_u24 v{t}, {2*224*1024}, v{t}\nv_add_u32 v{L_CQ}, s34, v{t}")
        srd(a, 40, sWS, SZ_X, WS_XRF)
        srd(a, 48, sWS, SZ_W + 64, WS_WPF - 64)
        a(f"v_lshlrev_b32 v{L_L16}, 4, v0\nv_lshlrev_b32 v{L_FI}, 8, v0")
        for j in range(4):
            a(f"v_add_u32 v{L_Q+j}, {64 - 16*j}, v{L_L16}")
        a(f"s_lshl_b32 s26, s32, 12\ns_add_u32 s26, s26, {FA1}\ns_lshl_b32 s27, s54, 8\ns_add_u32 s27, s27, s26")
        get_nonce(a)
        a(f"s_cmp_lt_u32 s54, 16\ns_cselect_b32 s54, {OPT.get('xack', 3) + AH + 1}, 255\ns_cmp_eq_u32 s3, 1\ns_cselect_b32 s54, s54, 255\ns_cselect_b32 s55, 2, 0")
        a(f"s_or_b32 s14, s3, s5\ns_cmp_eq_u32 s14, 0\ns_cselect_b32 s54, 13, s54")
    xbody(16)
    XPl(1)
    a("s_mov_b32 m0, s34")
    x0()
    a("s_branch Lxl_go")
    a("Lxl_loop:")
    XPl(1)
    trace(a, 2)
    a("s_mov_b32 m0, s34")
    if AH == 3: a("s_cmp_lt_u32 s25, 3\ns_cbranch_scc1 Lxl_go")
    a(f"s_waitcnt vmcnt({6*(AH-1)})\ns_barrier")
    a("Lxl_go:")
    xbody(16, True)
    a("s_cbranch_scc1 Lxl_loop")
    XPl(1)
    stamp(a, 1)
    a("s_cmp_lg_u32 s5, 0\ns_cbranch_scc1 Ll_h")
    srd(a, 8, sWS, SZ_WQ, WS_WQ)
    srd(a, 16, sV, F * F * 2)
    a("s_lshl_b32 s22, s3, 12")

    AUX = {0: "", 1: " sc1", 2: " sc0 sc1", 3: " sc0"}
    PAUX, TAUX = AUX[OPT.get("psc1", 1)], AUX[OPT.get("tsc1", 0)]
    def T(j): a(f"buffer_load_dwordx4 v{L_T+j}, s[16:19], s21 offen offset:{j*1056}{TAUX} lds")
    def P(j): a(f"buffer_load_dwordx4 v{L_P+j}, s[8:11], s20 offen offset:{j*1024}{PAUX} lds")
    a(f"v_readlane_b32 s21, v{L_TT}, 0\nv_readlane_b32 s20, v{L_TP}, 0\ns_mov_b32 m0, s29")
    WSH = OPT.get("wsh", 2)
    a(f"s_mul_i32 s26, s32, {14*1024}\ns_add_u32 s26, s26, {FA + (WSH - 1) * 1024}")
    a(f"s_cmp_eq_u32 s3, 0\ns_cselect_b32 s54, {4*WSH - 4}, 255\ns_cmp_eq_u32 s3, 1\ns_cselect_b32 s54, 8, s54\ns_mov_b32 s55, 0")
    if AH == 3:
        a("s_waitcnt vmcnt(12)\ns_barrier")
        for j in range(4): T(j)
        a(f"s_mov_b32 m0, s22\nv_readlane_b32 s21, v{L_TT}, 1")
        for j in range(4): P(j)
        a(f"s_add_u32 m0, s29, {SL}\ns_mov_b32 s25, 1\ns_mov_b32 s28, {SL}")
        a("s_waitcnt vmcnt(14)\ns_barrier")
    else:
        a("s_mov_b32 s25, 0")
        a("s_waitcnt vmcnt(6)\ns_barrier")
    a("s_branch Lw_go")

    def head():
        P(3)
        trace(a)
        a("s_add_u32 m0, s28, s29")
        a(f"s_waitcnt vmcnt({8*(AH-1)})\ns_barrier")
    def first():
        T(0)
        a(f"v_readlane_b32 s20, v{L_TP}, s25\ns_add_u32 s25, s25, 1")
    def rest(fill=()):
        n = (len(fill) + 6) // 7
        g = ["\n".join(fill[i*n:(i+1)*n]) for i in range(7)]
        def gap(i):
            if g[i]: a(g[i])
        gap(0)
        T(1)
        a(f"s_add_u32 s34, s28, s22\ns_add_u32 s28, s28, {SL}")
        gap(1)
        T(2)
        a(f"s_cmp_eq_u32 s28, {NSL*SL}\ns_cselect_b32 s28, 0, s28")
        gap(2)
        T(3)
        a(f"s_mov_b32 m0, s34\nv_readlane_b32 s21, v{L_TT}, s25")
        gap(3)
        P(0)
        gap(4)
        P(1)
        gap(5)
        a(f"s_cmp_lt_u32 s25, 56")
        P(2)
        gap(6)
    a("Lw_loop:")
    head()
    a("Lw_go:")
    first()
    a(f"s_cmp_eq_u32 s25, s54\ns_cbranch_scc1 Lw_ev")
    a("Lw_evdone:")
    rest()
    a("s_cbranch_scc1 Lw_loop")
    P(3)
    stamp(a, 4)
    a(f"s_lshl_b32 s22, s3, 13\ns_mul_i32 s29, s3, {4*1040}\ns_add_u32 s29, s29, {CQ0}")
    def PC(st, slot):
        a(f"v_readlane_b32 s20, v{L_CP}, {st}\ns_add_u32 m0, s22, {slot}\ns_nop 3")
        for j in range(8):
            if j == 4: a("s_add_u32 m0, m0, 4096\ns_add_u32 s20, s20, 4096")
            a(f"buffer_load_dwordx4 v{L_L16}, s[40:43], s20 offen offset:{(j&3)*1024} sc1 lds")
    def QC(st, slot):
        a(f"v_readlane_b32 s21, v{L_CQ}, {st}\ns_add_u32 m0, s29, {slot}\ns_nop 3")
        for j in range(4):
            a(f"buffer_load_dwordx4 v{L_Q+j}, s[48:51], s21 offen offset:{j*1040} sc1 lds")
    for i in range(AH):
        a(f"s_waitcnt vmcnt({8*(AH-1)})\ns_barrier")
        PC(i, i * SL)
    a("s_barrier")
    a(f"s_lshl_b32 s26, s33, 3\ns_add_u32 s26, s26, s32\ns_lshl_b32 s27, s26, 8\ns_add_u32 s27, s27, {FB}")
    a(f"s_andn2_b32 s26, s27, 0x300\ns_xor_b32 s26, s26, 0x400")
    a(f"s_waitcnt vmcnt({8*(AH-1)})\ns_barrier")
    sflag_sample(a)
    if AH == 2: PC(2, 2 * SL)
    a("s_cmp_lg_u32 s3, 0")
    a("s_waitcnt vmcnt(8)\ns_barrier")
    a("s_cbranch_scc1 Lw_nfb")
    flag_store(a, "s27", L_TMP, L_L16)
    a("Lw_nfb:")
    stamp(a, 6)
    a(f"s_mov_b32 s25, 4\ns_mov_b32 s28, {SL}\ns_mov_b32 s27, {SQ}")
    a("s_cmp_eq_u32 s3, 0\ns_cselect_b32 s54, 9, 255")
    sflag_test(a)
    a("s_cbranch_scc1 Lw_late")
    QC(2, 2 * SQ)
    QC(3, 0)
    PC(3, 0)
    a("s_waitcnt vmcnt(12)")
    a("s_branch Lw_c2")
    a("Lw_late:")
    if OPT.get("latepc", 0):
        PC(3, 0)
        a(f"s_waitcnt vmcnt({OPT.get('fbw', 0)})")
    stamp(a, 5)
    flag_poll(a, "Lw_pb", "s26", 4, L_FI, L_FL)
    stamp(a, 7)
    QC(2, 2 * SQ)
    QC(3, 0)
    if OPT.get("latepc", 0):
        a("s_waitcnt vmcnt(4)")
    else:
        PC(3, 0)
        a("s_waitcnt vmcnt(12)")
    a("Lw_c2:")
    a("s_xor_b32 s26, s26, 0x400")
    a("s_barrier")
    a("Lw_cloop:")
    a("s_cmp_lg_u32 s25, s54\ns_cbranch_scc1 Lw_c3")
    sflag_sample(a)
    a("Lw_c3:")
    QC("s25", "s27")
    PC("s25", "s28")
    a(f"s_add_u32 s27, s27, {SQ}\ns_add_u32 s28, s28, {SL}\ns_cmp_eq_u32 s28, {3*SL}\ns_cselect_b32 s28, 0, s28\ns_cselect_b32 s27, 0, s27")
    a("s_cmp_lg_u32 s25, s54\ns_cbranch_scc1 Lw_pc_x")
    sflag_check(a, "Lw_pc", L_FI, L_FL)
    a("s_add_u32 s25, s25, 1\ns_cmp_lt_u32 s25, 16")
    a("s_waitcnt vmcnt(12)\ns_barrier")
    a("s_cbranch_scc1 Lw_cloop")
    a("s_waitcnt vmcnt(0)\ns_barrier")
    trace_out(a)
    stamp_out(a, True)
    a("s_endpgm")
    def events(L, done, evs):
        a(f"{L}:")
        for i, ev in enumerate(evs):
            if i + 1 < len(evs): a(f"s_cmp_lg_u32 s55, {i}\ns_cbranch_scc1 {L}{i+1}")
            a(f"s_mov_b32 s55, {i+1}")
            ev()
            a(f"s_branch {done}")
            if i + 1 < len(evs): a(f"{L}{i+1}:")

    a("Lw_ev:")
    a("s_cmp_lg_u32 s3, 0\ns_cbranch_scc1 Lw_evx")
    a("s_bitcmp1_b32 s25, 0\ns_cbranch_scc1 Lw_evc")
    a("s_add_u32 s26, s26, 2048\ns_add_u32 s54, s54, 1")
    sflag_sample(a)
    a("s_branch Lw_evdone")
    a("Lw_evc:")
    sflag_check(a, "Lw_pa", L_FI, L_FL)
    a("s_add_u32 s54, s54, 7\ns_cmp_gt_u32 s54, 48\ns_cselect_b32 s54, 255, s54")
    a("s_branch Lw_evdone")
    def b0():
        own_fx(a)
        flag_store(a, "s27", L_TMP, L_L16)
        a("s_mov_b32 s54, 52")
    def b1():
        a(f"s_lshl_b32 s26, s32, 13\ns_add_u32 s26, s26, {FX}\ns_mov_b32 s54, 55")
        flag_load(a, "s26", 32, L_FI, L_FL)
    def b2():
        flag_poll(a, "Lw_px", "s26", 32, L_FI, L_FL, loaded=True)
        a("s_mov_b32 s54, 255")
    events("Lw_evx", "Lw_evdone", [b0, b1, b2])

    def x1():
        flag_load(a, "s26", 16, L_FI, L_FL)
        a("s_mov_b32 s54, 16")
    def x2():
        stamp(a, 11)
        flag_poll(a, "Lw_pa0", "s26", 16, L_FI, L_FL, loaded=True)
        stamp(a, 3)
        a("s_mov_b32 s54, 255")
    def x3():
        flag_store(a, "s27", L_TMP, L_L16)
        stamp(a, 2)
        a("s_mov_b32 s54, 255")
    events("Lxl_ev", "Lxl_evdone", [x1, x2, x3])

    a("Ll_h:")
    for i in range(AH):
        a(f"s_waitcnt vmcnt({6*(AH-1-i)})\ns_barrier")
    stamp_out(a, True)
    a("s_endpgm")


def helper(a):
    BA = (4, 68)
    HQ, HS, HL = 132, 134, 135
    nt = " nt" if OPT.get("dq_nt", 1) else ""
    a("s_lshl_b32 s14, s32, 3\ns_add_u32 s14, s14, s4")
    a(f"s_mul_i32 s34, s14, {16*14336}\nv_lshrrev_b32 v1, 3, v0\nv_and_b32 v2, 7, v0")
    a(f"v_mul_u32_u24 v1, 14336, v1\nv_lshl_add_u32 v1, v2, 4, v1\nv_add_u32 v{HQ}, s34, v1\nv_add_u32 v{HQ+1}, {8*14336}, v{HQ}")
    a(f"s_lshr_b32 s34, s4, 2\ns_mul_i32 s34, s34, 7168\nv_lshl_add_u32 v{HS}, v2, 3, s34\nv_lshlrev_b32 v{HL}, 4, v0")
    CS = 24576 if OPT.get("skip1") else 16384
    if OPT.get("skip1"): skip1_adj(a, 140)
    else: a("v_mov_b32 v140, 0\nv_mov_b32 v141, 0")
    a(f"v_add_u32 v140, v140, v{HL}\nv_add_u32 v141, v141, v{HL}")
    a(f"s_mul_i32 s24, s32, {56*CS}\ns_mul_i32 s34, s4, {CS//8}\ns_add_u32 s24, s24, s34")
    def start(h):
        B = BA[h]
        a("s_add_u32 s15, s33, s23\ns_and_b32 s15, s15, 3\ns_lshl_b32 s14, s23, 2\ns_add_u32 s15, s15, s14\ns_xor_b32 s15, s15, s22\ns_min_u32 s15, s15, 55\ns_add_u32 s23, s23, 1")
        a(f"s_lshl_b32 s25, s15, 8\ns_mul_i32 s14, s15, {CS}\ns_add_u32 s{20+h}, s24, s14\ns_lshl_b32 s14, s15, 7\nv_add_u32 v{B+5}, s14, v{HS}")
        for rg in range(2):
            for t in range(2):
                r = B + 32 + rg * 8 + t * 4
                a(f"buffer_load_dwordx4 v[{r}:{r+3}], v{HQ+rg}, s[16:19], s25 offen offset:{128*t}{nt}")
    def scales(h):
        B = BA[h]
        for t in range(2):
            a(f"ds_read_b64 v[{B+8+2*t}:{B+9+2*t}], v{B+5} offset:{64*t}")
            a(f"ds_read_b64 v[{B+12+2*t}:{B+13+2*t}], v{B+5} offset:{14336 + 64*t}")
    WSH = OPT.get("wsh", 2)
    a(f"s_mov_b32 s23, {WSH}\ns_and_b32 s22, s32, 4")
    a("s_min_u32 s14, s4, 6\ns_lshl_b32 s26, s14, 11\ns_mul_i32 s35, s32, 14336\ns_add_u32 s35, s35, s26\ns_mov_b32 m0, s26")
    get_args(a)
    for i, p in enumerate((sSC, sZE)):
        srd(a, 8, p, 16 * F * 2)
        for j in range(2):
            a(f"buffer_load_dwordx4 v{HL}, s[8:11], s35 offen offset:{j*1024} lds")
        if i == 0: a("s_add_u32 m0, s26, 14336")
    srd(a, 16, sQW, D * F * 4)
    start(0)
    start(1)
    srd(a, 8, sWS, SZ_WQ, WS_WQ)
    a(f"s_mul_i32 s27, s32, 56\ns_add_u32 s27, s27, s33\ns_lshl_b32 s27, s27, 8\ns_add_u32 s27, s27, {FA + (WSH + 1) * 1024}")
    get_nonce(a)
    a("s_waitcnt vmcnt(8)\ns_barrier")
    scales(0)
    a("s_waitcnt vmcnt(4)")
    a("s_branch Lh_mid")
    a("Lh_loop:")
    for h in range(2):
        start(1 - h)
        scales(h)
        if h == 0:
            a("s_waitcnt vmcnt(6)")
        else:
            a(f"s_cmp_eq_u32 s23, {WSH + 3}\ns_cselect_b32 s14, 1, s4\ns_cmp_lg_u32 s14, 0")
            a("s_waitcnt vmcnt(6)\ns_barrier")
            a(f"s_cbranch_scc1 Lh_nf{h}")
            flag_store(a, "s27", 136, HL)
            a("s_add_u32 s27, s27, 2048")
            a(f"Lh_nf{h}:")
        if h == 0: a("Lh_mid:")
        a("s_waitcnt lgkmcnt(0)")
        a("\n".join(dq_unpack(BA[h])))
        for rg in range(2):
            a("\n".join(dq_rows(BA[h], rg, f"s{20+h}", 140 + rg)))
    a("s_cmp_lt_u32 s23, 15\ns_cbranch_scc1 Lh_loop")
    a("s_cmp_lg_u32 s4, 0")
    a("s_waitcnt vmcnt(0)\ns_barrier")
    a("s_cbranch_scc1 Lh_nf")
    flag_store(a, "s27", 136, HL)
    a("Lh_nf:")
    stamp(a, 5)
    R0, R1 = OPT.get("pf0", 14), OPT.get("pf1", 14)
    if R0 < R1:
        a("s_and_b32 s14, s32, 1\ns_lshl_b32 s14, s14, 2\ns_add_u32 s14, s14, s33\ns_lshl_b32 s14, s14, 3\ns_add_u32 s14, s14, s4")
        a(f"s_mul_i32 s14, s14, {4*7168}\ns_lshr_b32 s34, s32, 1\ns_mul_i32 s34, s34, 1792\ns_add_u32 s14, s14, s34\ns_add_u32 s14, s14, {R0*256*7168}")
        a(f"v_lshrrev_b32 v1, 4, v0\nv_mul_u32_u24 v1, 7168, v1\nv_and_b32 v2, 15, v0\nv_min_u32 v2, 13, v2\nv_lshl_add_u32 v1, v2, 7, v1")
        srd(a, 16, sV, F * F * 2)
        a(f"s_mov_b32 s23, {R1 - R0}")
        a("Lh_pf:")
        a("buffer_load_dword v2, v1, s[16:19], s14 offen")
        a(f"s_add_u32 s14, s14, {256*7168}\ns_sub_u32 s23, s23, 1\ns_cmp_lg_u32 s23, 0\ns_waitcnt vmcnt(0)\ns_cbranch_scc1 Lh_pf")
    stamp(a, 6)
    a("s_branch L_role")


def gen(opt):
    global OPT
    OPT = opt
    a = Asm()
    a(HDR.rstrip())
    a(f"; @launch grid=(256,1,1) block=(512,1,1) lds={LDS_BYTES}")
    a('.amdgcn_target "amdgcn-amd-amdhsa--gfx950"\n.text')
    a(f".globl {NAME}\n.p2align 8\n.type {NAME},@function\n{NAME}:")
    a("s_cmp_ge_u32 s2, 256\ns_cbranch_scc1 L_end")
    stamp(a, 0)
    a("s_load_dwordx16 s[36:51], s[0:1], 0")
    a(f"s_load_dwordx2 s[{sWS}:{sWS+1}], s[0:1], 64")
    a("v_lshrrev_b32 v1, 6, v0")
    a("v_and_b32 v0, 63, v0")
    a("v_readfirstlane_b32 s4, v1")
    a("s_and_b32 s28, s2, 7\ns_lshr_b32 s29, s2, 3")
    a("s_and_b32 s3, s4, 3")
    a("s_lshr_b32 s6, s28, 1\ns_mov_b32 s35, s29")
    if OPT.get("xmap", 1):
        a("s_sub_u32 s34, s29, 20\ns_cmp_lt_u32 s34, 8\ns_cselect_b32 s34, s6, 0\ns_cmp_eq_u32 s34, 1\ns_cselect_b32 s34, 28, 16\ns_xor_b32 s35, s29, s34")
    a("s_lshl_b32 s6, s6, 3\ns_and_b32 s34, s35, 7\ns_add_u32 s6, s6, s34")
    a("s_and_b32 s7, s28, 1\ns_lshl_b32 s7, s7, 2\ns_lshr_b32 s34, s35, 3\ns_add_u32 s7, s7, s34")
    a("s_and_b32 s32, s28, 1\ns_lshl_b32 s32, s32, 2\ns_and_b32 s33, s29, 3\ns_add_u32 s32, s32, s33")
    a("s_lshr_b32 s33, s28, 1\ns_mul_i32 s33, s33, 7\ns_lshr_b32 s34, s29, 2\ns_add_u32 s33, s33, s34")
    a("s_add_u32 s35, s33, 2\ns_lshr_b32 s35, s35, 2\ns_sub_u32 s54, s34, s35\ns_sub_u32 s35, s33, s34\ns_add_u32 s35, s35, 2\ns_lshr_b32 s35, s35, 2\ns_add_u32 s54, s54, s35")
    a("s_cmp_ge_u32 s54, 4\ns_cselect_b32 s54, 16, s54\ns_and_b32 s35, s33, 3\ns_cmp_eq_u32 s35, 1\ns_cselect_b32 s54, 16, s54")
    a("s_lshr_b32 s35, s28, 1\ns_lshl_b32 s35, s35, 2\ns_add_u32 s54, s54, s35")
    a("s_and_b32 s34, s29, 3\ns_cmp_ge_u32 s29, 28")
    a("s_cselect_b32 s5, 1, 0\ns_cselect_b32 s32, s28, s32\ns_cselect_b32 s33, s34, s33\ns_cselect_b32 s54, 16, s54")
    a("s_cbranch_scc1 L_h")
    a("L_role:")
    a("s_cmp_lt_u32 s4, 4\ns_cbranch_scc1 L_c")
    loader(a)
    a("L_h:")
    helper(a)
    a("L_c:")
    compute(a)
    a("L_end:\ns_endpgm")
    a('.section .rodata,"a"\n.p2align 6')
    a(kd(NAME, 256, 256))
    return a.text()


if __name__ == "__main__":
    opt = dict(kv.split("=") for kv in sys.argv[2:])
    opt = {k: (int(v) if v.lstrip("-").isdigit() else v) for k, v in opt.items()}
    open(sys.argv[1], "w").write(gen(opt))
```

```python
import sys
from asm import Asm, kd

NAME = "standalone__weight_only_int_quip__prompt_kernel"
S, D, F = 2048, 1024, 3584
WS_FLAG = 0
FA, FX, FB, EPOCH, FA1 = 0, 128 << 10, 192 << 10, 252 << 10, 256 << 10
SZ_FLAG = 288 << 10
WS_WQ = 1 << 20
WS_XRF = 13 << 20
WS_WPF = 20 << 20
WS_STAMP = 64 << 20
SZ_W = D * F * 2
SZ_X = S * D * 2
SZ_WQ = 8 * 56 * 24576
SPIN_MAX = 1 << 15

HDR = """; Kernarg layout (72 bytes, ptrs only, base s[0:1]):
"""
sX, sQW, sSC, sZE, sU, sV, sOUT, sWS, sNONCE = 36, 38, 40, 42, 44, 46, 48, 30, 52

OPT = {}


def srd(a, d, b, nbytes, add=0):
    if add:
        a(f"s_add_u32 s{d}, s{b}, {add}")
        a(f"s_addc_u32 s{d+1}, s{b+1}, 0")
    else:
        a(f"s_mov_b32 s{d}, s{b}")
        a(f"s_mov_b32 s{d+1}, s{b+1}")
    a(f"s_mov_b32 s{d+2}, {nbytes}")
    a(f"s_mov_b32 s{d+3}, 0x20000")


def interleave(a, mf, others):
    for i, m in enumerate(mf):
        if isinstance(m, tuple):
            for p in m[0]:
                a(p)
            a(m[1])
        else:
            a(m)
        for o in others.get(i, []):
            a(o)


NSTAMP = 12
def stamp(a, idx):
    if not OPT.get("stamp"): return
    a(f"s_memrealtime s[{60+2*idx}:{61+2*idx}]")
    if idx == 0:
        a("s_memtime s[86:87]")
        for i in range(1, NSTAMP): a(f"s_mov_b32 s{60+2*i}, 0")


def stamp_out(a, loader):
    if not OPT.get("stamp"): return
    a("s_mov_b64 exec, -1\ns_waitcnt vmcnt(0)")
    a(f"s_memrealtime s[84:85]\ns_memtime s[88:89]\ns_waitcnt lgkmcnt(0)")
    a("s_sub_u32 s88, s88, s86")
    srd(a, 92, sWS, 1 << 20, WS_STAMP)
    a(f"s_lshl_b32 s90, s2, 3\ns_add_u32 s90, s90, s3\ns_add_u32 s90, s90, {4 if loader else 0}\ns_lshl_b32 s90, s90, 6")
    a("v_mov_b32 v0, 0")
    a("s_getreg_b32 s89, hwreg(HW_REG_XCC_ID)\ns_getreg_b32 s91, hwreg(HW_REG_HW_ID)")
    vals = [f"s{60+2*i}" for i in range(NSTAMP + 1)] + ["s88", "s89", "s91"]
    for i, v in enumerate(vals):
        a(f"v_mov_b32 v1, {v}\nbuffer_store_dword v1, v0, s[92:95], s90 offen offset:{4*i}")


def trace(a, mode=1):
    if OPT.get("trace") != mode: return
    a("s_waitcnt lgkmcnt(0)\ns_mov_b32 m0, s25\nv_writelane_b32 v100, s96, m0\ns_memrealtime s[96:97]")


def trace_out(a):
    if not OPT.get("trace"): return
    srd(a, 92, sWS, 1 << 20, WS_STAMP + (1 << 20))
    a(f"s_lshl_b32 s90, s2, 2\ns_add_u32 s90, s90, s3\ns_lshl_b32 s90, s90, 8\nv_lshlrev_b32 v1, 2, v0")
    a("buffer_store_dword v100, v1, s[92:95], s90 offen")


def mfma(acc, A, B, zero=False):
    C = "0" if zero else f"v[{acc}:{acc+3}]"
    return f"v_mfma_f32_16x16x32_bf16 v[{acc}:{acc+3}], v[{A}:{A+3}], v[{B}:{B+3}], {C}"


def flag_store(a, soff, vt, lane16):
    for i in range(4): a(f"v_mov_b32 v{vt+i}, s{sNONCE}")
    a("s_mov_b64 exec, 0xff")
    a(f"buffer_store_dwordx4 v[{vt}:{vt+3}], v{lane16}, s[56:59], {soff} offen sc1")
    a("s_mov_b64 exec, -1")


def flag_load(a, soff, n, vidx, vt):
    a(f"s_mov_b64 exec, {hex((1 << n) - 1)}")
    a(f"buffer_load_dword v{vt}, v{vidx}, s[56:59], {soff} offen sc1")
    a("s_mov_b64 exec, -1")


def flag_poll(a, L, soff, n, vidx, vt, loaded=False):
    a(f"s_mov_b32 s53, {SPIN_MAX}")
    if loaded: a(f"s_branch {L}_c")
    a(f"{L}:")
    flag_load(a, soff, n, vidx, vt)
    a("s_sub_u32 s53, s53, 1\ns_cmp_eq_u32 s53, 0")
    a(f"s_cbranch_scc1 {L}_x")
    a("s_waitcnt vmcnt(0)")
    a(f"{L}_c:")
    a(f"v_cmp_ne_u32 vcc, s{sNONCE}, v{vt}")
    a(f"s_and_b32 vcc_lo, vcc_lo, {hex((1 << n) - 1)}")
    a(f"s_cbranch_scc1 {L}")
    a(f"{L}_x:")


def sflag_sample(a):
    a(f"s_add_u32 s12, s{sWS}, s26\ns_addc_u32 s13, s{sWS+1}, 0")
    for q in range(4):
        a(f"s_load_dword s{98+q}, s[12:13], {WS_FLAG + q*256}")


def sflag_test(a):
    a("s_waitcnt lgkmcnt(0)")
    a(f"s_xor_b32 s14, s98, s{sNONCE}")
    for q in range(1, 4):
        a(f"s_xor_b32 s15, s{98+q}, s{sNONCE}\ns_or_b32 s14, s14, s15")


def sflag_check(a, L, vidx, vt):
    sflag_test(a)
    a(f"s_cbranch_scc0 {L}_x")
    flag_poll(a, L, "s26", 4, vidx, vt)


def touch_code(a, L, lo, hi, va, vd, lane="v0", sh=7, n=3, back=True):
    a(f"s_getpc_b64 s[12:13]\n{L}:")
    if back: a(f"s_sub_u32 s12, s12, {L}-{lo}\ns_subb_u32 s13, s13, 0")
    else: a(f"s_add_u32 s12, s12, {lo}-{L}\ns_addc_u32 s13, s13, 0")
    a(f"v_lshlrev_b32 v{va}, {sh}, {lane}")
    for i in range(n):
        a(f"v_min_u32 v{va+1}, {hi}-{lo}-4, v{va}\nglobal_load_dword v{vd}, v{va+1}, s[12:13]\nv_add_u32 v{va}, 8192, v{va}")


def get_args(a):
    a("s_waitcnt lgkmcnt(0)")
    a(f"s_load_dword s{sNONCE}, s[{sWS}:{sWS+1}], {WS_FLAG + EPOCH}")


def get_nonce(a):
    srd(a, 56, sWS, SZ_FLAG, WS_FLAG)
    a(f"s_waitcnt lgkmcnt(0)\ns_mul_i32 s{sNONCE}, s{sNONCE}, 1664525\ns_add_u32 s{sNONCE}, s{sNONCE}, 1013904223")


def dq_addr(a, B, nrg, wreg, sout):
    sh = {2: 3, 4: 2}[nrg]
    a(f"s_lshl_b32 s14, s32, {sh}\ns_add_u32 s14, s14, {wreg}")
    a(f"s_mul_i32 s34, s14, {nrg*8*14336}\ns_lshl_b32 s35, s15, 8\ns_add_u32 s34, s34, s35")
    a(f"s_lshr_b32 s14, s14, {sh-1}\ns_mul_i32 s35, s14, 7168\ns_lshl_b32 s14, s15, 7\ns_add_u32 s35, s35, s14")
    a(f"v_lshrrev_b32 v{B}, 3, v0\nv_and_b32 v{B+5}, 7, v0")
    a(f"v_mul_u32_u24 v{B}, 14336, v{B}\nv_lshl_add_u32 v{B}, v{B+5}, 4, v{B}\nv_add_u32 v{B}, s34, v{B}")
    for rg in range(1, nrg):
        a(f"v_add_u32 v{B+rg}, {rg*8*14336}, v{B}")
    a(f"v_lshl_add_u32 v{B+5}, v{B+5}, 3, s35\nv_lshlrev_b32 v{B+4}, 4, v0")
    a(f"s_mul_i32 {sout}, s32, 56\ns_add_u32 {sout}, {sout}, s15\ns_lshl_b32 {sout}, {sout}, {sh}\ns_add_u32 {sout}, {sout}, {wreg}\ns_lshl_b32 {sout}, {sout}, {14-sh}")


def dq_issue(a, B, rgs, scales=True):
    nt = " nt" if OPT.get("dq_nt", 1) else ""
    if scales:
        for t in range(2):
            a(f"global_load_dwordx2 v[{B+8+2*t}:{B+9+2*t}], v{B+5}, s[{sSC}:{sSC+1}] offset:{64*t}")
            a(f"global_load_dwordx2 v[{B+12+2*t}:{B+13+2*t}], v{B+5}, s[{sZE}:{sZE+1}] offset:{64*t}")
    for rg in rgs:
        for t in range(2):
            r = B + 32 + rg * 8 + t * 4
            a(f"global_load_dwordx4 v[{r}:{r+3}], v{B+rg}, s[{sQW}:{sQW+1}] offset:{128*t}{nt}")


def dq_unpack(B):
    o = []
    for j in range(4):
        o += [f"v_lshlrev_b32 v{B+16+2*j}, 16, v{B+8+j}", f"v_and_b32 v{B+17+2*j}, 0xffff0000, v{B+8+j}"]
        o += [f"v_lshlrev_b32 v{B+24+2*j}, 16, v{B+12+j}", f"v_and_b32 v{B+25+2*j}, 0xffff0000, v{B+12+j}"]
    return o


def dq_rows(B, rg, sout, vaddr=None):
    r = B + 32 + rg * 8
    o = [f"v_cvt_f32_i32 v{r+e}, v{r+e}" for e in range(8)]
    o += [f"v_sub_f32 v{r+e}, v{r+e}, v{B+24+e}" for e in range(8)]
    o += [f"v_cvt_pk_bf16_f32 v{B+8+p}, v{r+2*p}, v{r+2*p+1}" for p in range(4)]
    for p in range(4):
        o += [f"v_lshlrev_b32 v{r+2*p}, 16, v{B+8+p}", f"v_and_b32 v{r+2*p+1}, 0xffff0000, v{B+8+p}"]
    o += [f"v_mul_f32 v{r+e}, v{r+e}, v{B+16+e}" for e in range(8)]
    o += [f"v_cvt_pk_bf16_f32 v{r+p}, v{r+2*p}, v{r+2*p+1}" for p in range(4)]
    o.append(f"buffer_store_dwordx4 v[{r}:{r+3}], v{vaddr or B+4}, s[8:11], {sout} offen offset:{rg*1024} sc1")
    return o


def dq_now(a, B, nrg, sout):
    a(f"s_waitcnt vmcnt({2*nrg})")
    a("\n".join(dq_unpack(B)))
    for rg in range(nrg):
        a(f"s_waitcnt vmcnt({2*nrg - 2 - 2*rg + rg})")
        a("\n".join(dq_rows(B, rg, sout)))


SL = 16384 + 16 * 1056
NSL = 4
CQ0 = 3 * SL
SQ = 16 * 1040
LDS_BYTES = max(NSL * SL, CQ0 + 3 * SQ)

B_FR = 64
B_PA = 128
B_TA = 132
V_L16 = 248
V_T = 240
RD_ORDER = [("P", 0, 0), ("T", 0, 0), ("T", 0, 1), ("T", 1, 0), ("T", 1, 1), ("P", 1, 0), ("T", 2, 0), ("T", 2, 1),
            ("P", 2, 0), ("T", 3, 0), ("T", 3, 1), ("P", 3, 0)]
MF_ORDER = [(0, 0), (0, 1), (1, 1), (1, 0), (1, 2), (0, 2), (2, 2), (2, 1), (2, 0), (2, 3), (1, 3), (0, 3), (3, 3), (3, 2), (3, 1), (3, 0)]


def b_reads(slot, ks, buf):
    out = []
    for kind, i, t in RD_ORDER:
        if kind == "P":
            r = B_FR + buf * 32 + i * 4
            out.append(f"ds_read_b128 v[{r}:{r+3}], v{B_PA + (slot//2)*2 + ks} offset:{(slot%2)*SL + i*2048}")
        else:
            r = B_FR + buf * 32 + 16 + i * 4 + t * 2
            out.append(f"ds_read_b64_tr_b16 v[{r}:{r+1}], v{B_TA + slot//2} offset:{(slot%2)*SL + 16384 + ks*8448 + t*512 + i*32}")
    return out


def b_mfmas(buf, waits):
    out = []
    for n, (rt, c) in enumerate(MF_ORDER):
        m = mfma((rt * 4 + c) * 4, B_FR + buf * 32 + rt * 4, B_FR + buf * 32 + 16 + c * 4)
        out.append(([f"s_waitcnt lgkmcnt({waits[n]})"], m) if n in waits else m)
    return out


def row_read_base(a, dst, t0, wshift):
    a(f"v_and_b32 v{t0}, 15, v0\nv_lshrrev_b32 v{t0+1}, 4, v0")
    a(f"v_lshrrev_b32 v{t0+2}, 1, v{t0}\nv_xor_b32 v{t0+2}, v{t0+2}, v{t0+1}\nv_lshlrev_b32 v{t0+2}, 4, v{t0+2}\nv_lshl_add_u32 v{t0+2}, v{t0}, 7, v{t0+2}")
    a(f"s_lshr_b32 s14, s3, 1\ns_lshl_b32 s14, s14, {wshift}\nv_add_u32 v{dst}, s14, v{t0+2}\nv_xor_b32 v{dst+1}, 64, v{dst}")


def tr_read_base(a, dst, t0):
    a(f"v_bfe_u32 v{t0}, v0, 2, 3\nv_mul_u32_u24 v{t0}, 1056, v{t0}\nv_lshrrev_b32 v{t0+1}, 5, v0\nv_lshl_add_u32 v{t0}, v{t0+1}, 8, v{t0}")
    a(f"v_and_b32 v{t0+1}, 3, v0\nv_lshl_add_u32 v{t0}, v{t0+1}, 3, v{t0}\ns_and_b32 s14, s3, 1\ns_lshl_b32 s14, s14, 7")
    a(f"v_add_u32 v{dst}, s14, v{t0}")


C_FR = 128
C_PA = 224
C_QA = 227
C_WA = 228
C_SA = 229


def c_reads(slot, ks, buf):
    P = [f"ds_read_b128 v[{C_FR+buf*48+rt*4}:{C_FR+buf*48+rt*4+3}], v{C_PA+slot} offset:{ks*16384 + rt*1024}" for rt in range(4)]
    Q = [f"ds_read_b128 v[{C_FR+buf*48+16+c*4}:{C_FR+buf*48+16+c*4+3}], v{C_QA} offset:{slot*SQ + ks*8320 + c*16}" for c in range(8)]
    return [P[0]] + Q + P[1:]


def c_mfmas(buf, zero=False):
    out = []
    for rt in range(4):
        for cc in range(8):
            c = cc if rt % 2 == 0 else 7 - cc
            out.append(mfma((rt * 8 + c) * 4, C_FR + buf * 48 + rt * 4, C_FR + buf * 48 + 16 + c * 4, zero))
    return out


def spread(rd, every=2):
    return {every * i: [r] for i, r in enumerate(rd)}


X_ACC = 136
X_FR = 168
X_PA = 216
X_TA = 220


def x_reads(slot, ks, buf):
    b = X_FR + buf * 24
    P = [f"ds_read_b128 v[{b+rt*4}:{b+rt*4+3}], v{X_PA + (slot//2)*2 + ks} offset:{(slot%2)*SL + rt*2048}" for rt in range(4)]
    T = [f"ds_read_b64_tr_b16 v[{b+16+c*4+t*2}:{b+16+c*4+t*2+1}], v{X_TA + slot//2} offset:{(slot%2)*SL + 16384 + ks*8448 + t*512 + c*32}"
         for c in range(2) for t in range(2)]
    return [T[0], T[1], P[0], T[2], T[3], P[1], P[2], P[3]]


def x_mfmas(buf, waits):
    b = X_FR + buf * 24
    out = []
    for n in range(8):
        rt, c = n >> 1, (n ^ (n >> 1)) & 1
        m = mfma(X_ACC + (rt * 2 + c) * 4, b + 16 + c * 4, b + rt * 4)
        out.append(([f"s_waitcnt lgkmcnt({waits[n]})"], m) if n in waits else m)
    return out


def x_epilogue(a):
    for rt in range(4):
        lo = X_ACC + rt * 8
        t = V_T + (rt & 1) * 4
        for p in range(4):
            a(f"v_cvt_pk_bf16_f32 v{t+p}, v{lo+2*p}, v{lo+2*p+1}")
        a(f"buffer_store_dwordx4 v[{t}:{t+3}], v{V_L16}, s[16:19], s24 offen offset:{rt*1024} sc1")


def own_fx(a):
    a(f"s_lshl_b32 s27, s6, 3\ns_add_u32 s27, s27, s7\ns_lshl_b32 s27, s27, 8\ns_add_u32 s27, s27, {FX}")


def compute(a):
    DQ = 64
    WSH = OPT.get("wsh", 2)
    if WSH == 4:
        a("s_and_b32 s15, s32, 4\ns_xor_b32 s15, s15, s54")
        dq_addr(a, DQ, 4, "s3", "s28")
    else:
        a("s_lshr_b32 s15, s54, 1\ns_and_b32 s29, s54, 1\ns_lshl_b32 s29, s29, 2\ns_add_u32 s29, s29, s3")
        dq_addr(a, DQ, 2, "s29", "s28")
    get_args(a)
    a("s_cmp_ge_u32 s54, 16\ns_cbranch_scc1 Lc_nodq0")
    dq_issue(a, DQ, range(WSH))
    a("Lc_nodq0:")
    srd(a, 8, sWS, SZ_WQ, WS_WQ)
    a(f"v_lshlrev_b32 v{V_L16}, 4, v0")
    row_read_base(a, B_PA, V_T, 13)
    a(f"v_mov_b32 v{X_PA}, v{V_T+2}\nv_xor_b32 v{X_PA+1}, 64, v{X_PA}")
    tr_read_base(a, B_TA, V_T)
    a(f"s_lshl_b32 s14, s3, 6\nv_add_u32 v{X_TA}, s14, v{V_T}")
    for r_ in (B_PA, X_PA):
        a(f"v_add_u32 v{r_+2}, {2*SL}, v{r_}\nv_add_u32 v{r_+3}, {2*SL}, v{r_+1}")
    for r_ in (B_TA, X_TA):
        a(f"v_add_u32 v{r_+1}, {2*SL}, v{r_}")
    a(f"s_lshl_b32 s14, s3, 12\nv_add_u32 v{C_PA}, s14, v{V_L16}\nv_add_u32 v{C_PA+1}, {SL}, v{C_PA}\nv_add_u32 v{C_PA+2}, {2*SL}, v{C_PA}")
    a(f"v_bfe_u32 v{V_T}, v0, 1, 3\nv_mul_u32_u24 v{V_T}, 1040, v{V_T}\nv_lshrrev_b32 v{V_T+1}, 4, v0\nv_lshl_add_u32 v{V_T}, v{V_T+1}, 8, v{V_T}")
    a(f"v_and_b32 v{V_T+2}, 1, v0\nv_lshl_add_u32 v{V_T}, v{V_T+2}, 7, v{V_T}\nv_add_u32 v{C_QA}, {CQ0}, v{V_T}")
    a(f"s_lshr_b32 s14, s3, 1\ns_mul_i32 s14, s14, {SQ}\ns_and_b32 s34, s3, 1\ns_mul_i32 s34, s34, {4*1040}\ns_add_u32 s14, s14, s34\ns_add_u32 s14, s14, {CQ0}")
    a(f"v_add_u32 v{C_WA}, s14, v{V_L16}")
    col_lane(a, V_T + 2, V_T + 3, OPT.get("mix", 0))
    a(f"v_mul_u32_u24 v{V_T+1}, {4*7168}, v{V_T+1}\nv_add_u32 v{C_SA}, v{V_T+2}, v{V_T+1}")
    for i in list(range(64)) + list(range(X_ACC, X_ACC + 32)):
        a(f"v_mov_b32 v{i}, 0")
    a("s_lshr_b32 s24, s6, 2\ns_lshl_b32 s24, s24, 5\ns_lshl_b32 s34, s7, 2\ns_add_u32 s24, s24, s34\ns_add_u32 s24, s24, s3")
    a("s_lshl_b32 s24, s24, 2\ns_and_b32 s34, s6, 3\ns_add_u32 s24, s24, s34\ns_lshl_b32 s24, s24, 12")
    srd(a, 16, sWS, SZ_X, WS_XRF)
    get_nonce(a)
    a("s_cmp_ge_u32 s54, 16\ns_cbranch_scc1 Lc_nodq1")
    dq_now(a, DQ, WSH, "s28")
    a("Lc_nodq1:")
    stamp(a, 1)
    XW = {0: 5, 1: 4, 2: 4, 4: 5, 6: 6}
    a("s_mov_b32 s23, 4\ns_barrier")
    stamp(a, 9)
    for r in x_reads(0, 0, 0): a(r)
    a("s_branch Lx_mid")
    a("Lx_loop:")
    for s in range(NSL):
        a("s_barrier")
        interleave(a, x_mfmas(1, {}), spread(x_reads(s, 0, 0), 1))
        if s == 0: a("Lx_mid:")
        if OPT.get("xfront", 1):
            rd = x_reads(s, 1, 1)
            interleave(a, x_mfmas(0, {0: 5, 1: 5, 2: 6, 4: 9, 6: 8}), {i: rd[2*i:2*i+2] for i in range(4)})
        else:
            interleave(a, x_mfmas(0, XW), spread(x_reads(s, 1, 1), 1))
        XACK = OPT.get("xack", 5)
        if s == XACK - 5: a("s_cmp_eq_u32 s23, 4\ns_cbranch_scc1 Lx_na\ns_waitcnt vmcnt(0)\nLx_na:")
        if s == NSL - 1:
            a("s_sub_u32 s23, s23, 1\ns_cmp_lg_u32 s23, 0")
        a("s_waitcnt vmcnt(0) lgkmcnt(0)" if s == XACK - 1 else "s_waitcnt lgkmcnt(0)")
    a("s_cbranch_scc1 Lx_loop")
    stamp(a, 10)
    a("s_cmp_lg_u32 s5, 0\ns_cbranch_scc1 Lc_h")
    a("s_barrier")
    stamp(a, 2)
    rd = b_reads(0, 0, 0)
    interleave(a, x_mfmas(1, {}), spread(rd[:8], 1))
    for r in rd[8:]: a(r)
    a(f"s_lshl_b32 s25, s32, 2\ns_add_u32 s25, s25, s3\ns_mov_b32 s23, {56 // NSL}\ns_nop 0")
    x_epilogue(a)
    a(f"s_lshr_b32 s34, s3, 1\ns_lshl_b32 s24, s32, 1\ns_add_u32 s24, s24, s34\ns_mul_i32 s24, s24, {2*224*1024}")
    a("s_and_b32 s34, s3, 1\ns_lshl_b32 s35, s33, 1\ns_add_u32 s34, s34, s35\ns_lshl_b32 s34, s34, 12\ns_add_u32 s24, s24, s34")
    srd(a, 16, sWS, SZ_W, WS_WPF)
    a("s_branch Lb_mid")
    a("Lb_loop:")
    for s in range(NSL):
        a("s_barrier")
        rd = b_reads(s, 0, 0)
        LG0 = OPT.get("lg0", 1) or OPT.get("ah", 3) == 3
        interleave(a, b_mfmas(1, {} if LG0 else {0: 4, 6: 6}), {i: [rd[i]] for i in range(12)})
        if s == 0: a("Lb_mid:")
        rd = b_reads(s, 1, 1)
        oth = {i: [rd[i]] for i in range(12)}
        if s == NSL - 1:
            oth[13] = ["s_sub_u32 s23, s23, 1"]
            oth[14] = ["s_cmp_lg_u32 s23, 0"]
        interleave(a, b_mfmas(0, {0: 4, 6: 6}), oth)
        if LG0: a("s_waitcnt vmcnt(0) lgkmcnt(0)" if s == NSL - 1 else "s_waitcnt lgkmcnt(0)")
        elif s == NSL - 1: a("s_waitcnt vmcnt(0)")
    a("s_cbranch_scc1 Lb_loop")
    if not LG0: a("s_waitcnt lgkmcnt(0)")
    a("s_barrier")
    stamp(a, 3)
    def w_out(f):
        pair, o = f >> 2, f & 3
        lo, hi = ((2 * pair) * 4 + o) * 4, ((2 * pair + 1) * 4 + o) * 4
        t = B_FR + f * 4
        r = [f"v_cvt_pk_bf16_f32 v{t}, v{lo}, v{lo+1}", f"v_cvt_pk_bf16_f32 v{t+1}, v{lo+2}, v{lo+3}",
             f"v_cvt_pk_bf16_f32 v{t+2}, v{hi}, v{hi+1}", f"v_cvt_pk_bf16_f32 v{t+3}, v{hi+2}, v{hi+3}",
             f"buffer_store_dwordx4 v[{t}:{t+3}], v{V_L16}, s[16:19], s24 offen offset:{o*1024} sc1"]
        if f == 3: r.append(f"s_add_u32 s24, s24, {224*1024}")
        return r
    last = [mfma((rt * 4 + c) * 4, B_FR + 32 + rt * 4, B_FR + 48 + c * 4) for pair in range(2) for c in range(4) for rt in (2 * pair, 2 * pair + 1)]
    interleave(a, last, {9: w_out(0), 11: w_out(1), 13: w_out(2), 15: w_out(3)})
    for f in range(4, 8):
        a("\n".join(w_out(f)))
    for f in range(8):
        a(f"ds_write_b128 v{C_WA}, v[{B_FR+f*4}:{B_FR+f*4+3}] offset:{(f>>2)*8320 + (f&3)*1040}")
    srd(a, 16, sOUT, S * F * 2)
    a(f"s_lshl_b32 s34, s33, 8\ns_mul_i32 s24, s25, {64*7168}\ns_add_u32 s24, s24, s34")
    a("s_waitcnt lgkmcnt(0)")
    stamp(a, 4)
    TAIL = OPT.get("tail", 1)
    a("s_barrier")
    for r in c_reads(0, 0, 0):
        a(r)
    a(f"s_mov_b32 s23, {4 if TAIL else 5}")
    a("s_waitcnt lgkmcnt(0)")
    interleave(a, c_mfmas(0, zero=True), spread(c_reads(0, 1, 1)))
    a("s_waitcnt vmcnt(0) lgkmcnt(0)")
    stamp(a, 5)
    PEEL = OPT.get("peel", 1)
    a("Lc_loop:")
    for s in (1, 2, 0):
        if s == 2 and PEEL:
            a(f"s_cmp_eq_u32 s23, {4 if TAIL else 5}\ns_cbranch_scc1 Lc_peel")
        a("s_barrier")
        if s == 2 and OPT.get("stamp") and not PEEL:
            a(f"s_cmp_lg_u32 s23, {4 if TAIL else 5}\ns_cbranch_scc1 Lc_ns")
            stamp(a, 6)
            a("Lc_ns:")
        interleave(a, c_mfmas(1), spread(c_reads(s, 0, 0)))
        if s == 2: a("Lc_mid:")
        a("s_waitcnt lgkmcnt(0)")
        oth = spread(c_reads(s, 1, 1))
        if s == 0:
            oth[27] = ["s_sub_u32 s23, s23, 1"]
            oth[29] = ["s_cmp_lg_u32 s23, 0"]
        interleave(a, c_mfmas(0), oth)
        a("s_waitcnt lgkmcnt(0)")
    a("s_cbranch_scc1 Lc_loop")
    a("Lc_tail:")
    ynt = {0: "", 1: " nt", 2: " sc1", 3: " sc0 sc1"}[OPT.get("y_nt", 2)]

    def row_out(rt, r, t):
        o = []
        for p in range(4):
            o.append(f"v_cvt_pk_bf16_f32 v{t+p}, v{(rt*8+2*p)*4+r}, v{(rt*8+2*p+1)*4+r}")
        o.append(f"buffer_store_dwordx4 v[{t}:{t+3}], v{C_SA}, s[16:19], s24 offen{ynt}")
        o.append(f"s_add_u32 s24, s24, {7168 if r < 3 else 13*7168}")
        return o
    if not TAIL:
        stamp(a, 7)
        oth = {}
        for rt in range(2):
            for r in range(4):
                oth[16 + rt * 8 + 2 * r] = row_out(rt, r, C_FR + ((rt * 4 + r) % 8) * 4)
        interleave(a, c_mfmas(1), oth)
        for rt in range(2, 4):
            for r in range(4):
                a("\n".join(row_out(rt, r, C_FR + ((rt * 4 + r) % 8) * 4)))
    else:
        def h_reads(n):
            half, st, ks = n // 6, (n % 6) // 2, n & 1
            rd = c_reads((13 + st) % 3, ks, n & 1)
            P = [rd[0]] + rd[9:]
            return [P[2 * half]] + rd[1:9] + [P[2 * half + 1]]
        def h_mfmas(n):
            m = c_mfmas(n & 1)
            return m[16 * (n // 6):16 * (n // 6) + 16]
        a("s_barrier")
        interleave(a, c_mfmas(1), spread(h_reads(0)))
        outs = [row_out(rt, r, V_T + ((rt * 4 + r) & 1) * 4) for rt in range(2) for r in range(4)]
        for n in range(12):
            a("s_waitcnt lgkmcnt(0)")
            if n in (1, 3): a("s_barrier")
            if n == 11: stamp(a, 7)
            oth = spread(h_reads(n + 1), 1) if n < 11 else {}
            k = {6: [0], 7: [1, 2], 8: [3], 9: [4, 5], 10: [6], 11: [7]}.get(n, [])
            for i, q in enumerate(k):
                o = outs[q]
                pos = 10 + 3 * i
                oth[pos] = o[0:2]; oth[pos + 1] = o[2:4]; oth[pos + 2] = o[4:6]
            interleave(a, h_mfmas(n), oth)
        for rt in range(2, 4):
            for r in range(4):
                a("\n".join(row_out(rt, r, C_FR + ((rt * 4 + r) % 8) * 4)))
    stamp(a, 8)
    a("s_or_b32 s14, s2, s3\ns_cmp_lg_u32 s14, 0\ns_cbranch_scc1 Lc_end")
    a(f"s_mov_b32 s14, {EPOCH}")
    flag_store(a, "s14", V_T, V_L16)
    a("Lc_end:")
    stamp_out(a, False)
    a("s_endpgm")
    if PEEL:
        a("Lc_peel:")
        interleave(a, c_mfmas(1), {})
        a("s_barrier")
        stamp(a, 6)
        for r in c_reads(2, 0, 0):
            a(r)
        a("s_branch Lc_mid")
    a("Lc_h:")
    interleave(a, x_mfmas(1, {}), {})
    a("s_nop 7")
    x_epilogue(a)
    a("s_waitcnt vmcnt(0)\ns_barrier")
    a("s_cmp_lg_u32 s3, 0\ns_cbranch_scc1 Lc_end")
    if OPT.get("warm", 0) & 2: touch_code(a, "L_tc1", NAME, "L_end", 250, 252, f"v{V_L16}", 3)
    own_fx(a)
    flag_store(a, "s27", V_T, V_L16)
    a("s_branch Lc_end")


L_T = 68
L_P = 72
L_TP = 76
L_TT = 77
L_Q = 78
L_L16 = 82
L_FI = 83
L_TMP = 84
L_FL = 92
L_CP = 93
L_CQ = 94


def rot_table(a, n, W, phi, psi, v, pw=0):
    lg = W.bit_length() - 1
    wmin = OPT.get("wmin", 1)
    a(f"s_add_u32 s14, {psi}, {n - wmin}\ns_lshr_b32 s14, s14, {lg}")
    a(f"v_add_u32 v{v+3}, {psi}, v0\nv_lshrrev_b32 v{v+3}, {lg}, v{v+3}\nv_min_u32 v{v+3}, s14, v{v+3}")
    a(f"v_cmp_eq_u32 vcc, s14, v{v+3}")
    a(f"v_lshlrev_b32 v{v}, {lg}, v{v+3}\nv_subrev_u32 v{v}, {psi}, v{v}")
    a(f"v_add_u32 v{v+1}, {W}, v{v}\nv_mov_b32 v{v+2}, {n}\nv_cndmask_b32 v{v+1}, v{v+1}, v{v+2}, vcc")
    a(f"v_max_i32 v{v}, 0, v{v}\nv_sub_u32 v{v+1}, v{v+1}, v{v}")
    a(f"v_mul_u32_u24 v{v+3}, {pw}, v{v+3}")
    a(f"v_add_u32 v{v+3}, {phi}, v{v+3}\nv_and_b32 v{v+3}, {W-1}, v{v+3}\nv_sub_u32 v{v+2}, v0, v{v}\nv_add_u32 v{v+2}, v{v+3}, v{v+2}")
    for i in range(W - 1):
        a(f"v_sub_u32 v{v+3}, v{v+2}, v{v+1}\nv_min_u32 v{v+2}, v{v+2}, v{v+3}")
    a(f"v_add_u32 v{v}, v{v}, v{v+2}")


def col_base(a, dst, tile, mix):
    if mix: a(f"s_lshr_b32 {dst}, {tile}, 2\ns_lshl_b32 {dst}, {dst}, 2\ns_add_u32 {dst}, {dst}, {tile}\ns_lshl_b32 {dst}, {dst}, 7")
    else: a(f"s_lshl_b32 {dst}, {tile}, 8")


def col_lane(a, dst, tmp, mix):
    a(f"v_and_b32 v{dst}, 15, v0\nv_lshlrev_b32 v{dst}, 4, v{dst}")
    if mix: a(f"v_and_b32 v{tmp}, 8, v0\nv_mul_u32_u24 v{tmp}, 48, v{tmp}\nv_add_u32 v{dst}, v{dst}, v{tmp}")


def t_voffs(a, t_row, natural, L_T=L_T, mix=0):
    t = L_TMP
    a(f"v_lshrrev_b32 v{t}, 4, v0\nv_and_b32 v{t+1}, 1, v{t}\nv_lshrrev_b32 v{t}, 1, v{t}")
    if natural:
        a(f"v_lshlrev_b32 v{t+1}, 4, v{t+1}\nv_lshl_add_u32 v{t}, v{t}, 2, v{t+1}")
    else:
        a(f"v_lshlrev_b32 v{t+1}, 3, v{t+1}\nv_lshl_add_u32 v{t}, v{t}, 5, v{t+1}")
    col_lane(a, t + 1, t + 2, mix)
    a(f"v_mul_u32_u24 v{t}, {t_row}, v{t}\nv_add_u32 v{L_T}, v{t+1}, v{t}")
    for j in range(1, 4):
        a(f"v_add_u32 v{L_T+j}, {j*(t_row-1056)}, v{L_T}")


def p_voffs(a, p_row, L_P=L_P):
    t = L_TMP
    a(f"v_lshrrev_b32 v{t}, 3, v0\nv_mul_u32_u24 v{t}, {p_row}, v{t}\nv_lshrrev_b32 v{t+1}, 4, v0\nv_and_b32 v{t+2}, 7, v0\nv_xor_b32 v{t+1}, v{t+1}, v{t+2}")
    a(f"v_lshl_add_u32 v{L_P}, v{t+1}, 4, v{t}\nv_xor_b32 v{L_P+1}, 64, v{L_P}")
    d = 8 * p_row - 1024
    a(f"v_add_u32 v{L_P+2}, {2*d}, v{L_P}\nv_add_u32 v{L_P+3}, {3*d}, v{L_P+1}\nv_add_u32 v{L_P+1}, {d}, v{L_P+1}")


def skip1_adj(a, v):
    a(f"v_lshrrev_b32 v{v+1}, 4, v0\nv_min_u32 v{v}, 1, v{v+1}\nv_lshlrev_b32 v{v}, 8, v{v}")
    a(f"v_add_u32 v{v+1}, 9, v{v+1}\nv_lshrrev_b32 v{v+1}, 2, v{v+1}\nv_lshlrev_b32 v{v+1}, 8, v{v+1}")


def loader(a):
    t = L_TMP + 4
    XT, XP, XTP, XTT = 4, 8, 12, 13
    AH = OPT.get("ah", 3)
    if OPT.get("xs", 2) == 99:
        a("s_and_b32 s34, s28, 1\ns_lshl_b32 s34, s34, 1\ns_lshr_b32 s14, s28, 1\ns_add_u32 s34, s34, s14\ns_lshl_b32 s34, s34, 2")
    else:
        a(f"s_mul_i32 s34, s28, {OPT.get('xs',2)}")
    a(f"s_add_u32 s15, s6, s7\ns_and_b32 s15, s15, 3\ns_sub_u32 s34, s34, s15")
    a(f"v_add_u32 v{t}, s15, v0\nv_add_u32 v{t+1}, 3, v{t}\nv_and_b32 v{t}, 0xfc, v{t}\nv_and_or_b32 v{t}, v{t+1}, 3, v{t}")
    a(f"v_add_u32 v{t}, s34, v{t}\nv_and_b32 v{t}, 15, v{t}")
    a(f"s_lshl_b32 s34, s6, 2\ns_add_u32 s34, s34, s3\ns_lshl_b32 s34, s34, 15\nv_lshl_add_u32 v{XTP}, v{t}, 7, s34")
    a("s_lshr_b32 s34, s3, 1\ns_lshl_b32 s34, s34, 5\ns_and_b32 s14, s3, 1\ns_lshl_b32 s14, s14, 3\ns_add_u32 s34, s34, s14")
    a(f"s_lshl_b32 s34, s34, 11\ns_lshl_b32 s14, s7, 8\ns_add_u32 s34, s34, s14\nv_lshl_add_u32 v{XTT}, v{t}, 17, s34")
    t_voffs(a, 2048, True, XT)
    p_voffs(a, 2048, XP)
    a("s_lshl_b32 s22, s3, 11\ns_mul_i32 s29, s3, 4224\ns_add_u32 s29, s29, 16384")
    a(f"v_readlane_b32 s21, v{XTT}, 0\ns_mov_b32 m0, s29\ns_mov_b32 s25, 0\ns_mov_b32 s28, 0\ns_mov_b32 s55, 0")
    get_args(a)
    stamp(a, 8)
    if OPT.get("trace"): a("v_mov_b32 v100, 0\ns_mov_b32 s96, 0")
    srd(a, 8, sX, SZ_X)
    srd(a, 16, sU, D * D * 2)
    def XTl(j): a(f"buffer_load_dwordx4 v{XT+j}, s[16:19], s21 offen offset:{j*1056} lds")
    def XPl(j): a(f"buffer_load_dwordx4 v{XP+j}, s[8:11], s20 offen offset:{j*1024} lds")
    def xbody(n, hook=False):
        XTl(0)
        a(f"v_readlane_b32 s20, v{XTP}, s25\ns_add_u32 s25, s25, 1")
        if hook:
            a("s_cmp_eq_u32 s25, s54\ns_cbranch_scc1 Lxl_ev")
            a("Lxl_evdone:")
        XTl(1)
        a(f"s_add_u32 s34, s28, s22\ns_add_u32 s28, s28, {SL}")
        XTl(2)
        a(f"s_cmp_eq_u32 s28, {NSL*SL}\ns_cselect_b32 s28, 0, s28")
        XTl(3)
        a(f"s_mov_b32 m0, s34\nv_readlane_b32 s21, v{XTT}, s25\ns_add_u32 s34, s28, s29\ns_cmp_lt_u32 s25, {n}")
        XPl(0)
    def x0():
        W = OPT.get("W", 4)
        a(f"s_mul_i32 s34, s32, {OPT.get('pm',0)}\ns_mul_i32 s35, s33, {OPT.get('pn',0)}\ns_add_u32 s34, s34, s35\ns_add_u32 s34, s34, {OPT.get('p0',3)}")
        a(f"s_mul_i32 s35, s33, {OPT.get('qn',1)}\ns_mul_i32 s14, s32, {OPT.get('qm',1)}\ns_add_u32 s35, s35, s14\ns_and_b32 s35, s35, {W-1}")
        rot_table(a, 56, W, "s34", "s35", t, OPT.get("pw", 0))
        a(f"s_and_b32 s34, s32, 4\nv_xor_b32 v{t}, s34, v{t}")
        CS = 24576 if OPT.get("skip1") else 16384
        a(f"s_mul_i32 s34, s32, {56*CS}\ns_mul_i32 s35, s3, {CS//4}\ns_add_u32 s34, s34, s35")
        a(f"v_mul_u32_u24 v{L_TP}, {CS}, v{t}\nv_add_u32 v{L_TP}, s34, v{L_TP}")
        a("s_lshr_b32 s34, s3, 1\ns_lshl_b32 s34, s34, 4\ns_and_b32 s35, s3, 1\ns_lshl_b32 s35, s35, 2\ns_add_u32 s34, s34, s35")
        col_base(a, "s35", "s33", OPT.get("mix", 0))
        a("s_mul_i32 s34, s34, 7168\ns_add_u32 s34, s34, s35")
        a(f"v_mul_u32_u24 v{t}, {64*7168}, v{t}\nv_add_u32 v{L_TT}, s34, v{t}")
        t_voffs(a, 7168, False, mix=OPT.get("mix", 0))
        p_voffs(a, 128)
        if OPT.get("skip1"):
            skip1_adj(a, L_TMP)
            a(f"v_add_u32 v{L_P}, v{L_P}, v{L_TMP}\nv_add_u32 v{L_P+1}, v{L_P+1}, v{L_TMP+1}")
            a(f"v_add_u32 v{L_P+2}, 1024, v{L_P}\nv_add_u32 v{L_P+3}, 1024, v{L_P+1}")
        a(f"v_lshrrev_b32 v{t}, 1, v0\nv_add_u32 v{t+1}, 3, v{t}\nv_xor_b32 v{t+1}, s32, v{t+1}\nv_and_b32 v{t+1}, 4, v{t+1}")
        a(f"v_add_u32 v{t}, s32, v{t}\nv_and_or_b32 v{t}, v{t}, 3, v{t+1}\nv_and_b32 v{t+1}, 1, v0\nv_lshl_add_u32 v{t}, v{t}, 1, v{t+1}")
        a(f"s_lshl_b32 s34, s32, 19\ns_lshl_b32 s35, s3, 13\ns_add_u32 s34, s34, s35\nv_lshl_add_u32 v{L_CP}, v{t}, 15, s34")
        a(f"s_lshr_b32 s34, s3, 1\ns_mul_i32 s34, s34, {224*1024}\ns_and_b32 s35, s3, 1\ns_lshl_b32 s14, s33, 1\ns_add_u32 s35, s35, s14\ns_lshl_b32 s35, s35, 12\ns_add_u32 s34, s34, s35")
        a(f"v_mul_u32_u24 v{t}, {2*224*1024}, v{t}\nv_add_u32 v{L_CQ}, s34, v{t}")
        srd(a, 40, sWS, SZ_X, WS_XRF)
        srd(a, 48, sWS, SZ_W + 64, WS_WPF - 64)
        a(f"v_lshlrev_b32 v{L_L16}, 4, v0\nv_lshlrev_b32 v{L_FI}, 8, v0")
        for j in range(4):
            a(f"v_add_u32 v{L_Q+j}, {64 - 16*j}, v{L_L16}")
        a(f"s_lshl_b32 s26, s32, 12\ns_add_u32 s26, s26, {FA1}\ns_lshl_b32 s27, s54, 8\ns_add_u32 s27, s27, s26")
        get_nonce(a)
        a(f"s_cmp_lt_u32 s54, 16\ns_cselect_b32 s54, {OPT.get('xack', 5) + AH + 1}, 255\ns_cmp_eq_u32 s3, 1\ns_cselect_b32 s54, s54, 255\ns_cselect_b32 s55, 2, 0")
        a(f"s_or_b32 s14, s3, s5\ns_cmp_eq_u32 s14, 0\ns_cselect_b32 s54, 13, s54")
    xbody(16)
    XPl(1)
    a("s_mov_b32 m0, s34")
    x0()
    a("s_branch Lxl_go")
    a("Lxl_loop:")
    XPl(1)
    trace(a, 2)
    a("s_mov_b32 m0, s34")
    if AH == 3: a("s_cmp_lt_u32 s25, 3\ns_cbranch_scc1 Lxl_go")
    a(f"s_waitcnt vmcnt({6*(AH-1)})\ns_barrier")
    a("Lxl_go:")
    xbody(16, True)
    a("s_cbranch_scc1 Lxl_loop")
    XPl(1)
    stamp(a, 1)
    a("s_cmp_lg_u32 s5, 0\ns_cbranch_scc1 Ll_h")
    srd(a, 8, sWS, SZ_WQ, WS_WQ)
    srd(a, 16, sV, F * F * 2)
    a("s_lshl_b32 s22, s3, 12")

    AUX = {0: "", 1: " sc1", 2: " sc0 sc1", 3: " sc0"}
    PAUX, TAUX = AUX[OPT.get("psc1", 1)], AUX[OPT.get("tsc1", 0)]
    def T(j): a(f"buffer_load_dwordx4 v{L_T+j}, s[16:19], s21 offen offset:{j*1056}{TAUX} lds")
    def P(j): a(f"buffer_load_dwordx4 v{L_P+j}, s[8:11], s20 offen offset:{j*1024}{PAUX} lds")
    a(f"v_readlane_b32 s21, v{L_TT}, 0\nv_readlane_b32 s20, v{L_TP}, 0\ns_mov_b32 m0, s29")
    WSH = OPT.get("wsh", 2)
    a(f"s_mul_i32 s26, s32, {14*1024}\ns_add_u32 s26, s26, {FA + (WSH - 1) * 1024}")
    a(f"s_cmp_eq_u32 s3, 0\ns_cselect_b32 s54, {4*WSH - 4}, 255\ns_cmp_eq_u32 s3, 1\ns_cselect_b32 s54, 8, s54\ns_mov_b32 s55, 0")
    if AH == 3:
        a("s_waitcnt vmcnt(12)\ns_barrier")
        for j in range(4): T(j)
        a(f"s_mov_b32 m0, s22\nv_readlane_b32 s21, v{L_TT}, 1")
        for j in range(4): P(j)
        a(f"s_add_u32 m0, s29, {SL}\ns_mov_b32 s25, 1\ns_mov_b32 s28, {SL}")
        a("s_waitcnt vmcnt(14)\ns_barrier")
    else:
        a("s_mov_b32 s25, 0")
        a("s_waitcnt vmcnt(6)\ns_barrier")
    a("s_branch Lw_go")

    def head():
        P(3)
        trace(a)
        a("s_add_u32 m0, s28, s29")
        a(f"s_waitcnt vmcnt({8*(AH-1)})\ns_barrier")
    def first():
        T(0)
        a(f"v_readlane_b32 s20, v{L_TP}, s25\ns_add_u32 s25, s25, 1")
    def rest(fill=()):
        n = (len(fill) + 6) // 7
        g = ["\n".join(fill[i*n:(i+1)*n]) for i in range(7)]
        def gap(i):
            if g[i]: a(g[i])
        gap(0)
        T(1)
        a(f"s_add_u32 s34, s28, s22\ns_add_u32 s28, s28, {SL}")
        gap(1)
        T(2)
        a(f"s_cmp_eq_u32 s28, {NSL*SL}\ns_cselect_b32 s28, 0, s28")
        gap(2)
        T(3)
        a(f"s_mov_b32 m0, s34\nv_readlane_b32 s21, v{L_TT}, s25")
        gap(3)
        P(0)
        gap(4)
        P(1)
        gap(5)
        a(f"s_cmp_lt_u32 s25, 56")
        P(2)
        gap(6)
    a("Lw_loop:")
    head()
    a("Lw_go:")
    first()
    a(f"s_cmp_eq_u32 s25, s54\ns_cbranch_scc1 Lw_ev")
    a("Lw_evdone:")
    rest()
    a("s_cbranch_scc1 Lw_loop")
    P(3)
    stamp(a, 4)
    a(f"s_lshl_b32 s22, s3, 13\ns_mul_i32 s29, s3, {4*1040}\ns_add_u32 s29, s29, {CQ0}")
    def PC(st, slot):
        a(f"v_readlane_b32 s20, v{L_CP}, {st}\ns_add_u32 m0, s22, {slot}\ns_nop 3")
        for j in range(8):
            if j == 4: a("s_add_u32 m0, m0, 4096\ns_add_u32 s20, s20, 4096")
            a(f"buffer_load_dwordx4 v{L_L16}, s[40:43], s20 offen offset:{(j&3)*1024} sc1 lds")
    def QC(st, slot):
        a(f"v_readlane_b32 s21, v{L_CQ}, {st}\ns_add_u32 m0, s29, {slot}\ns_nop 3")
        for j in range(4):
            a(f"buffer_load_dwordx4 v{L_Q+j}, s[48:51], s21 offen offset:{j*1040} sc1 lds")
    for i in range(AH):
        a(f"s_waitcnt vmcnt({8*(AH-1)})\ns_barrier")
        PC(i, i * SL)
    a("s_barrier")
    a(f"s_lshl_b32 s26, s33, 3\ns_add_u32 s26, s26, s32\ns_lshl_b32 s27, s26, 8\ns_add_u32 s27, s27, {FB}")
    a(f"s_andn2_b32 s26, s27, 0x300\ns_xor_b32 s26, s26, 0x400")
    a(f"s_waitcnt vmcnt({8*(AH-1)})\ns_barrier")
    sflag_sample(a)
    if AH == 2: PC(2, 2 * SL)
    a("s_cmp_lg_u32 s3, 0")
    a("s_waitcnt vmcnt(8)\ns_barrier")
    a("s_cbranch_scc1 Lw_nfb")
    flag_store(a, "s27", L_TMP, L_L16)
    a("Lw_nfb:")
    stamp(a, 6)
    a(f"s_mov_b32 s25, 4\ns_mov_b32 s28, {SL}\ns_mov_b32 s27, {SQ}")
    a("s_cmp_eq_u32 s3, 0\ns_cselect_b32 s54, 9, 255")
    sflag_test(a)
    a("s_cbranch_scc1 Lw_late")
    QC(2, 2 * SQ)
    QC(3, 0)
    PC(3, 0)
    a("s_waitcnt vmcnt(12)")
    a("s_branch Lw_c2")
    a("Lw_late:")
    if OPT.get("latepc", 0):
        PC(3, 0)
        a(f"s_waitcnt vmcnt({OPT.get('fbw', 0)})")
    stamp(a, 5)
    flag_poll(a, "Lw_pb", "s26", 4, L_FI, L_FL)
    stamp(a, 7)
    QC(2, 2 * SQ)
    QC(3, 0)
    if OPT.get("latepc", 0):
        a("s_waitcnt vmcnt(4)")
    else:
        PC(3, 0)
        a("s_waitcnt vmcnt(12)")
    a("Lw_c2:")
    a("s_xor_b32 s26, s26, 0x400")
    a("s_barrier")
    a("Lw_cloop:")
    a("s_cmp_lg_u32 s25, s54\ns_cbranch_scc1 Lw_c3")
    if OPT.get("warm", 0) & 4: touch_code(a, "L_tc2", "Lc_tail", "Lc_end", 250, 252, n=1, back=False)
    sflag_sample(a)
    a("Lw_c3:")
    QC("s25", "s27")
    PC("s25", "s28")
    a(f"s_add_u32 s27, s27, {SQ}\ns_add_u32 s28, s28, {SL}\ns_cmp_eq_u32 s28, {3*SL}\ns_cselect_b32 s28, 0, s28\ns_cselect_b32 s27, 0, s27")
    a("s_cmp_lg_u32 s25, s54\ns_cbranch_scc1 Lw_pc_x")
    sflag_check(a, "Lw_pc", L_FI, L_FL)
    a("s_add_u32 s25, s25, 1\ns_cmp_lt_u32 s25, 16")
    a("s_waitcnt vmcnt(12)\ns_barrier")
    a("s_cbranch_scc1 Lw_cloop")
    a("s_waitcnt vmcnt(0)\ns_barrier")
    trace_out(a)
    stamp_out(a, True)
    a("s_endpgm")
    def events(L, done, evs):
        a(f"{L}:")
        for i, ev in enumerate(evs):
            if i + 1 < len(evs): a(f"s_cmp_lg_u32 s55, {i}\ns_cbranch_scc1 {L}{i+1}")
            a(f"s_mov_b32 s55, {i+1}")
            ev()
            a(f"s_branch {done}")
            if i + 1 < len(evs): a(f"{L}{i+1}:")

    a("Lw_ev:")
    a("s_cmp_lg_u32 s3, 0\ns_cbranch_scc1 Lw_evx")
    a("s_bitcmp1_b32 s25, 0\ns_cbranch_scc1 Lw_evc")
    a("s_add_u32 s26, s26, 2048\ns_add_u32 s54, s54, 1")
    sflag_sample(a)
    a("s_branch Lw_evdone")
    a("Lw_evc:")
    sflag_check(a, "Lw_pa", L_FI, L_FL)
    a("s_add_u32 s54, s54, 7\ns_cmp_gt_u32 s54, 48\ns_cselect_b32 s54, 255, s54")
    a("s_branch Lw_evdone")
    def b0():
        own_fx(a)
        flag_store(a, "s27", L_TMP, L_L16)
        a("s_mov_b32 s54, 52")
    def b1():
        a(f"s_lshl_b32 s26, s32, 13\ns_add_u32 s26, s26, {FX}\ns_mov_b32 s54, 55")
        flag_load(a, "s26", 32, L_FI, L_FL)
    def b2():
        flag_poll(a, "Lw_px", "s26", 32, L_FI, L_FL, loaded=True)
        a("s_mov_b32 s54, 255")
    events("Lw_evx", "Lw_evdone", [b0, b1, b2])

    def x1():
        flag_load(a, "s26", 16, L_FI, L_FL)
        a("s_mov_b32 s54, 16")
    def x2():
        stamp(a, 11)
        flag_poll(a, "Lw_pa0", "s26", 16, L_FI, L_FL, loaded=True)
        stamp(a, 3)
        a("s_mov_b32 s54, 255")
    def x3():
        flag_store(a, "s27", L_TMP, L_L16)
        stamp(a, 2)
        a("s_mov_b32 s54, 255")
    events("Lxl_ev", "Lxl_evdone", [x1, x2, x3])

    a("Ll_h:")
    for i in range(AH):
        a(f"s_waitcnt vmcnt({6*(AH-1-i)})\ns_barrier")
    stamp_out(a, True)
    a("s_endpgm")


def helper(a):
    BA = (4, 68)
    HQ, HS, HL = 132, 134, 135
    nt = " nt" if OPT.get("dq_nt", 1) else ""
    a("s_lshl_b32 s14, s32, 3\ns_add_u32 s14, s14, s4")
    a(f"s_mul_i32 s34, s14, {16*14336}\nv_lshrrev_b32 v1, 3, v0\nv_and_b32 v2, 7, v0")
    a(f"v_mul_u32_u24 v1, 14336, v1\nv_lshl_add_u32 v1, v2, 4, v1\nv_add_u32 v{HQ}, s34, v1\nv_add_u32 v{HQ+1}, {8*14336}, v{HQ}")
    a(f"s_lshr_b32 s34, s4, 2\ns_mul_i32 s34, s34, 7168\nv_lshl_add_u32 v{HS}, v2, 3, s34\nv_lshlrev_b32 v{HL}, 4, v0")
    CS = 24576 if OPT.get("skip1") else 16384
    if OPT.get("skip1"): skip1_adj(a, 140)
    else: a("v_mov_b32 v140, 0\nv_mov_b32 v141, 0")
    a(f"v_add_u32 v140, v140, v{HL}\nv_add_u32 v141, v141, v{HL}")
    a(f"s_mul_i32 s24, s32, {56*CS}\ns_mul_i32 s34, s4, {CS//8}\ns_add_u32 s24, s24, s34")
    def start(h):
        B = BA[h]
        a("s_add_u32 s15, s33, s23\ns_and_b32 s15, s15, 3\ns_lshl_b32 s14, s23, 2\ns_add_u32 s15, s15, s14\ns_xor_b32 s15, s15, s22\ns_min_u32 s15, s15, 55\ns_add_u32 s23, s23, 1")
        a(f"s_lshl_b32 s25, s15, 8\ns_mul_i32 s14, s15, {CS}\ns_add_u32 s{20+h}, s24, s14\ns_lshl_b32 s14, s15, 7\nv_add_u32 v{B+5}, s14, v{HS}")
        for rg in range(2):
            for t in range(2):
                r = B + 32 + rg * 8 + t * 4
                a(f"buffer_load_dwordx4 v[{r}:{r+3}], v{HQ+rg}, s[16:19], s25 offen offset:{128*t}{nt}")
    def scales(h):
        B = BA[h]
        for t in range(2):
            a(f"ds_read_b64 v[{B+8+2*t}:{B+9+2*t}], v{B+5} offset:{64*t}")
            a(f"ds_read_b64 v[{B+12+2*t}:{B+13+2*t}], v{B+5} offset:{14336 + 64*t}")
    WSH = OPT.get("wsh", 2)
    a(f"s_mov_b32 s23, {WSH}\ns_and_b32 s22, s32, 4")
    a("s_min_u32 s14, s4, 6\ns_lshl_b32 s26, s14, 11\ns_mul_i32 s35, s32, 14336\ns_add_u32 s35, s35, s26\ns_mov_b32 m0, s26")
    get_args(a)
    for i, p in enumerate((sSC, sZE)):
        srd(a, 8, p, 16 * F * 2)
        for j in range(2):
            a(f"buffer_load_dwordx4 v{HL}, s[8:11], s35 offen offset:{j*1024} lds")
        if i == 0: a("s_add_u32 m0, s26, 14336")
    srd(a, 16, sQW, D * F * 4)
    start(0)
    start(1)
    srd(a, 8, sWS, SZ_WQ, WS_WQ)
    a(f"s_mul_i32 s27, s32, 56\ns_add_u32 s27, s27, s33\ns_lshl_b32 s27, s27, 8\ns_add_u32 s27, s27, {FA + (WSH + 1) * 1024}")
    get_nonce(a)
    a("s_waitcnt vmcnt(8)\ns_barrier")
    scales(0)
    a("s_waitcnt vmcnt(4)")
    a("s_branch Lh_mid")
    a("Lh_loop:")
    for h in range(2):
        start(1 - h)
        scales(h)
        if h == 0:
            a("s_waitcnt vmcnt(6)")
        else:
            a(f"s_cmp_eq_u32 s23, {WSH + 3}\ns_cselect_b32 s14, 1, s4\ns_cmp_lg_u32 s14, 0")
            a("s_waitcnt vmcnt(6)\ns_barrier")
            a(f"s_cbranch_scc1 Lh_nf{h}")
            flag_store(a, "s27", 136, HL)
            a("s_add_u32 s27, s27, 2048")
            a(f"Lh_nf{h}:")
        if h == 0: a("Lh_mid:")
        a("s_waitcnt lgkmcnt(0)")
        a("\n".join(dq_unpack(BA[h])))
        for rg in range(2):
            a("\n".join(dq_rows(BA[h], rg, f"s{20+h}", 140 + rg)))
    a("s_cmp_lt_u32 s23, 15\ns_cbranch_scc1 Lh_loop")
    a("s_cmp_lg_u32 s4, 0")
    a("s_waitcnt vmcnt(0)\ns_barrier")
    a("s_cbranch_scc1 Lh_nf")
    flag_store(a, "s27", 136, HL)
    a("Lh_nf:")
    stamp(a, 5)
    R0, R1 = OPT.get("pf0", 14), OPT.get("pf1", 14)
    if R0 < R1:
        a("s_and_b32 s14, s32, 1\ns_lshl_b32 s14, s14, 2\ns_add_u32 s14, s14, s33\ns_lshl_b32 s14, s14, 3\ns_add_u32 s14, s14, s4")
        a(f"s_mul_i32 s14, s14, {4*7168}\ns_lshr_b32 s34, s32, 1\ns_mul_i32 s34, s34, 1792\ns_add_u32 s14, s14, s34\ns_add_u32 s14, s14, {R0*256*7168}")
        a(f"v_lshrrev_b32 v1, 4, v0\nv_mul_u32_u24 v1, 7168, v1\nv_and_b32 v2, 15, v0\nv_min_u32 v2, 13, v2\nv_lshl_add_u32 v1, v2, 7, v1")
        srd(a, 16, sV, F * F * 2)
        a(f"s_mov_b32 s23, {R1 - R0}")
        a("Lh_pf:")
        a("buffer_load_dword v2, v1, s[16:19], s14 offen")
        a(f"s_add_u32 s14, s14, {256*7168}\ns_sub_u32 s23, s23, 1\ns_cmp_lg_u32 s23, 0\ns_waitcnt vmcnt(0)\ns_cbranch_scc1 Lh_pf")
    stamp(a, 6)
    a("s_branch L_role")


def gen(opt):
    global OPT
    OPT = opt
    a = Asm()
    a(HDR.rstrip())
    a(f"; @launch grid=(256,1,1) block=(512,1,1) lds={LDS_BYTES}")
    a('.amdgcn_target "amdgcn-amd-amdhsa--gfx950"\n.text')
    a(f".globl {NAME}\n.p2align 8\n.type {NAME},@function\n{NAME}:")
    a("s_cmp_ge_u32 s2, 256\ns_cbranch_scc1 L_end")
    stamp(a, 0)
    a("s_load_dwordx16 s[36:51], s[0:1], 0")
    a(f"s_load_dwordx2 s[{sWS}:{sWS+1}], s[0:1], 64")
    a("v_lshrrev_b32 v1, 6, v0")
    a("v_and_b32 v0, 63, v0")
    a("v_readfirstlane_b32 s4, v1")
    a("s_and_b32 s28, s2, 7\ns_lshr_b32 s29, s2, 3")
    a("s_and_b32 s3, s4, 3")
    if OPT.get("warm", 0) & 1:
        a("s_cmp_lg_u32 s4, 3\ns_cbranch_scc1 L_nw")
        touch_code(a, "L_tc0", NAME, "L_end", 250, 252)
        a("L_nw:")
    a("s_lshr_b32 s6, s28, 1\ns_mov_b32 s35, s29")
    if OPT.get("xmap", 0):
        a("s_sub_u32 s34, s29, 20\ns_cmp_lt_u32 s34, 8\ns_cselect_b32 s34, s6, 0\ns_cmp_eq_u32 s34, 1\ns_cselect_b32 s34, 28, 16\ns_xor_b32 s35, s29, s34")
    a("s_lshl_b32 s6, s6, 3\ns_and_b32 s34, s35, 7\ns_add_u32 s6, s6, s34")
    a("s_and_b32 s7, s28, 1\ns_lshl_b32 s7, s7, 2\ns_lshr_b32 s34, s35, 3\ns_add_u32 s7, s7, s34")
    a("s_and_b32 s32, s28, 1\ns_lshl_b32 s32, s32, 2\ns_and_b32 s33, s29, 3\ns_add_u32 s32, s32, s33")
    a("s_lshr_b32 s33, s28, 1\ns_mul_i32 s33, s33, 7\ns_lshr_b32 s34, s29, 2\ns_add_u32 s33, s33, s34")
    a("s_add_u32 s35, s33, 2\ns_lshr_b32 s35, s35, 2\ns_sub_u32 s54, s34, s35\ns_sub_u32 s35, s33, s34\ns_add_u32 s35, s35, 2\ns_lshr_b32 s35, s35, 2\ns_add_u32 s54, s54, s35")
    a("s_cmp_ge_u32 s54, 4\ns_cselect_b32 s54, 16, s54\ns_and_b32 s35, s33, 3\ns_cmp_eq_u32 s35, 1\ns_cselect_b32 s54, 16, s54")
    a("s_lshr_b32 s35, s28, 1\ns_lshl_b32 s35, s35, 2\ns_add_u32 s54, s54, s35")
    a("s_and_b32 s34, s29, 3\ns_cmp_ge_u32 s29, 28")
    a("s_cselect_b32 s5, 1, 0\ns_cselect_b32 s32, s28, s32\ns_cselect_b32 s33, s34, s33\ns_cselect_b32 s54, 16, s54")
    a("s_cbranch_scc1 L_h")
    a("L_role:")
    a("s_cmp_lt_u32 s4, 4\ns_cbranch_scc1 L_c")
    loader(a)
    a("L_h:")
    helper(a)
    a("L_c:")
    compute(a)
    a("L_end:\ns_endpgm")
    a('.section .rodata,"a"\n.p2align 6')
    a(kd(NAME, 256, 256))
    return a.text()


if __name__ == "__main__":
    opt = dict(kv.split("=") for kv in sys.argv[2:])
    opt = {k: (int(v) if v.lstrip("-").isdigit() else v) for k, v in opt.items()}
    open(sys.argv[1], "w").write(gen(opt))
```

```python
import sys
from asm import Asm, kd

NAME = "standalone__weight_only_int_quip__prompt_kernel"
S, D, F = 2048, 1024, 3584
WS_FLAG = 0
FA, FX, FB, EPOCH, FA1 = 0, 128 << 10, 192 << 10, 252 << 10, 256 << 10
SZ_FLAG = 288 << 10
WS_WQ = 1 << 20
WS_XRF = 13 << 20
WS_WPF = 20 << 20
WS_STAMP = 64 << 20
SZ_W = D * F * 2
SZ_X = S * D * 2
SZ_WQ = 8 * 56 * 24576
SPIN_MAX = 1 << 15

HDR = """; Kernarg layout (72 bytes, ptrs only, base s[0:1]):
"""
sX, sQW, sSC, sZE, sU, sV, sOUT, sWS, sNONCE = 36, 38, 40, 42, 44, 46, 48, 30, 52

OPT = {}


def srd(a, d, b, nbytes, add=0):
    if add:
        a(f"s_add_u32 s{d}, s{b}, {add}")
        a(f"s_addc_u32 s{d+1}, s{b+1}, 0")
    else:
        a(f"s_mov_b32 s{d}, s{b}")
        a(f"s_mov_b32 s{d+1}, s{b+1}")
    a(f"s_mov_b32 s{d+2}, {nbytes}")
    a(f"s_mov_b32 s{d+3}, 0x20000")


def interleave(a, mf, others):
    for i, m in enumerate(mf):
        if isinstance(m, tuple):
            for p in m[0]:
                a(p)
            a(m[1])
        else:
            a(m)
        for o in others.get(i, []):
            a(o)


class Sched:
    def __init__(self, a):
        self.a, self.q = a, []
    def read(self, r):
        self.a(r[0]); self.q.append(r[1])
    def need(self, regs):
        idx = [i for i, d in enumerate(self.q) if d in regs]
        if idx:
            n = min(len(self.q) - 1 - idx[-1], 15)
            self.a(f"s_waitcnt lgkmcnt({n})")
            self.q = self.q[len(self.q) - n:] if n else []
    def drain(self, extra=""):
        self.a(f"s_waitcnt {extra}lgkmcnt(0)"); self.q = []
    def run(self, mf, reads=(), fill=None, every=1, group=1):
        reads = list(reads); nxt = 0
        for i, (m, A, B) in enumerate(mf):
            if i % group == 0:
                self.need({x for mm in mf[i:i + group] for x in mm[1:]})
            self.a(m)
            if reads and i >= nxt:
                k = next((k for k, r in enumerate(reads) if r[2] <= i), None)
                if k is not None:
                    self.read(reads.pop(k)); nxt = i + every
            for o in (fill or {}).get(i, []): self.a(o)
        for r in reads: self.read(r)


def chain(acc, A, B, rts, cs, zero=False):
    out = []
    for n, rt in enumerate(rts):
        for c in (cs if n % 2 == 0 else cs[::-1]):
            for ks in range(2):
                out.append((mfma(acc(rt, c), A(rt, ks), B(c, ks), zero and ks == 0), A(rt, ks), B(c, ks)))
    return out


NSTAMP = 12
def stamp(a, idx):
    if not OPT.get("stamp"): return
    a(f"s_memrealtime s[{60+2*idx}:{61+2*idx}]")
    if idx == 0:
        a("s_memtime s[86:87]")
        for i in range(1, NSTAMP): a(f"s_mov_b32 s{60+2*i}, 0")


def stamp_out(a, loader):
    if not OPT.get("stamp"): return
    a("s_mov_b64 exec, -1\ns_waitcnt vmcnt(0)")
    a(f"s_memrealtime s[84:85]\ns_memtime s[88:89]\ns_waitcnt lgkmcnt(0)")
    a("s_sub_u32 s88, s88, s86")
    srd(a, 92, sWS, 1 << 20, WS_STAMP)
    a(f"s_lshl_b32 s90, s2, 3\ns_add_u32 s90, s90, s3\ns_add_u32 s90, s90, {4 if loader else 0}\ns_lshl_b32 s90, s90, 6")
    a("v_mov_b32 v0, 0")
    a("s_getreg_b32 s89, hwreg(HW_REG_XCC_ID)\ns_getreg_b32 s91, hwreg(HW_REG_HW_ID)")
    vals = [f"s{60+2*i}" for i in range(NSTAMP + 1)] + ["s88", "s89", "s91"]
    for i, v in enumerate(vals):
        a(f"v_mov_b32 v1, {v}\nbuffer_store_dword v1, v0, s[92:95], s90 offen offset:{4*i}")


def trace(a, mode=1):
    if OPT.get("trace") != mode: return
    a("s_waitcnt lgkmcnt(0)\ns_mov_b32 m0, s25\nv_writelane_b32 v100, s96, m0\ns_memrealtime s[96:97]")


def trace_out(a):
    if not OPT.get("trace"): return
    srd(a, 92, sWS, 1 << 20, WS_STAMP + (1 << 20))
    a(f"s_lshl_b32 s90, s2, 2\ns_add_u32 s90, s90, s3\ns_lshl_b32 s90, s90, 8\nv_lshlrev_b32 v1, 2, v0")
    a("buffer_store_dword v100, v1, s[92:95], s90 offen")


def mfma(acc, A, B, zero=False):
    C = "0" if zero else f"v[{acc}:{acc+3}]"
    return f"v_mfma_f32_16x16x32_bf16 v[{acc}:{acc+3}], v[{A}:{A+3}], v[{B}:{B+3}], {C}"


def flag_store(a, soff, vt, lane16):
    for i in range(4): a(f"v_mov_b32 v{vt+i}, s{sNONCE}")
    a("s_mov_b64 exec, 0xff")
    a(f"buffer_store_dwordx4 v[{vt}:{vt+3}], v{lane16}, s[56:59], {soff} offen sc1")
    a("s_mov_b64 exec, -1")


def flag_load(a, soff, n, vidx, vt):
    a(f"s_mov_b64 exec, {hex((1 << n) - 1)}")
    a(f"buffer_load_dword v{vt}, v{vidx}, s[56:59], {soff} offen sc1")
    a("s_mov_b64 exec, -1")


def flag_poll(a, L, soff, n, vidx, vt, loaded=False):
    a(f"s_mov_b32 s53, {SPIN_MAX}")
    if loaded: a(f"s_branch {L}_c")
    a(f"{L}:")
    flag_load(a, soff, n, vidx, vt)
    a("s_sub_u32 s53, s53, 1\ns_cmp_eq_u32 s53, 0")
    a(f"s_cbranch_scc1 {L}_x")
    a("s_waitcnt vmcnt(0)")
    a(f"{L}_c:")
    a(f"v_cmp_ne_u32 vcc, s{sNONCE}, v{vt}")
    a(f"s_and_b32 vcc_lo, vcc_lo, {hex((1 << n) - 1)}")
    a(f"s_cbranch_scc1 {L}")
    a(f"{L}_x:")


def sflag_sample(a):
    a(f"s_add_u32 s12, s{sWS}, s26\ns_addc_u32 s13, s{sWS+1}, 0")
    for q in range(4):
        a(f"s_load_dword s{98+q}, s[12:13], {WS_FLAG + q*256}")


def sflag_test(a):
    a("s_waitcnt lgkmcnt(0)")
    a(f"s_xor_b32 s14, s98, s{sNONCE}")
    for q in range(1, 4):
        a(f"s_xor_b32 s15, s{98+q}, s{sNONCE}\ns_or_b32 s14, s14, s15")


def sflag_check(a, L, vidx, vt):
    sflag_test(a)
    a(f"s_cbranch_scc0 {L}_x")
    flag_poll(a, L, "s26", 4, vidx, vt)


def touch_code(a, L, lo, hi, va, vd, lane="v0", sh=7, n=3, back=True):
    a(f"s_getpc_b64 s[12:13]\n{L}:")
    if back: a(f"s_sub_u32 s12, s12, {L}-{lo}\ns_subb_u32 s13, s13, 0")
    else: a(f"s_add_u32 s12, s12, {lo}-{L}\ns_addc_u32 s13, s13, 0")
    a(f"v_lshlrev_b32 v{va}, {sh}, {lane}")
    for i in range(n):
        a(f"v_min_u32 v{va+1}, {hi}-{lo}-4, v{va}\nglobal_load_dword v{vd}, v{va+1}, s[12:13]\nv_add_u32 v{va}, 8192, v{va}")


def get_args(a):
    a("s_waitcnt lgkmcnt(0)")
    a(f"s_load_dword s{sNONCE}, s[{sWS}:{sWS+1}], {WS_FLAG + EPOCH}")


def get_nonce(a):
    srd(a, 56, sWS, SZ_FLAG, WS_FLAG)
    a(f"s_waitcnt lgkmcnt(0)\ns_mul_i32 s{sNONCE}, s{sNONCE}, 1664525\ns_add_u32 s{sNONCE}, s{sNONCE}, 1013904223")


def dq_addr(a, B, nrg, wreg, sout):
    sh = {2: 3, 4: 2}[nrg]
    a(f"s_lshl_b32 s14, s32, {sh}\ns_add_u32 s14, s14, {wreg}")
    a(f"s_mul_i32 s34, s14, {nrg*8*14336}\ns_lshl_b32 s35, s15, 8\ns_add_u32 s34, s34, s35")
    a(f"s_lshr_b32 s14, s14, {sh-1}\ns_mul_i32 s35, s14, 7168\ns_lshl_b32 s14, s15, 7\ns_add_u32 s35, s35, s14")
    a(f"v_lshrrev_b32 v{B}, 3, v0\nv_and_b32 v{B+5}, 7, v0")
    a(f"v_mul_u32_u24 v{B}, 14336, v{B}\nv_lshl_add_u32 v{B}, v{B+5}, 4, v{B}\nv_add_u32 v{B}, s34, v{B}")
    for rg in range(1, nrg):
        a(f"v_add_u32 v{B+rg}, {rg*8*14336}, v{B}")
    a(f"v_lshl_add_u32 v{B+5}, v{B+5}, 3, s35\nv_lshlrev_b32 v{B+4}, 4, v0")
    a(f"s_mul_i32 {sout}, s32, 56\ns_add_u32 {sout}, {sout}, s15\ns_lshl_b32 {sout}, {sout}, {sh}\ns_add_u32 {sout}, {sout}, {wreg}\ns_lshl_b32 {sout}, {sout}, {14-sh}")


def dq_issue(a, B, rgs, scales=True):
    nt = " nt" if OPT.get("dq_nt", 1) else ""
    if scales:
        for t in range(2):
            a(f"global_load_dwordx2 v[{B+8+2*t}:{B+9+2*t}], v{B+5}, s[{sSC}:{sSC+1}] offset:{64*t}")
            a(f"global_load_dwordx2 v[{B+12+2*t}:{B+13+2*t}], v{B+5}, s[{sZE}:{sZE+1}] offset:{64*t}")
    for rg in rgs:
        for t in range(2):
            r = B + 32 + rg * 8 + t * 4
            a(f"global_load_dwordx4 v[{r}:{r+3}], v{B+rg}, s[{sQW}:{sQW+1}] offset:{128*t}{nt}")


def dq_unpack(B):
    o = []
    for j in range(4):
        o += [f"v_lshlrev_b32 v{B+16+2*j}, 16, v{B+8+j}", f"v_and_b32 v{B+17+2*j}, 0xffff0000, v{B+8+j}"]
        o += [f"v_lshlrev_b32 v{B+24+2*j}, 16, v{B+12+j}", f"v_and_b32 v{B+25+2*j}, 0xffff0000, v{B+12+j}"]
    return o


def dq_rows(B, rg, sout, vaddr=None):
    r = B + 32 + rg * 8
    o = [f"v_cvt_f32_i32 v{r+e}, v{r+e}" for e in range(8)]
    o += [f"v_sub_f32 v{r+e}, v{r+e}, v{B+24+e}" for e in range(8)]
    o += [f"v_cvt_pk_bf16_f32 v{B+8+p}, v{r+2*p}, v{r+2*p+1}" for p in range(4)]
    for p in range(4):
        o += [f"v_lshlrev_b32 v{r+2*p}, 16, v{B+8+p}", f"v_and_b32 v{r+2*p+1}, 0xffff0000, v{B+8+p}"]
    o += [f"v_mul_f32 v{r+e}, v{r+e}, v{B+16+e}" for e in range(8)]
    o += [f"v_cvt_pk_bf16_f32 v{r+p}, v{r+2*p}, v{r+2*p+1}" for p in range(4)]
    o.append(f"buffer_store_dwordx4 v[{r}:{r+3}], v{vaddr or B+4}, s[8:11], {sout} offen offset:{rg*1024} sc1")
    return o


def dq_now(a, B, nrg, sout):
    a(f"s_waitcnt vmcnt({2*nrg})")
    a("\n".join(dq_unpack(B)))
    for rg in range(nrg):
        a(f"s_waitcnt vmcnt({2*nrg - 2 - 2*rg + rg})")
        a("\n".join(dq_rows(B, rg, sout)))


SL = 16384 + 16 * 1056
NSL = 4
CQ0 = 3 * SL
SQ = 16 * 1040
LDS_BYTES = max(NSL * SL, CQ0 + 3 * SQ)

B_FR = 64
B_PA = 128
B_TA = 132
V_L16 = 248
V_T = 240
def bP(rt, ks): return B_FR + (rt * 2 + ks) * 4
def bT(c, ks): return B_FR + 32 + (c * 2 + ks) * 4
def b_mf(cs): return chain(lambda rt, c: (rt * 4 + c) * 4, bP, bT, range(4), cs)


def b_rdP(slot, rt, at=0):
    return [(f"ds_read_b128 v[{bP(rt,ks)}:{bP(rt,ks)+3}], v{B_PA + (slot//2)*2 + ks} offset:{(slot%2)*SL + rt*2048}", bP(rt, ks), at) for ks in range(2)]


def b_rdT(slot, c):
    return [(f"ds_read_b64_tr_b16 v[{bT(c,ks)+t*2}:{bT(c,ks)+t*2+1}], v{B_TA + slot//2} offset:{(slot%2)*SL + 16384 + ks*8448 + t*512 + c*32}", bT(c, ks), 0)
            for ks in range(2) for t in range(2)]


def row_read_base(a, dst, t0, wshift):
    a(f"v_and_b32 v{t0}, 15, v0\nv_lshrrev_b32 v{t0+1}, 4, v0")
    a(f"v_lshrrev_b32 v{t0+2}, 1, v{t0}\nv_xor_b32 v{t0+2}, v{t0+2}, v{t0+1}\nv_lshlrev_b32 v{t0+2}, 4, v{t0+2}\nv_lshl_add_u32 v{t0+2}, v{t0}, 7, v{t0+2}")
    a(f"s_lshr_b32 s14, s3, 1\ns_lshl_b32 s14, s14, {wshift}\nv_add_u32 v{dst}, s14, v{t0+2}\nv_xor_b32 v{dst+1}, 64, v{dst}")


def tr_read_base(a, dst, t0):
    a(f"v_bfe_u32 v{t0}, v0, 2, 3\nv_mul_u32_u24 v{t0}, 1056, v{t0}\nv_lshrrev_b32 v{t0+1}, 5, v0\nv_lshl_add_u32 v{t0}, v{t0+1}, 8, v{t0}")
    a(f"v_and_b32 v{t0+1}, 3, v0\nv_lshl_add_u32 v{t0}, v{t0+1}, 3, v{t0}\ns_and_b32 s14, s3, 1\ns_lshl_b32 s14, s14, 7")
    a(f"v_add_u32 v{dst}, s14, v{t0}")


C_FR = 128
C_PA = 224
C_QA = 227
C_WA = 228
C_SA = 229


def cP(rt, ks): return C_FR + (rt * 2 + ks) * 4
def cQ(c, ks): return C_FR + 32 + (c * 2 + ks) * 4
def c_mf(cs, rts=range(4), zero=False, preg=None):
    return chain(lambda rt, c: (rt * 8 + c) * 4, preg or cP, cQ, rts, cs, zero)


def c_rdP(slot, rt, at=0, dst=None):
    d = rt if dst is None else dst
    return [(f"ds_read_b128 v[{cP(d,ks)}:{cP(d,ks)+3}], v{C_PA+slot} offset:{ks*16384 + rt*1024}", cP(d, ks), at) for ks in range(2)]


def c_rdQ(slot, cs):
    return [(f"ds_read_b128 v[{cQ(c,ks)}:{cQ(c,ks)+3}], v{C_QA} offset:{slot*SQ + ks*8320 + c*16}", cQ(c, ks), 0) for c in cs for ks in range(2)]


def spread(rd, every=2):
    return {every * i: [r] for i, r in enumerate(rd)}


X_ACC = 136
X_FR = 168
X_PA = 216
X_TA = 220


def x_reads(slot, ks, buf):
    b = X_FR + buf * 24
    P = [f"ds_read_b128 v[{b+rt*4}:{b+rt*4+3}], v{X_PA + (slot//2)*2 + ks} offset:{(slot%2)*SL + rt*2048}" for rt in range(4)]
    T = [f"ds_read_b64_tr_b16 v[{b+16+c*4+t*2}:{b+16+c*4+t*2+1}], v{X_TA + slot//2} offset:{(slot%2)*SL + 16384 + ks*8448 + t*512 + c*32}"
         for c in range(2) for t in range(2)]
    return [T[0], T[1], P[0], T[2], T[3], P[1], P[2], P[3]]


def x_mfmas(buf, waits):
    b = X_FR + buf * 24
    out = []
    for n in range(8):
        rt, c = n >> 1, (n ^ (n >> 1)) & 1
        m = mfma(X_ACC + (rt * 2 + c) * 4, b + 16 + c * 4, b + rt * 4)
        out.append(([f"s_waitcnt lgkmcnt({waits[n]})"], m) if n in waits else m)
    return out


def x_epilogue(a):
    for rt in range(4):
        lo = X_ACC + rt * 8
        t = V_T + (rt & 1) * 4
        for p in range(4):
            a(f"v_cvt_pk_bf16_f32 v{t+p}, v{lo+2*p}, v{lo+2*p+1}")
        a(f"buffer_store_dwordx4 v[{t}:{t+3}], v{V_L16}, s[16:19], s24 offen offset:{rt*1024} sc1")


def own_fx(a):
    a(f"s_lshl_b32 s27, s6, 3\ns_add_u32 s27, s27, s7\ns_lshl_b32 s27, s27, 8\ns_add_u32 s27, s27, {FX}")


def compute(a):
    DQ = 64
    WSH = OPT.get("wsh", 2)
    if WSH == 4:
        a("s_and_b32 s15, s32, 4\ns_xor_b32 s15, s15, s54")
        dq_addr(a, DQ, 4, "s3", "s28")
    else:
        a("s_lshr_b32 s15, s54, 1\ns_and_b32 s29, s54, 1\ns_lshl_b32 s29, s29, 2\ns_add_u32 s29, s29, s3")
        dq_addr(a, DQ, 2, "s29", "s28")
    get_args(a)
    a("s_cmp_ge_u32 s54, 16\ns_cbranch_scc1 Lc_nodq0")
    dq_issue(a, DQ, range(WSH))
    a("Lc_nodq0:")
    srd(a, 8, sWS, SZ_WQ, WS_WQ)
    a(f"v_lshlrev_b32 v{V_L16}, 4, v0")
    row_read_base(a, B_PA, V_T, 13)
    a(f"v_mov_b32 v{X_PA}, v{V_T+2}\nv_xor_b32 v{X_PA+1}, 64, v{X_PA}")
    tr_read_base(a, B_TA, V_T)
    a(f"s_lshl_b32 s14, s3, 6\nv_add_u32 v{X_TA}, s14, v{V_T}")
    for r_ in (B_PA, X_PA):
        a(f"v_add_u32 v{r_+2}, {2*SL}, v{r_}\nv_add_u32 v{r_+3}, {2*SL}, v{r_+1}")
    for r_ in (B_TA, X_TA):
        a(f"v_add_u32 v{r_+1}, {2*SL}, v{r_}")
    a(f"s_lshl_b32 s14, s3, 12\nv_add_u32 v{C_PA}, s14, v{V_L16}\nv_add_u32 v{C_PA+1}, {SL}, v{C_PA}\nv_add_u32 v{C_PA+2}, {2*SL}, v{C_PA}")
    a(f"v_bfe_u32 v{V_T}, v0, 1, 3\nv_mul_u32_u24 v{V_T}, 1040, v{V_T}\nv_lshrrev_b32 v{V_T+1}, 4, v0\nv_lshl_add_u32 v{V_T}, v{V_T+1}, 8, v{V_T}")
    a(f"v_and_b32 v{V_T+2}, 1, v0\nv_lshl_add_u32 v{V_T}, v{V_T+2}, 7, v{V_T}\nv_add_u32 v{C_QA}, {CQ0}, v{V_T}")
    a(f"s_lshr_b32 s14, s3, 1\ns_mul_i32 s14, s14, {SQ}\ns_and_b32 s34, s3, 1\ns_mul_i32 s34, s34, {4*1040}\ns_add_u32 s14, s14, s34\ns_add_u32 s14, s14, {CQ0}")
    a(f"v_add_u32 v{C_WA}, s14, v{V_L16}")
    col_lane(a, V_T + 2, V_T + 3, OPT.get("mix", 0))
    a(f"v_mul_u32_u24 v{V_T+1}, {4*7168}, v{V_T+1}\nv_add_u32 v{C_SA}, v{V_T+2}, v{V_T+1}")
    for i in list(range(64)) + list(range(X_ACC, X_ACC + 32)):
        a(f"v_mov_b32 v{i}, 0")
    a("s_lshr_b32 s24, s6, 2\ns_lshl_b32 s24, s24, 5\ns_lshl_b32 s34, s7, 2\ns_add_u32 s24, s24, s34\ns_add_u32 s24, s24, s3")
    a("s_lshl_b32 s24, s24, 2\ns_and_b32 s34, s6, 3\ns_add_u32 s24, s24, s34\ns_lshl_b32 s24, s24, 12")
    srd(a, 16, sWS, SZ_X, WS_XRF)
    get_nonce(a)
    a("s_cmp_ge_u32 s54, 16\ns_cbranch_scc1 Lc_nodq1")
    dq_now(a, DQ, WSH, "s28")
    a("Lc_nodq1:")
    stamp(a, 1)
    XW = {0: 5, 1: 4, 2: 4, 4: 5, 6: 6}
    a("s_mov_b32 s23, 4\ns_barrier")
    stamp(a, 9)
    for r in x_reads(0, 0, 0): a(r)
    a("s_branch Lx_mid")
    a("Lx_loop:")
    for s in range(NSL):
        a("s_barrier")
        interleave(a, x_mfmas(1, {}), spread(x_reads(s, 0, 0), 1))
        if s == 0: a("Lx_mid:")
        if OPT.get("xfront", 1):
            rd = x_reads(s, 1, 1)
            interleave(a, x_mfmas(0, {0: 5, 1: 5, 2: 6, 4: 9, 6: 8}), {i: rd[2*i:2*i+2] for i in range(4)})
        else:
            interleave(a, x_mfmas(0, XW), spread(x_reads(s, 1, 1), 1))
        XACK = OPT.get("xack", 5)
        if s == XACK - 5: a("s_cmp_eq_u32 s23, 4\ns_cbranch_scc1 Lx_na\ns_waitcnt vmcnt(0)\nLx_na:")
        if s == NSL - 1:
            a("s_sub_u32 s23, s23, 1\ns_cmp_lg_u32 s23, 0")
        a("s_waitcnt vmcnt(0) lgkmcnt(0)" if s == XACK - 1 else "s_waitcnt lgkmcnt(0)")
    a("s_cbranch_scc1 Lx_loop")
    stamp(a, 10)
    a("s_cmp_lg_u32 s5, 0\ns_cbranch_scc1 Lc_h")
    a("s_barrier")
    stamp(a, 2)
    LO, HI = [0, 1], [2, 3]
    sc = Sched(a)
    rd = b_rdT(0, 0) + b_rdP(0, 0) + b_rdT(0, 1) + b_rdP(0, 1) + b_rdP(0, 2)
    interleave(a, x_mfmas(1, {}), spread([r[0] for r in rd[:8]], 1))
    for r in rd[8:]: a(r[0])
    a(f"s_lshl_b32 s25, s32, 2\ns_add_u32 s25, s25, s3\ns_mov_b32 s23, {56 // NSL}")
    x_epilogue(a)
    a(f"s_lshr_b32 s34, s3, 1\ns_lshl_b32 s24, s32, 1\ns_add_u32 s24, s24, s34\ns_mul_i32 s24, s24, {2*224*1024}")
    a("s_and_b32 s34, s3, 1\ns_lshl_b32 s35, s33, 1\ns_add_u32 s34, s34, s35\ns_lshl_b32 s34, s34, 12\ns_add_u32 s24, s24, s34")
    srd(a, 16, sWS, SZ_W, WS_WPF)
    a(f"s_add_u32 s26, s24, {224*1024}")
    a("s_waitcnt lgkmcnt(0)\ns_branch Lb_mid")
    a("Lb_loop:")
    for s in range(NSL):
        a("s_barrier")
        sc.run(b_mf(HI), b_rdT(s, 0) + b_rdP(s, 0, 3) + b_rdT(s, 1) + b_rdP(s, 1, 7) + b_rdP(s, 2, 11), group=4)
        if s == 0: a("Lb_mid:")
        fill = {13: ["s_sub_u32 s23, s23, 1"], 14: ["s_cmp_lg_u32 s23, 0"]} if s == NSL - 1 else {}
        sc.run(b_mf(LO), b_rdP(s, 3) + b_rdT(s, 2) + b_rdT(s, 3), fill, group=4)
        sc.drain("vmcnt(0) " if s == NSL - 1 else "")
    a("s_cbranch_scc1 Lb_loop")
    a("s_barrier")
    stamp(a, 3)
    WT = 136
    def w_out(pair, o):
        lo, hi = ((2 * pair) * 4 + o) * 4, ((2 * pair + 1) * 4 + o) * 4
        t = WT + (pair * 4 + o) * 4
        return [f"v_cvt_pk_bf16_f32 v{t}, v{lo}, v{lo+1}", f"v_cvt_pk_bf16_f32 v{t+1}, v{lo+2}, v{lo+3}",
                f"v_cvt_pk_bf16_f32 v{t+2}, v{hi}, v{hi+1}", f"v_cvt_pk_bf16_f32 v{t+3}, v{hi+2}, v{hi+3}",
                f"buffer_store_dwordx4 v[{t}:{t+3}], v{V_L16}, s[16:19], s{24+2*pair} offen offset:{o*1024} sc1"]
    def w_lds(pair, o):
        t = WT + (pair * 4 + o) * 4
        return f"ds_write_b128 v{C_WA}, v[{t}:{t+3}] offset:{pair*8320 + o*1040}"
    fill = {}
    for n, (pair, o) in enumerate(((0, 0), (0, 1), (1, 0), (1, 1))):
        w = w_out(pair, o)
        fill[4 * n] = w[0:2]; fill[4 * n + 1] = w[2:4]; fill[4 * n + 2] = w[4:5]; fill[4 * n + 3] = [w_lds(pair, o)]
    sc.run(b_mf(HI), fill=fill)
    for pair, o in ((0, 2), (0, 3), (1, 3), (1, 2)):
        a("\n".join(w_out(pair, o)))
    for pair, o in ((0, 2), (0, 3), (1, 3), (1, 2)):
        a(w_lds(pair, o))
    srd(a, 16, sOUT, S * F * 2)
    a(f"s_lshl_b32 s34, s33, 8\ns_mul_i32 s24, s25, {64*7168}\ns_add_u32 s24, s24, s34")
    a("s_waitcnt lgkmcnt(0)")
    stamp(a, 4)
    LO, HI = [0, 1, 2, 3], [4, 5, 6, 7]
    def c_first(slot):
        return c_rdP(slot, 0) + c_rdQ(slot, LO) + c_rdP(slot, 1) + c_rdP(slot, 2)
    a("s_barrier")
    for r in c_first(0): sc.read(r)
    a("s_mov_b32 s23, 4")
    z = [f"v_mov_b32 v{(rt*8+c)*4+i}, 0" for rt in range(4) for c in HI for i in range(4)]
    sc.run(c_mf(LO, zero=True), c_rdP(0, 3) + c_rdQ(0, HI), {10 + i: z[3*i:3*i+3] for i in range(22)}, group=2)
    sc.drain("vmcnt(0) ")
    stamp(a, 5)
    a("Lc_loop:")
    for s in (1, 2, 0):
        if s == 2: a("s_cmp_eq_u32 s23, 4\ns_cbranch_scc1 Lc_peel")
        a("s_barrier")
        sc.run(c_mf(HI), c_rdQ(s, LO[:2]) + c_rdP(s, 0, 7) + c_rdQ(s, LO[2:]) + c_rdP(s, 1, 15) + c_rdP(s, 2, 23), every=2, group=8)
        if s == 2: a("Lc_mid:")
        fill = {27: ["s_sub_u32 s23, s23, 1"], 29: ["s_cmp_lg_u32 s23, 0"]} if s == 0 else {}
        sc.run(c_mf(LO), c_rdP(s, 3) + c_rdQ(s, HI), fill, every=2, group=8)
        sc.drain()
    a("s_cbranch_scc1 Lc_loop")
    a("Lc_tail:")
    ynt = {0: "", 1: " nt", 2: " sc1", 3: " sc0 sc1"}[OPT.get("y_nt", 2)]

    def row_out(rt, r, t):
        o = []
        for p in range(4):
            o.append(f"v_cvt_pk_bf16_f32 v{t+p}, v{(rt*8+2*p)*4+r}, v{(rt*8+2*p+1)*4+r}")
        o.append(f"buffer_store_dwordx4 v[{t}:{t+3}], v{C_SA}, s[16:19], s24 offen{ynt}")
        o.append(f"s_add_u32 s24, s24, {7168 if r < 3 else 13*7168}")
        return o
    def u_slot(n): return (13 + n % 3) % 3
    def u_rdP(n, at=(0, 0)): return [r for k in range(2) for r in c_rdP(u_slot(n), 2 * (n // 3) + k, at[k], 2 * (n & 1) + k)]
    def u_mf(n, cs, rts=None):
        h = n // 3
        return c_mf(cs, rts or (2 * h, 2 * h + 1), preg=lambda rt, ks: cP(2 * (n & 1) + (rt & 1), ks))
    a("s_barrier")
    sc.run(c_mf(HI), c_rdQ(u_slot(0), LO) + u_rdP(0, (7, 15)), every=2, group=8)
    outs = [row_out(rt, r, V_T + ((rt * 4 + r) & 1) * 4) for rt in range(4) for r in range(4)]
    def put(fill, pos, q):
        o = outs[q]
        fill[pos] = o[0:2]; fill[pos + 1] = o[2:4]; fill[pos + 2] = o[4:6]
    for n in range(5):
        f1, f2 = {}, {}
        if n >= 3:
            put(f1, 9, 3 * (n - 3)); put(f1, 12, 3 * (n - 3) + 1); put(f2, 12, 3 * (n - 3) + 2)
        sc.run(u_mf(n, LO), c_rdQ(u_slot(n), HI), f1, group=4)
        if n < 2: a("s_barrier")
        sc.run(u_mf(n, HI), u_rdP(n + 1)[:2] + c_rdQ(u_slot(n + 1), LO) + u_rdP(n + 1)[2:], f2, group=4)
    f1, f2 = {}, {}
    put(f1, 9, 6); put(f1, 12, 7)
    sc.run(u_mf(5, LO + HI, (2,)), c_rdQ(u_slot(5), HI), f1, group=2)
    stamp(a, 7)
    put(f2, 7, 8); put(f2, 10, 9); put(f2, 13, 10)
    sc.run(u_mf(5, (LO + HI)[::-1], (3,)), fill=f2)
    a("\n".join(outs[11]))
    a("s_nop 1")
    for q in range(12, 16):
        a("\n".join(row_out(3, q - 12, C_FR + (q & 3) * 4)))
    stamp(a, 8)
    a("s_or_b32 s14, s2, s3\ns_cmp_lg_u32 s14, 0\ns_cbranch_scc1 Lc_end")
    a(f"s_mov_b32 s14, {EPOCH}")
    flag_store(a, "s14", V_T, V_L16)
    a("Lc_end:")
    stamp_out(a, False)
    a("s_endpgm")
    a("Lc_peel:")
    sc.q = []
    sc.run(c_mf(HI))
    a("s_barrier")
    stamp(a, 6)
    for r in c_first(2): a(r[0])
    a("s_branch Lc_mid")
    a("Lc_h:")
    interleave(a, x_mfmas(1, {}), {})
    a("s_nop 7")
    x_epilogue(a)
    a("s_waitcnt vmcnt(0)\ns_barrier")
    a("s_cmp_lg_u32 s3, 0\ns_cbranch_scc1 Lc_end")
    if OPT.get("warm", 0) & 2: touch_code(a, "L_tc1", NAME, "L_end", 250, 252, f"v{V_L16}", 3)
    own_fx(a)
    flag_store(a, "s27", V_T, V_L16)
    a("s_branch Lc_end")


L_T = 68
L_P = 72
L_TP = 76
L_TT = 77
L_Q = 78
L_L16 = 82
L_FI = 83
L_TMP = 84
L_FL = 92
L_CP = 93
L_CQ = 94
L_SP = 95


def rot_table(a, n, W, phi, psi, v, pw=0):
    lg = W.bit_length() - 1
    wmin = OPT.get("wmin", 1)
    a(f"s_add_u32 s14, {psi}, {n - wmin}\ns_lshr_b32 s14, s14, {lg}")
    a(f"v_add_u32 v{v+3}, {psi}, v0\nv_lshrrev_b32 v{v+3}, {lg}, v{v+3}\nv_min_u32 v{v+3}, s14, v{v+3}")
    a(f"v_cmp_eq_u32 vcc, s14, v{v+3}")
    a(f"v_lshlrev_b32 v{v}, {lg}, v{v+3}\nv_subrev_u32 v{v}, {psi}, v{v}")
    a(f"v_add_u32 v{v+1}, {W}, v{v}\nv_mov_b32 v{v+2}, {n}\nv_cndmask_b32 v{v+1}, v{v+1}, v{v+2}, vcc")
    a(f"v_max_i32 v{v}, 0, v{v}\nv_sub_u32 v{v+1}, v{v+1}, v{v}")
    a(f"v_mul_u32_u24 v{v+3}, {pw}, v{v+3}")
    a(f"v_add_u32 v{v+3}, {phi}, v{v+3}\nv_and_b32 v{v+3}, {W-1}, v{v+3}\nv_sub_u32 v{v+2}, v0, v{v}\nv_add_u32 v{v+2}, v{v+3}, v{v+2}")
    for i in range(W - 1):
        a(f"v_sub_u32 v{v+3}, v{v+2}, v{v+1}\nv_min_u32 v{v+2}, v{v+2}, v{v+3}")
    a(f"v_add_u32 v{v}, v{v}, v{v+2}")


def col_base(a, dst, tile, mix):
    if mix: a(f"s_lshr_b32 {dst}, {tile}, 2\ns_lshl_b32 {dst}, {dst}, 2\ns_add_u32 {dst}, {dst}, {tile}\ns_lshl_b32 {dst}, {dst}, 7")
    else: a(f"s_lshl_b32 {dst}, {tile}, 8")


def col_lane(a, dst, tmp, mix):
    a(f"v_and_b32 v{dst}, 15, v0\nv_lshlrev_b32 v{dst}, 4, v{dst}")
    if mix: a(f"v_and_b32 v{tmp}, 8, v0\nv_mul_u32_u24 v{tmp}, 48, v{tmp}\nv_add_u32 v{dst}, v{dst}, v{tmp}")


def t_voffs(a, t_row, natural, L_T=L_T, mix=0):
    t = L_TMP
    a(f"v_lshrrev_b32 v{t}, 4, v0\nv_and_b32 v{t+1}, 1, v{t}\nv_lshrrev_b32 v{t}, 1, v{t}")
    if natural:
        a(f"v_lshlrev_b32 v{t+1}, 4, v{t+1}\nv_lshl_add_u32 v{t}, v{t}, 2, v{t+1}")
    else:
        a(f"v_lshlrev_b32 v{t+1}, 3, v{t+1}\nv_lshl_add_u32 v{t}, v{t}, 5, v{t+1}")
    col_lane(a, t + 1, t + 2, mix)
    a(f"v_mul_u32_u24 v{t}, {t_row}, v{t}\nv_add_u32 v{L_T}, v{t+1}, v{t}")
    for j in range(1, 4):
        a(f"v_add_u32 v{L_T+j}, {j*(t_row-1056)}, v{L_T}")


def p_voffs(a, p_row, L_P=L_P):
    t = L_TMP
    a(f"v_lshrrev_b32 v{t}, 3, v0\nv_mul_u32_u24 v{t}, {p_row}, v{t}\nv_lshrrev_b32 v{t+1}, 4, v0\nv_and_b32 v{t+2}, 7, v0\nv_xor_b32 v{t+1}, v{t+1}, v{t+2}")
    a(f"v_lshl_add_u32 v{L_P}, v{t+1}, 4, v{t}\nv_xor_b32 v{L_P+1}, 64, v{L_P}")
    d = 8 * p_row - 1024
    a(f"v_add_u32 v{L_P+2}, {2*d}, v{L_P}\nv_add_u32 v{L_P+3}, {3*d}, v{L_P+1}\nv_add_u32 v{L_P+1}, {d}, v{L_P+1}")


def skip1_adj(a, v):
    a(f"v_lshrrev_b32 v{v+1}, 4, v0\nv_min_u32 v{v}, 1, v{v+1}\nv_lshlrev_b32 v{v}, 8, v{v}")
    a(f"v_add_u32 v{v+1}, 9, v{v+1}\nv_lshrrev_b32 v{v+1}, 2, v{v+1}\nv_lshlrev_b32 v{v+1}, 8, v{v+1}")


def loader(a):
    t = L_TMP + 4
    XT, XP, XTP, XTT = 4, 8, 12, 13
    AH = OPT.get("ah", 3)
    if OPT.get("xs", 2) == 99:
        a("s_and_b32 s34, s28, 1\ns_lshl_b32 s34, s34, 1\ns_lshr_b32 s14, s28, 1\ns_add_u32 s34, s34, s14\ns_lshl_b32 s34, s34, 2")
    else:
        a(f"s_mul_i32 s34, s28, {OPT.get('xs',2)}")
    a(f"s_add_u32 s15, s6, s7\ns_and_b32 s15, s15, 3\ns_sub_u32 s34, s34, s15")
    a(f"v_add_u32 v{t}, s15, v0\nv_add_u32 v{t+1}, 3, v{t}\nv_and_b32 v{t}, 0xfc, v{t}\nv_and_or_b32 v{t}, v{t+1}, 3, v{t}")
    a(f"v_add_u32 v{t}, s34, v{t}\nv_and_b32 v{t}, 15, v{t}")
    a(f"s_lshl_b32 s34, s6, 2\ns_add_u32 s34, s34, s3\ns_lshl_b32 s34, s34, 15\nv_lshl_add_u32 v{XTP}, v{t}, 7, s34")
    a("s_lshr_b32 s34, s3, 1\ns_lshl_b32 s34, s34, 5\ns_and_b32 s14, s3, 1\ns_lshl_b32 s14, s14, 3\ns_add_u32 s34, s34, s14")
    a(f"s_lshl_b32 s34, s34, 11\ns_lshl_b32 s14, s7, 8\ns_add_u32 s34, s34, s14\nv_lshl_add_u32 v{XTT}, v{t}, 17, s34")
    t_voffs(a, 2048, True, XT)
    p_voffs(a, 2048, XP)
    a("s_lshl_b32 s22, s3, 11\ns_mul_i32 s29, s3, 4224\ns_add_u32 s29, s29, 16384")
    a(f"v_readlane_b32 s21, v{XTT}, 0\ns_mov_b32 m0, s29\ns_mov_b32 s25, 0\ns_mov_b32 s28, 0\ns_mov_b32 s55, 0")
    get_args(a)
    stamp(a, 8)
    if OPT.get("trace"): a("v_mov_b32 v100, 0\ns_mov_b32 s96, 0")
    srd(a, 8, sX, SZ_X)
    srd(a, 16, sU, D * D * 2)
    def XTl(j): a(f"buffer_load_dwordx4 v{XT+j}, s[16:19], s21 offen offset:{j*1056} lds")
    def XPl(j): a(f"buffer_load_dwordx4 v{XP+j}, s[8:11], s20 offen offset:{j*1024} lds")
    def xbody(n, hook=False):
        XTl(0)
        a(f"v_readlane_b32 s20, v{XTP}, s25\ns_add_u32 s25, s25, 1")
        if hook:
            a("s_cmp_eq_u32 s25, s54\ns_cbranch_scc1 Lxl_ev")
            a("Lxl_evdone:")
        XTl(1)
        a(f"s_add_u32 s34, s28, s22\ns_add_u32 s28, s28, {SL}")
        XTl(2)
        a(f"s_cmp_eq_u32 s28, {NSL*SL}\ns_cselect_b32 s28, 0, s28")
        XTl(3)
        a(f"s_mov_b32 m0, s34\nv_readlane_b32 s21, v{XTT}, s25\ns_add_u32 s34, s28, s29\ns_cmp_lt_u32 s25, {n}")
        XPl(0)
    def x0():
        W = OPT.get("W", 4)
        a(f"s_mul_i32 s34, s32, {OPT.get('pm',0)}\ns_mul_i32 s35, s33, {OPT.get('pn',0)}\ns_add_u32 s34, s34, s35\ns_add_u32 s34, s34, {OPT.get('p0',3)}")
        a(f"s_mul_i32 s35, s33, {OPT.get('qn',1)}\ns_mul_i32 s14, s32, {OPT.get('qm',1)}\ns_add_u32 s35, s35, s14\ns_and_b32 s35, s35, {W-1}")
        rot_table(a, 56, W, "s34", "s35", t, OPT.get("pw", 0))
        a(f"s_and_b32 s34, s32, 4\nv_xor_b32 v{t}, s34, v{t}")
        CS = 24576 if OPT.get("skip1") else 16384
        a(f"s_mul_i32 s34, s32, {56*CS}\ns_mul_i32 s35, s3, {CS//4}\ns_add_u32 s34, s34, s35")
        a(f"v_mul_u32_u24 v{L_TP}, {CS}, v{t}\nv_add_u32 v{L_TP}, s34, v{L_TP}")
        a("s_lshr_b32 s34, s3, 1\ns_lshl_b32 s34, s34, 4\ns_and_b32 s35, s3, 1\ns_lshl_b32 s35, s35, 2\ns_add_u32 s34, s34, s35")
        col_base(a, "s35", "s33", OPT.get("mix", 0))
        a("s_mul_i32 s34, s34, 7168\ns_add_u32 s34, s34, s35")
        a(f"v_mul_u32_u24 v{t}, {64*7168}, v{t}\nv_add_u32 v{L_TT}, s34, v{t}")
        t_voffs(a, 7168, False, mix=OPT.get("mix", 0))
        p_voffs(a, 128)
        if OPT.get("skip1"):
            skip1_adj(a, L_TMP)
            a(f"v_add_u32 v{L_P}, v{L_P}, v{L_TMP}\nv_add_u32 v{L_P+1}, v{L_P+1}, v{L_TMP+1}")
            a(f"v_add_u32 v{L_P+2}, 1024, v{L_P}\nv_add_u32 v{L_P+3}, 1024, v{L_P+1}")
        if OPT.get("spf"):
            OFF = OPT.get("spo", 12)
            NW = OPT.get("spf")
            a(f"s_lshr_b32 s14, s2, 3\ns_mul_i32 s14, s14, {NW}\ns_add_u32 s14, s14, s3\ns_sub_u32 s14, s14, {4-NW}")
            a(f"v_add_u32 v{t}, {OFF}, v0\nv_and_b32 v{t+1}, 7, v{t}\nv_mul_u32_u24 v{t+1}, {28*NW}, v{t+1}\nv_add_u32 v{t+1}, s14, v{t+1}\nv_min_u32 v{t+1}, 511, v{t+1}")
            a(f"v_and_b32 v{t}, 0xf8, v{t}\nv_min_u32 v{t}, 48, v{t}\nv_lshrrev_b32 v{t+2}, 7, v{t+1}\nv_add_u32 v{t}, v{t}, v{t+2}")
            a(f"s_and_b32 s34, s32, 4\nv_xor_b32 v{t}, s34, v{t}\nv_and_b32 v{t+2}, 63, v{t+1}\nv_lshl_add_u32 v{t}, v{t}, 6, v{t+2}\nv_mul_u32_u24 v{t}, 7168, v{t}")
            a("s_bfe_u32 s14, s2, 0x20001\ns_mul_i32 s14, s14, 7\ns_add_u32 s34, s14, 2\ns_andn2_b32 s34, s34, 3\ns_add_u32 s34, s34, 1")
            a("s_add_u32 s35, s34, 4\ns_add_u32 s14, s14, 6\ns_min_u32 s35, s35, s14\ns_sub_u32 s35, s35, s34")
            a(f"v_bfe_u32 v{t+1}, v{t+1}, 6, 1\nv_mul_lo_u32 v{t+1}, s35, v{t+1}\nv_add_u32 v{t+1}, s34, v{t+1}\nv_lshl_add_u32 v{L_SP}, v{t+1}, 8, v{t}")
            a(f"s_cmp_ge_u32 s3, {4-NW}\ns_cselect_b32 s24, {56-OFF}, 0")
        a(f"v_lshrrev_b32 v{t}, 1, v0\nv_add_u32 v{t+1}, 3, v{t}\nv_xor_b32 v{t+1}, s32, v{t+1}\nv_and_b32 v{t+1}, 4, v{t+1}")
        a(f"v_add_u32 v{t}, s32, v{t}\nv_and_or_b32 v{t}, v{t}, 3, v{t+1}\nv_and_b32 v{t+1}, 1, v0\nv_lshl_add_u32 v{t}, v{t}, 1, v{t+1}")
        a(f"s_lshl_b32 s34, s32, 19\ns_lshl_b32 s35, s3, 13\ns_add_u32 s34, s34, s35\nv_lshl_add_u32 v{L_CP}, v{t}, 15, s34")
        a(f"s_lshr_b32 s34, s3, 1\ns_mul_i32 s34, s34, {224*1024}\ns_and_b32 s35, s3, 1\ns_lshl_b32 s14, s33, 1\ns_add_u32 s35, s35, s14\ns_lshl_b32 s35, s35, 12\ns_add_u32 s34, s34, s35")
        a(f"v_mul_u32_u24 v{t}, {2*224*1024}, v{t}\nv_add_u32 v{L_CQ}, s34, v{t}")
        srd(a, 40, sWS, SZ_X, WS_XRF)
        srd(a, 48, sWS, SZ_W + 64, WS_WPF - 64)
        a(f"v_lshlrev_b32 v{L_L16}, 4, v0\nv_lshlrev_b32 v{L_FI}, 8, v0")
        for j in range(4):
            a(f"v_add_u32 v{L_Q+j}, {64 - 16*j}, v{L_L16}")
        a(f"s_lshl_b32 s26, s32, 12\ns_add_u32 s26, s26, {FA1}\ns_lshl_b32 s27, s54, 8\ns_add_u32 s27, s27, s26")
        get_nonce(a)
        a(f"s_cmp_lt_u32 s54, 16\ns_cselect_b32 s54, {OPT.get('xack', 5) + AH + 1}, 255\ns_cmp_eq_u32 s3, 1\ns_cselect_b32 s54, s54, 255\ns_cselect_b32 s55, 2, 0")
        a(f"s_or_b32 s14, s3, s5\ns_cmp_eq_u32 s14, 0\ns_cselect_b32 s54, 13, s54")
    xbody(16)
    XPl(1)
    a("s_mov_b32 m0, s34")
    x0()
    a("s_branch Lxl_go")
    a("Lxl_loop:")
    XPl(1)
    trace(a, 2)
    a("s_mov_b32 m0, s34")
    if AH == 3: a("s_cmp_lt_u32 s25, 3\ns_cbranch_scc1 Lxl_go")
    a(f"s_waitcnt vmcnt({6*(AH-1)})\ns_barrier")
    a("Lxl_go:")
    xbody(16, True)
    a("s_cbranch_scc1 Lxl_loop")
    XPl(1)
    stamp(a, 1)
    a("s_cmp_lg_u32 s5, 0\ns_cbranch_scc1 Ll_h")
    srd(a, 8, sWS, SZ_WQ, WS_WQ)
    srd(a, 16, sV, F * F * 2)
    a("s_lshl_b32 s22, s3, 12")

    AUX = {0: "", 1: " sc1", 2: " sc0 sc1", 3: " sc0"}
    PAUX, TAUX = AUX[OPT.get("psc1", 1)], AUX[OPT.get("tsc1", 0)]
    def T(j): a(f"buffer_load_dwordx4 v{L_T+j}, s[16:19], s21 offen offset:{j*1056}{TAUX} lds")
    def P(j): a(f"buffer_load_dwordx4 v{L_P+j}, s[8:11], s20 offen offset:{j*1024}{PAUX} lds")
    a(f"v_readlane_b32 s21, v{L_TT}, 0\nv_readlane_b32 s20, v{L_TP}, 0\ns_mov_b32 m0, s29")
    WSH = OPT.get("wsh", 2)
    a(f"s_mul_i32 s26, s32, {14*1024}\ns_add_u32 s26, s26, {FA + (WSH - 1) * 1024}")
    a(f"s_cmp_eq_u32 s3, 0\ns_cselect_b32 s54, {4*WSH - 4}, 255\ns_cmp_eq_u32 s3, 1\ns_cselect_b32 s54, 8, s54\ns_mov_b32 s55, 0")
    if AH == 3:
        a("s_waitcnt vmcnt(12)\ns_barrier")
        for j in range(4): T(j)
        a(f"s_mov_b32 m0, s22\nv_readlane_b32 s21, v{L_TT}, 1")
        for j in range(4): P(j)
        a(f"s_add_u32 m0, s29, {SL}\ns_mov_b32 s25, 1\ns_mov_b32 s28, {SL}")
        a("s_waitcnt vmcnt(14)\ns_barrier")
    else:
        a("s_mov_b32 s25, 0")
        a("s_waitcnt vmcnt(6)\ns_barrier")
    a("s_branch Lw_go")

    def head():
        P(3)
        trace(a)
        a("s_add_u32 m0, s28, s29")
        a(f"s_waitcnt vmcnt({8*(AH-1)})\ns_barrier")
    def first():
        T(0)
        a(f"v_readlane_b32 s20, v{L_TP}, s25\ns_add_u32 s25, s25, 1")
    def rest(fill=()):
        n = (len(fill) + 6) // 7
        g = ["\n".join(fill[i*n:(i+1)*n]) for i in range(7)]
        def gap(i):
            if g[i]: a(g[i])
        gap(0)
        T(1)
        a(f"s_add_u32 s34, s28, s22\ns_add_u32 s28, s28, {SL}")
        gap(1)
        T(2)
        a(f"s_cmp_eq_u32 s28, {NSL*SL}\ns_cselect_b32 s28, 0, s28")
        gap(2)
        T(3)
        a(f"s_mov_b32 m0, s34\nv_readlane_b32 s21, v{L_TT}, s25")
        gap(3)
        P(0)
        if OPT.get("spf"):
            a(f"s_cmp_ge_u32 s25, s24\ns_cbranch_scc1 Lw_nsp\nv_readlane_b32 s23, v{L_SP}, s25")
            for q in range(4):
                a("s_buffer_load_dword s97, s[16:19], s23" + (f" offset:{64*q}" if q else ""))
            a("Lw_nsp:")
        gap(4)
        P(1)
        gap(5)
        a(f"s_cmp_lt_u32 s25, 56")
        P(2)
        gap(6)
    a("Lw_loop:")
    head()
    a("Lw_go:")
    first()
    a(f"s_cmp_eq_u32 s25, s54\ns_cbranch_scc1 Lw_ev")
    a("Lw_evdone:")
    rest()
    a("s_cbranch_scc1 Lw_loop")
    P(3)
    stamp(a, 4)
    a(f"s_lshl_b32 s22, s3, 13\ns_mul_i32 s29, s3, {4*1040}\ns_add_u32 s29, s29, {CQ0}")
    def PC(st, slot):
        a(f"v_readlane_b32 s20, v{L_CP}, {st}\ns_add_u32 m0, s22, {slot}\ns_nop 3")
        for j in range(8):
            if j == 4: a("s_add_u32 m0, m0, 4096\ns_add_u32 s20, s20, 4096")
            a(f"buffer_load_dwordx4 v{L_L16}, s[40:43], s20 offen offset:{(j&3)*1024} sc1 lds")
    def QC(st, slot):
        a(f"v_readlane_b32 s21, v{L_CQ}, {st}\ns_add_u32 m0, s29, {slot}\ns_nop 3")
        for j in range(4):
            a(f"buffer_load_dwordx4 v{L_Q+j}, s[48:51], s21 offen offset:{j*1040} sc1 lds")
    for i in range(AH):
        a(f"s_waitcnt vmcnt({8*(AH-1)})\ns_barrier")
        PC(i, i * SL)
    a("s_barrier")
    a(f"s_lshl_b32 s26, s33, 3\ns_add_u32 s26, s26, s32\ns_lshl_b32 s27, s26, 8\ns_add_u32 s27, s27, {FB}")
    a(f"s_andn2_b32 s26, s27, 0x300\ns_xor_b32 s26, s26, 0x400")
    a(f"s_waitcnt vmcnt({8*(AH-1)})\ns_barrier")
    sflag_sample(a)
    if AH == 2: PC(2, 2 * SL)
    a("s_cmp_lg_u32 s3, 0")
    a("s_waitcnt vmcnt(8)\ns_barrier")
    a("s_cbranch_scc1 Lw_nfb")
    flag_store(a, "s27", L_TMP, L_L16)
    a("Lw_nfb:")
    stamp(a, 6)
    a(f"s_mov_b32 s25, 4\ns_mov_b32 s28, {SL}\ns_mov_b32 s27, {SQ}")
    a("s_cmp_eq_u32 s3, 0\ns_cselect_b32 s54, 9, 255")
    sflag_test(a)
    a("s_cbranch_scc1 Lw_late")
    QC(2, 2 * SQ)
    QC(3, 0)
    PC(3, 0)
    a("s_waitcnt vmcnt(12)")
    a("s_branch Lw_c2")
    a("Lw_late:")
    if OPT.get("latepc", 0):
        PC(3, 0)
        a(f"s_waitcnt vmcnt({OPT.get('fbw', 0)})")
    stamp(a, 5)
    flag_poll(a, "Lw_pb", "s26", 4, L_FI, L_FL)
    stamp(a, 7)
    QC(2, 2 * SQ)
    QC(3, 0)
    if OPT.get("latepc", 0):
        a("s_waitcnt vmcnt(4)")
    else:
        PC(3, 0)
        a("s_waitcnt vmcnt(12)")
    a("Lw_c2:")
    a("s_xor_b32 s26, s26, 0x400")
    a("s_barrier")
    a("Lw_cloop:")
    a("s_cmp_lg_u32 s25, s54\ns_cbranch_scc1 Lw_c3")
    if OPT.get("warm", 0) & 4: touch_code(a, "L_tc2", "Lc_tail", "Lc_end", 250, 252, n=1, back=False)
    sflag_sample(a)
    a("Lw_c3:")
    QC("s25", "s27")
    PC("s25", "s28")
    a(f"s_add_u32 s27, s27, {SQ}\ns_add_u32 s28, s28, {SL}\ns_cmp_eq_u32 s28, {3*SL}\ns_cselect_b32 s28, 0, s28\ns_cselect_b32 s27, 0, s27")
    a("s_cmp_lg_u32 s25, s54\ns_cbranch_scc1 Lw_pc_x")
    sflag_check(a, "Lw_pc", L_FI, L_FL)
    a("s_add_u32 s25, s25, 1\ns_cmp_lt_u32 s25, 16")
    a("s_waitcnt vmcnt(12)\ns_barrier")
    a("s_cbranch_scc1 Lw_cloop")
    a("s_waitcnt vmcnt(0)\ns_barrier")
    trace_out(a)
    stamp_out(a, True)
    a("s_endpgm")
    def events(L, done, evs):
        a(f"{L}:")
        for i, ev in enumerate(evs):
            if i + 1 < len(evs): a(f"s_cmp_lg_u32 s55, {i}\ns_cbranch_scc1 {L}{i+1}")
            a(f"s_mov_b32 s55, {i+1}")
            ev()
            a(f"s_branch {done}")
            if i + 1 < len(evs): a(f"{L}{i+1}:")

    a("Lw_ev:")
    a("s_cmp_lg_u32 s3, 0\ns_cbranch_scc1 Lw_evx")
    a("s_bitcmp1_b32 s25, 0\ns_cbranch_scc1 Lw_evc")
    a("s_add_u32 s26, s26, 2048\ns_add_u32 s54, s54, 1")
    sflag_sample(a)
    a("s_branch Lw_evdone")
    a("Lw_evc:")
    sflag_check(a, "Lw_pa", L_FI, L_FL)
    a("s_add_u32 s54, s54, 7\ns_cmp_gt_u32 s54, 48\ns_cselect_b32 s54, 255, s54")
    a("s_branch Lw_evdone")
    def b0():
        own_fx(a)
        flag_store(a, "s27", L_TMP, L_L16)
        a("s_mov_b32 s54, 52")
    def b1():
        a(f"s_lshl_b32 s26, s32, 13\ns_add_u32 s26, s26, {FX}\ns_mov_b32 s54, 55")
        flag_load(a, "s26", 32, L_FI, L_FL)
    def b2():
        flag_poll(a, "Lw_px", "s26", 32, L_FI, L_FL, loaded=True)
        a("s_mov_b32 s54, 255")
    events("Lw_evx", "Lw_evdone", [b0, b1, b2])

    def x1():
        flag_load(a, "s26", 16, L_FI, L_FL)
        a("s_mov_b32 s54, 16")
    def x2():
        stamp(a, 11)
        flag_poll(a, "Lw_pa0", "s26", 16, L_FI, L_FL, loaded=True)
        stamp(a, 3)
        a("s_mov_b32 s54, 255")
    def x3():
        flag_store(a, "s27", L_TMP, L_L16)
        stamp(a, 2)
        a("s_mov_b32 s54, 255")
    events("Lxl_ev", "Lxl_evdone", [x1, x2, x3])

    a("Ll_h:")
    for i in range(AH):
        a(f"s_waitcnt vmcnt({6*(AH-1-i)})\ns_barrier")
    stamp_out(a, True)
    a("s_endpgm")


def helper(a):
    BA = (4, 68)
    HQ, HS, HL = 132, 134, 135
    nt = " nt" if OPT.get("dq_nt", 1) else ""
    a("s_lshl_b32 s14, s32, 3\ns_add_u32 s14, s14, s4")
    a(f"s_mul_i32 s34, s14, {16*14336}\nv_lshrrev_b32 v1, 3, v0\nv_and_b32 v2, 7, v0")
    a(f"v_mul_u32_u24 v1, 14336, v1\nv_lshl_add_u32 v1, v2, 4, v1\nv_add_u32 v{HQ}, s34, v1\nv_add_u32 v{HQ+1}, {8*14336}, v{HQ}")
    a(f"s_lshr_b32 s34, s4, 2\ns_mul_i32 s34, s34, 7168\nv_lshl_add_u32 v{HS}, v2, 3, s34\nv_lshlrev_b32 v{HL}, 4, v0")
    CS = 24576 if OPT.get("skip1") else 16384
    if OPT.get("skip1"): skip1_adj(a, 140)
    else: a("v_mov_b32 v140, 0\nv_mov_b32 v141, 0")
    a(f"v_add_u32 v140, v140, v{HL}\nv_add_u32 v141, v141, v{HL}")
    a(f"s_mul_i32 s24, s32, {56*CS}\ns_mul_i32 s34, s4, {CS//8}\ns_add_u32 s24, s24, s34")
    def start(h):
        B = BA[h]
        a("s_add_u32 s15, s33, s23\ns_and_b32 s15, s15, 3\ns_lshl_b32 s14, s23, 2\ns_add_u32 s15, s15, s14\ns_xor_b32 s15, s15, s22\ns_min_u32 s15, s15, 55\ns_add_u32 s23, s23, 1")
        a(f"s_lshl_b32 s25, s15, 8\ns_mul_i32 s14, s15, {CS}\ns_add_u32 s{20+h}, s24, s14\ns_lshl_b32 s14, s15, 7\nv_add_u32 v{B+5}, s14, v{HS}")
        for rg in range(2):
            for t in range(2):
                r = B + 32 + rg * 8 + t * 4
                a(f"buffer_load_dwordx4 v[{r}:{r+3}], v{HQ+rg}, s[16:19], s25 offen offset:{128*t}{nt}")
    def scales(h):
        B = BA[h]
        for t in range(2):
            a(f"ds_read_b64 v[{B+8+2*t}:{B+9+2*t}], v{B+5} offset:{64*t}")
            a(f"ds_read_b64 v[{B+12+2*t}:{B+13+2*t}], v{B+5} offset:{14336 + 64*t}")
    WSH = OPT.get("wsh", 2)
    a(f"s_mov_b32 s23, {WSH}\ns_and_b32 s22, s32, 4")
    a("s_min_u32 s14, s4, 6\ns_lshl_b32 s26, s14, 11\ns_mul_i32 s35, s32, 14336\ns_add_u32 s35, s35, s26\ns_mov_b32 m0, s26")
    get_args(a)
    for i, p in enumerate((sSC, sZE)):
        srd(a, 8, p, 16 * F * 2)
        for j in range(2):
            a(f"buffer_load_dwordx4 v{HL}, s[8:11], s35 offen offset:{j*1024} lds")
        if i == 0: a("s_add_u32 m0, s26, 14336")
    srd(a, 16, sQW, D * F * 4)
    start(0)
    start(1)
    srd(a, 8, sWS, SZ_WQ, WS_WQ)
    a(f"s_mul_i32 s27, s32, 56\ns_add_u32 s27, s27, s33\ns_lshl_b32 s27, s27, 8\ns_add_u32 s27, s27, {FA + (WSH + 1) * 1024}")
    get_nonce(a)
    a("s_waitcnt vmcnt(8)\ns_barrier")
    scales(0)
    a("s_waitcnt vmcnt(4)")
    a("s_branch Lh_mid")
    a("Lh_loop:")
    for h in range(2):
        start(1 - h)
        scales(h)
        if h == 0:
            a("s_waitcnt vmcnt(6)")
        else:
            a(f"s_cmp_eq_u32 s23, {WSH + 3}\ns_cselect_b32 s14, 1, s4\ns_cmp_lg_u32 s14, 0")
            a("s_waitcnt vmcnt(6)\ns_barrier")
            a(f"s_cbranch_scc1 Lh_nf{h}")
            flag_store(a, "s27", 136, HL)
            a("s_add_u32 s27, s27, 2048")
            a(f"Lh_nf{h}:")
        if h == 0: a("Lh_mid:")
        a("s_waitcnt lgkmcnt(0)")
        a("\n".join(dq_unpack(BA[h])))
        for rg in range(2):
            a("\n".join(dq_rows(BA[h], rg, f"s{20+h}", 140 + rg)))
    a("s_cmp_lt_u32 s23, 15\ns_cbranch_scc1 Lh_loop")
    a("s_cmp_lg_u32 s4, 0")
    a("s_waitcnt vmcnt(0)\ns_barrier")
    a("s_cbranch_scc1 Lh_nf")
    flag_store(a, "s27", 136, HL)
    a("Lh_nf:")
    stamp(a, 5)
    R0, R1 = OPT.get("pf0", 14), OPT.get("pf1", 14)
    if R0 < R1:
        a("s_and_b32 s14, s32, 1\ns_lshl_b32 s14, s14, 2\ns_add_u32 s14, s14, s33\ns_lshl_b32 s14, s14, 3\ns_add_u32 s14, s14, s4")
        a(f"s_mul_i32 s14, s14, {4*7168}\ns_lshr_b32 s34, s32, 1\ns_mul_i32 s34, s34, 1792\ns_add_u32 s14, s14, s34\ns_add_u32 s14, s14, {R0*256*7168}")
        a(f"v_lshrrev_b32 v1, 4, v0\nv_mul_u32_u24 v1, 7168, v1\nv_and_b32 v2, 15, v0\nv_min_u32 v2, 13, v2\nv_lshl_add_u32 v1, v2, 7, v1")
        srd(a, 16, sV, F * F * 2)
        a(f"s_mov_b32 s23, {R1 - R0}")
        a("Lh_pf:")
        a("buffer_load_dword v2, v1, s[16:19], s14 offen")
        a(f"s_add_u32 s14, s14, {256*7168}\ns_sub_u32 s23, s23, 1\ns_cmp_lg_u32 s23, 0\ns_waitcnt vmcnt(0)\ns_cbranch_scc1 Lh_pf")
    stamp(a, 6)
    a("s_branch L_role")


def gen(opt):
    global OPT
    OPT = opt
    a = Asm()
    a(HDR.rstrip())
    a(f"; @launch grid=(256,1,1) block=(512,1,1) lds={LDS_BYTES}")
    a('.amdgcn_target "amdgcn-amd-amdhsa--gfx950"\n.text')
    a(f".globl {NAME}\n.p2align 8\n.type {NAME},@function\n{NAME}:")
    a("s_cmp_ge_u32 s2, 256\ns_cbranch_scc1 L_end")
    stamp(a, 0)
    a("s_load_dwordx16 s[36:51], s[0:1], 0")
    a(f"s_load_dwordx2 s[{sWS}:{sWS+1}], s[0:1], 64")
    a("v_lshrrev_b32 v1, 6, v0")
    a("v_and_b32 v0, 63, v0")
    a("v_readfirstlane_b32 s4, v1")
    a("s_and_b32 s28, s2, 7\ns_lshr_b32 s29, s2, 3")
    a("s_and_b32 s3, s4, 3")
    if OPT.get("warm", 0) & 1:
        a("s_cmp_lg_u32 s4, 3\ns_cbranch_scc1 L_nw")
        touch_code(a, "L_tc0", NAME, "L_end", 250, 252)
        a("L_nw:")
    a("s_lshr_b32 s6, s28, 1\ns_mov_b32 s35, s29")
    if OPT.get("xmap", 0):
        a("s_sub_u32 s34, s29, 20\ns_cmp_lt_u32 s34, 8\ns_cselect_b32 s34, s6, 0\ns_cmp_eq_u32 s34, 1\ns_cselect_b32 s34, 28, 16\ns_xor_b32 s35, s29, s34")
    a("s_lshl_b32 s6, s6, 3\ns_and_b32 s34, s35, 7\ns_add_u32 s6, s6, s34")
    a("s_and_b32 s7, s28, 1\ns_lshl_b32 s7, s7, 2\ns_lshr_b32 s34, s35, 3\ns_add_u32 s7, s7, s34")
    a("s_and_b32 s32, s28, 1\ns_lshl_b32 s32, s32, 2\ns_and_b32 s33, s29, 3\ns_add_u32 s32, s32, s33")
    a("s_lshr_b32 s33, s28, 1\ns_mul_i32 s33, s33, 7\ns_lshr_b32 s34, s29, 2\ns_add_u32 s33, s33, s34")
    a("s_add_u32 s35, s33, 2\ns_lshr_b32 s35, s35, 2\ns_sub_u32 s54, s34, s35\ns_sub_u32 s35, s33, s34\ns_add_u32 s35, s35, 2\ns_lshr_b32 s35, s35, 2\ns_add_u32 s54, s54, s35")
    a("s_cmp_ge_u32 s54, 4\ns_cselect_b32 s54, 16, s54\ns_and_b32 s35, s33, 3\ns_cmp_eq_u32 s35, 1\ns_cselect_b32 s54, 16, s54")
    a("s_lshr_b32 s35, s28, 1\ns_lshl_b32 s35, s35, 2\ns_add_u32 s54, s54, s35")
    a("s_and_b32 s34, s29, 3\ns_cmp_ge_u32 s29, 28")
    a("s_cselect_b32 s5, 1, 0\ns_cselect_b32 s32, s28, s32\ns_cselect_b32 s33, s34, s33\ns_cselect_b32 s54, 16, s54")
    a("s_cbranch_scc1 L_h")
    a("L_role:")
    a("s_cmp_lt_u32 s4, 4\ns_cbranch_scc1 L_c")
    loader(a)
    a("L_h:")
    helper(a)
    a("L_c:")
    compute(a)
    a("L_end:\ns_endpgm")
    a('.section .rodata,"a"\n.p2align 6')
    a(kd(NAME, 256, 256))
    return a.text()


if __name__ == "__main__":
    opt = dict(kv.split("=") for kv in sys.argv[2:])
    opt = {k: (int(v) if v.lstrip("-").isdigit() else v) for k, v in opt.items()}
    open(sys.argv[1], "w").write(gen(opt))
```

```python
import sys
from asm import Asm, kd

NAME = "standalone__weight_only_int_quip__prompt_kernel"
S, D, F = 2048, 1024, 3584
WS_FLAG = 0
FA, FX, FB, EPOCH, FA1 = 0, 128 << 10, 192 << 10, 252 << 10, 256 << 10
SZ_FLAG = 288 << 10
WS_WQ = 1 << 20
WS_XRF = 13 << 20
WS_WPF = 20 << 20
WS_STAMP = 64 << 20
SZ_W = D * F * 2
SZ_X = S * D * 2
SZ_WQ = 8 * 56 * 24576
SPIN_MAX = 1 << 15

HDR = """; Kernarg layout (72 bytes, ptrs only, base s[0:1]):
"""
sX, sQW, sSC, sZE, sU, sV, sOUT, sWS, sNONCE = 36, 38, 40, 42, 44, 46, 48, 30, 52

OPT = {}


def srd(a, d, b, nbytes, add=0):
    if add:
        a(f"s_add_u32 s{d}, s{b}, {add}")
        a(f"s_addc_u32 s{d+1}, s{b+1}, 0")
    else:
        a(f"s_mov_b32 s{d}, s{b}")
        a(f"s_mov_b32 s{d+1}, s{b+1}")
    a(f"s_mov_b32 s{d+2}, {nbytes}")
    a(f"s_mov_b32 s{d+3}, 0x20000")


def interleave(a, mf, others):
    for i, m in enumerate(mf):
        if isinstance(m, tuple):
            for p in m[0]:
                a(p)
            a(m[1])
        else:
            a(m)
        for o in others.get(i, []):
            a(o)


class Sched:
    def __init__(self, a):
        self.a, self.q = a, []
    def read(self, r):
        self.a(r[0]); self.q.append(r[1])
    def need(self, regs):
        idx = [i for i, d in enumerate(self.q) if d in regs]
        if idx:
            n = min(len(self.q) - 1 - idx[-1], 15)
            self.a(f"s_waitcnt lgkmcnt({n})")
            self.q = self.q[len(self.q) - n:] if n else []
    def drain(self, extra=""):
        self.a(f"s_waitcnt {extra}lgkmcnt(0)"); self.q = []
    def run(self, mf, reads=(), fill=None, every=1, group=1):
        reads = list(reads); nxt = 0
        for i, (m, A, B) in enumerate(mf):
            if i % group == 0:
                self.need({x for mm in mf[i:i + group] for x in mm[1:]})
            self.a(m)
            if reads and i >= nxt:
                k = next((k for k, r in enumerate(reads) if r[2] <= i), None)
                if k is not None:
                    self.read(reads.pop(k)); nxt = i + every
            for o in (fill or {}).get(i, []): self.a(o)
        for r in reads: self.read(r)


def chain(acc, A, B, rts, cs, zero=False):
    out = []
    for n, rt in enumerate(rts):
        for c in (cs if n % 2 == 0 else cs[::-1]):
            for ks in range(2):
                out.append((mfma(acc(rt, c), A(rt, ks), B(c, ks), zero and ks == 0), A(rt, ks), B(c, ks)))
    return out


NSTAMP = 12
def stamp(a, idx):
    if not OPT.get("stamp"): return
    a(f"s_memrealtime s[{60+2*idx}:{61+2*idx}]")
    if idx == 0:
        a("s_memtime s[86:87]")
        for i in range(1, NSTAMP): a(f"s_mov_b32 s{60+2*i}, 0")


def stamp_out(a, loader):
    if not OPT.get("stamp"): return
    a("s_mov_b64 exec, -1\ns_waitcnt vmcnt(0)")
    a(f"s_memrealtime s[84:85]\ns_memtime s[88:89]\ns_waitcnt lgkmcnt(0)")
    a("s_sub_u32 s88, s88, s86")
    srd(a, 92, sWS, 1 << 20, WS_STAMP)
    a(f"s_lshl_b32 s90, s2, 3\ns_add_u32 s90, s90, s3\ns_add_u32 s90, s90, {4 if loader else 0}\ns_lshl_b32 s90, s90, 6")
    a("v_mov_b32 v0, 0")
    a("s_getreg_b32 s89, hwreg(HW_REG_XCC_ID)\ns_getreg_b32 s91, hwreg(HW_REG_HW_ID)")
    vals = [f"s{60+2*i}" for i in range(NSTAMP + 1)] + ["s88", "s89", "s91"]
    for i, v in enumerate(vals):
        a(f"v_mov_b32 v1, {v}\nbuffer_store_dword v1, v0, s[92:95], s90 offen offset:{4*i}")


def trace(a, mode=1):
    if OPT.get("trace") != mode: return
    a("s_waitcnt lgkmcnt(0)\ns_mov_b32 m0, s25\nv_writelane_b32 v100, s96, m0")
    a("s_cmp_eq_u32 s3, 2\ns_cbranch_scc1 1f\ns_memrealtime s[96:97]\ns_branch 2f\n1:\ns_memtime s[96:97]\n2:")


def trace_out(a):
    if not OPT.get("trace"): return
    srd(a, 92, sWS, 1 << 20, WS_STAMP + (1 << 20))
    a(f"s_lshl_b32 s90, s2, 2\ns_add_u32 s90, s90, s3\ns_lshl_b32 s90, s90, 8\nv_lshlrev_b32 v1, 2, v0")
    a("buffer_store_dword v100, v1, s[92:95], s90 offen")


def mfma(acc, A, B, zero=False):
    C = "0" if zero else f"v[{acc}:{acc+3}]"
    return f"v_mfma_f32_16x16x32_bf16 v[{acc}:{acc+3}], v[{A}:{A+3}], v[{B}:{B+3}], {C}"


def flag_store(a, soff, vt, lane16):
    for i in range(4): a(f"v_mov_b32 v{vt+i}, s{sNONCE}")
    a("s_mov_b64 exec, 0xff")
    a(f"buffer_store_dwordx4 v[{vt}:{vt+3}], v{lane16}, s[56:59], {soff} offen sc1")
    a("s_mov_b64 exec, -1")


def flag_load(a, soff, n, vidx, vt):
    a(f"s_mov_b64 exec, {hex((1 << n) - 1)}")
    a(f"buffer_load_dword v{vt}, v{vidx}, s[56:59], {soff} offen sc1")
    a("s_mov_b64 exec, -1")


def flag_poll(a, L, soff, n, vidx, vt, loaded=False):
    a(f"s_mov_b32 s53, {SPIN_MAX}")
    if loaded: a(f"s_branch {L}_c")
    a(f"{L}:")
    flag_load(a, soff, n, vidx, vt)
    a("s_sub_u32 s53, s53, 1\ns_cmp_eq_u32 s53, 0")
    a(f"s_cbranch_scc1 {L}_x")
    a("s_waitcnt vmcnt(0)")
    a(f"{L}_c:")
    a(f"v_cmp_ne_u32 vcc, s{sNONCE}, v{vt}")
    a(f"s_and_b32 vcc_lo, vcc_lo, {hex((1 << n) - 1)}")
    a(f"s_cbranch_scc1 {L}")
    a(f"{L}_x:")


def sflag_sample(a):
    a(f"s_add_u32 s12, s{sWS}, s26\ns_addc_u32 s13, s{sWS+1}, 0")
    for q in range(4):
        a(f"s_load_dword s{98+q}, s[12:13], {WS_FLAG + q*256}")


def sflag_test(a):
    a("s_waitcnt lgkmcnt(0)")
    a(f"s_xor_b32 s14, s98, s{sNONCE}")
    for q in range(1, 4):
        a(f"s_xor_b32 s15, s{98+q}, s{sNONCE}\ns_or_b32 s14, s14, s15")


def sflag_check(a, L, vidx, vt):
    sflag_test(a)
    a(f"s_cbranch_scc0 {L}_x")
    flag_poll(a, L, "s26", 4, vidx, vt)


def touch_code(a, L, lo, hi, va, vd, lane="v0", sh=7, n=3, back=True):
    a(f"s_getpc_b64 s[12:13]\n{L}:")
    if back: a(f"s_sub_u32 s12, s12, {L}-{lo}\ns_subb_u32 s13, s13, 0")
    else: a(f"s_add_u32 s12, s12, {lo}-{L}\ns_addc_u32 s13, s13, 0")
    a(f"v_lshlrev_b32 v{va}, {sh}, {lane}")
    for i in range(n):
        a(f"v_min_u32 v{va+1}, {hi}-{lo}-4, v{va}\nglobal_load_dword v{vd}, v{va+1}, s[12:13]\nv_add_u32 v{va}, 8192, v{va}")


def get_args(a):
    a("s_waitcnt lgkmcnt(0)")
    a(f"s_load_dword s{sNONCE}, s[{sWS}:{sWS+1}], {WS_FLAG + EPOCH}")


def get_nonce(a):
    srd(a, 56, sWS, SZ_FLAG, WS_FLAG)
    a(f"s_waitcnt lgkmcnt(0)\ns_mul_i32 s{sNONCE}, s{sNONCE}, 1664525\ns_add_u32 s{sNONCE}, s{sNONCE}, 1013904223")


def dq_addr(a, B, nrg, wreg, sout):
    sh = {2: 3, 4: 2}[nrg]
    a(f"s_lshl_b32 s14, s32, {sh}\ns_add_u32 s14, s14, {wreg}")
    a(f"s_mul_i32 s34, s14, {nrg*8*14336}\ns_lshl_b32 s35, s15, 8\ns_add_u32 s34, s34, s35")
    a(f"s_lshr_b32 s14, s14, {sh-1}\ns_mul_i32 s35, s14, 7168\ns_lshl_b32 s14, s15, 7\ns_add_u32 s35, s35, s14")
    a(f"v_lshrrev_b32 v{B}, 3, v0\nv_and_b32 v{B+5}, 7, v0")
    a(f"v_mul_u32_u24 v{B}, 14336, v{B}\nv_lshl_add_u32 v{B}, v{B+5}, 4, v{B}\nv_add_u32 v{B}, s34, v{B}")
    for rg in range(1, nrg):
        a(f"v_add_u32 v{B+rg}, {rg*8*14336}, v{B}")
    a(f"v_lshl_add_u32 v{B+5}, v{B+5}, 3, s35\nv_lshlrev_b32 v{B+4}, 4, v0")
    a(f"s_mul_i32 {sout}, s32, 56\ns_add_u32 {sout}, {sout}, s15\ns_lshl_b32 {sout}, {sout}, {sh}\ns_add_u32 {sout}, {sout}, {wreg}\ns_lshl_b32 {sout}, {sout}, {14-sh}")


def dq_issue(a, B, rgs, scales=True):
    nt = " nt" if OPT.get("dq_nt", 1) else ""
    if scales:
        for t in range(2):
            a(f"global_load_dwordx2 v[{B+8+2*t}:{B+9+2*t}], v{B+5}, s[{sSC}:{sSC+1}] offset:{64*t}")
            a(f"global_load_dwordx2 v[{B+12+2*t}:{B+13+2*t}], v{B+5}, s[{sZE}:{sZE+1}] offset:{64*t}")
    for rg in rgs:
        for t in range(2):
            r = B + 32 + rg * 8 + t * 4
            a(f"global_load_dwordx4 v[{r}:{r+3}], v{B+rg}, s[{sQW}:{sQW+1}] offset:{128*t}{nt}")


def dq_unpack(B):
    o = []
    for j in range(4):
        o += [f"v_lshlrev_b32 v{B+16+2*j}, 16, v{B+8+j}", f"v_and_b32 v{B+17+2*j}, 0xffff0000, v{B+8+j}"]
        o += [f"v_lshlrev_b32 v{B+24+2*j}, 16, v{B+12+j}", f"v_and_b32 v{B+25+2*j}, 0xffff0000, v{B+12+j}"]
    return o


def dq_rows(B, rg, sout, vaddr=None):
    r = B + 32 + rg * 8
    o = [f"v_cvt_f32_i32 v{r+e}, v{r+e}" for e in range(8)]
    o += [f"v_sub_f32 v{r+e}, v{r+e}, v{B+24+e}" for e in range(8)]
    o += [f"v_cvt_pk_bf16_f32 v{B+8+p}, v{r+2*p}, v{r+2*p+1}" for p in range(4)]
    for p in range(4):
        o += [f"v_lshlrev_b32 v{r+2*p}, 16, v{B+8+p}", f"v_and_b32 v{r+2*p+1}, 0xffff0000, v{B+8+p}"]
    o += [f"v_mul_f32 v{r+e}, v{r+e}, v{B+16+e}" for e in range(8)]
    o += [f"v_cvt_pk_bf16_f32 v{r+p}, v{r+2*p}, v{r+2*p+1}" for p in range(4)]
    o.append(f"buffer_store_dwordx4 v[{r}:{r+3}], v{vaddr or B+4}, s[8:11], {sout} offen offset:{rg*1024} sc1")
    return o


def dq_now(a, B, nrg, sout):
    a(f"s_waitcnt vmcnt({2*nrg})")
    a("\n".join(dq_unpack(B)))
    for rg in range(nrg):
        a(f"s_waitcnt vmcnt({2*nrg - 2 - 2*rg + rg})")
        a("\n".join(dq_rows(B, rg, sout)))


SL = 16384 + 16 * 1056
NSL = 4
CQ0 = 3 * SL
SQ = 16 * 1040
LDS_BYTES = max(NSL * SL, CQ0 + 3 * SQ)

B_FR = 64
B_PA = 128
B_TA = 132
V_L16 = 248
V_T = 240
def bP(rt, ks): return B_FR + (rt * 2 + ks) * 4
def bT(c, ks): return B_FR + 32 + (c * 2 + ks) * 4
def b_mf(cs): return chain(lambda rt, c: (rt * 4 + c) * 4, bP, bT, range(4), cs)


def b_rdP(slot, rt, at=0):
    return [(f"ds_read_b128 v[{bP(rt,ks)}:{bP(rt,ks)+3}], v{B_PA + (slot//2)*2 + ks} offset:{(slot%2)*SL + rt*2048}", bP(rt, ks), at) for ks in range(2)]


def b_rdT(slot, c):
    return [(f"ds_read_b64_tr_b16 v[{bT(c,ks)+t*2}:{bT(c,ks)+t*2+1}], v{B_TA + slot//2} offset:{(slot%2)*SL + 16384 + ks*8448 + t*512 + c*32}", bT(c, ks), 0)
            for ks in range(2) for t in range(2)]


def row_read_base(a, dst, t0, wshift):
    a(f"v_and_b32 v{t0}, 15, v0\nv_lshrrev_b32 v{t0+1}, 4, v0")
    a(f"v_lshrrev_b32 v{t0+2}, 1, v{t0}\nv_xor_b32 v{t0+2}, v{t0+2}, v{t0+1}\nv_lshlrev_b32 v{t0+2}, 4, v{t0+2}\nv_lshl_add_u32 v{t0+2}, v{t0}, 7, v{t0+2}")
    a(f"s_lshr_b32 s14, s3, 1\ns_lshl_b32 s14, s14, {wshift}\nv_add_u32 v{dst}, s14, v{t0+2}\nv_xor_b32 v{dst+1}, 64, v{dst}")


def tr_read_base(a, dst, t0):
    a(f"v_bfe_u32 v{t0}, v0, 2, 3\nv_mul_u32_u24 v{t0}, 1056, v{t0}\nv_lshrrev_b32 v{t0+1}, 5, v0\nv_lshl_add_u32 v{t0}, v{t0+1}, 8, v{t0}")
    a(f"v_and_b32 v{t0+1}, 3, v0\nv_lshl_add_u32 v{t0}, v{t0+1}, 3, v{t0}\ns_and_b32 s14, s3, 1\ns_lshl_b32 s14, s14, 7")
    a(f"v_add_u32 v{dst}, s14, v{t0}")


C_FR = 128
C_PA = 224
C_QA = 227
C_WA = 228
C_SA = 229


def cP(rt, ks): return C_FR + (rt * 2 + ks) * 4
def cQ(c, ks): return C_FR + 32 + (c * 2 + ks) * 4
def c_mf(cs, rts=range(4), zero=False, preg=None):
    return chain(lambda rt, c: (rt * 8 + c) * 4, preg or cP, cQ, rts, cs, zero)


def c_rdP(slot, rt, at=0, dst=None):
    d = rt if dst is None else dst
    return [(f"ds_read_b128 v[{cP(d,ks)}:{cP(d,ks)+3}], v{C_PA+slot} offset:{ks*16384 + rt*1024}", cP(d, ks), at) for ks in range(2)]


def c_rdQ(slot, cs):
    return [(f"ds_read_b128 v[{cQ(c,ks)}:{cQ(c,ks)+3}], v{C_QA} offset:{slot*SQ + ks*8320 + c*16}", cQ(c, ks), 0) for c in cs for ks in range(2)]


def spread(rd, every=2):
    return {every * i: [r] for i, r in enumerate(rd)}


X_ACC = 136
X_FR = 168
X_PA = 216
X_TA = 220


def x_reads(slot, ks, buf):
    b = X_FR + buf * 24
    P = [f"ds_read_b128 v[{b+rt*4}:{b+rt*4+3}], v{X_PA + (slot//2)*2 + ks} offset:{(slot%2)*SL + rt*2048}" for rt in range(4)]
    T = [f"ds_read_b64_tr_b16 v[{b+16+c*4+t*2}:{b+16+c*4+t*2+1}], v{X_TA + slot//2} offset:{(slot%2)*SL + 16384 + ks*8448 + t*512 + c*32}"
         for c in range(2) for t in range(2)]
    return [T[0], T[1], P[0], T[2], T[3], P[1], P[2], P[3]]


def x_mfmas(buf, waits):
    b = X_FR + buf * 24
    out = []
    for n in range(8):
        rt, c = n >> 1, (n ^ (n >> 1)) & 1
        m = mfma(X_ACC + (rt * 2 + c) * 4, b + 16 + c * 4, b + rt * 4)
        out.append(([f"s_waitcnt lgkmcnt({waits[n]})"], m) if n in waits else m)
    return out


def x_epilogue(a):
    for rt in range(4):
        lo = X_ACC + rt * 8
        t = V_T + (rt & 1) * 4
        for p in range(4):
            a(f"v_cvt_pk_bf16_f32 v{t+p}, v{lo+2*p}, v{lo+2*p+1}")
        a(f"buffer_store_dwordx4 v[{t}:{t+3}], v{V_L16}, s[16:19], s24 offen offset:{rt*1024} sc1")


def own_fx(a):
    a(f"s_lshl_b32 s27, s6, 3\ns_add_u32 s27, s27, s7\ns_lshl_b32 s27, s27, 8\ns_add_u32 s27, s27, {FX}")


def compute(a):
    DQ = 64
    WSH = OPT.get("wsh", 2)
    if WSH == 4:
        a("s_and_b32 s15, s32, 4\ns_xor_b32 s15, s15, s54")
        dq_addr(a, DQ, 4, "s3", "s28")
    else:
        a("s_lshr_b32 s15, s54, 1\ns_and_b32 s29, s54, 1\ns_lshl_b32 s29, s29, 2\ns_add_u32 s29, s29, s3")
        dq_addr(a, DQ, 2, "s29", "s28")
    get_args(a)
    a("s_cmp_ge_u32 s54, 16\ns_cbranch_scc1 Lc_nodq0")
    dq_issue(a, DQ, range(WSH))
    a("Lc_nodq0:")
    if OPT.get("tlb"):
        a("s_cmp_lg_u32 s3, 3\ns_cbranch_scc1 Lc_ntlb")
        for p, sz in ((sV, F * F * 2), (sOUT, S * F * 2), (sWS, 28 << 20))[:OPT["tlb"]]:
            a(f"v_mul_u32_u24 v250, {sz // 64 // 128 * 128}, v0\nglobal_load_dword v251, v250, s[{p}:{p+1}]")
        a("s_waitcnt vmcnt(0)")
        a("Lc_ntlb:")
    srd(a, 8, sWS, SZ_WQ, WS_WQ)
    a(f"v_lshlrev_b32 v{V_L16}, 4, v0")
    row_read_base(a, B_PA, V_T, 13)
    a(f"v_mov_b32 v{X_PA}, v{V_T+2}\nv_xor_b32 v{X_PA+1}, 64, v{X_PA}")
    tr_read_base(a, B_TA, V_T)
    a(f"s_lshl_b32 s14, s3, 6\nv_add_u32 v{X_TA}, s14, v{V_T}")
    for r_ in (B_PA, X_PA):
        a(f"v_add_u32 v{r_+2}, {2*SL}, v{r_}\nv_add_u32 v{r_+3}, {2*SL}, v{r_+1}")
    for r_ in (B_TA, X_TA):
        a(f"v_add_u32 v{r_+1}, {2*SL}, v{r_}")
    a(f"s_lshl_b32 s14, s3, 12\nv_add_u32 v{C_PA}, s14, v{V_L16}\nv_add_u32 v{C_PA+1}, {SL}, v{C_PA}\nv_add_u32 v{C_PA+2}, {2*SL}, v{C_PA}")
    a(f"v_bfe_u32 v{V_T}, v0, 1, 3\nv_mul_u32_u24 v{V_T}, 1040, v{V_T}\nv_lshrrev_b32 v{V_T+1}, 4, v0\nv_lshl_add_u32 v{V_T}, v{V_T+1}, 8, v{V_T}")
    a(f"v_and_b32 v{V_T+2}, 1, v0\nv_lshl_add_u32 v{V_T}, v{V_T+2}, 7, v{V_T}\nv_add_u32 v{C_QA}, {CQ0}, v{V_T}")
    a(f"s_lshr_b32 s14, s3, 1\ns_mul_i32 s14, s14, {SQ}\ns_and_b32 s34, s3, 1\ns_mul_i32 s34, s34, {4*1040}\ns_add_u32 s14, s14, s34\ns_add_u32 s14, s14, {CQ0}")
    a(f"v_add_u32 v{C_WA}, s14, v{V_L16}")
    col_lane(a, V_T + 2, V_T + 3, OPT.get("mix", 0))
    a(f"v_mul_u32_u24 v{V_T+1}, {4*7168}, v{V_T+1}\nv_add_u32 v{C_SA}, v{V_T+2}, v{V_T+1}")
    for i in list(range(64)) + list(range(X_ACC, X_ACC + 32)):
        a(f"v_mov_b32 v{i}, 0")
    a("s_lshr_b32 s24, s6, 2\ns_lshl_b32 s24, s24, 5\ns_lshl_b32 s34, s7, 2\ns_add_u32 s24, s24, s34\ns_add_u32 s24, s24, s3")
    a("s_lshl_b32 s24, s24, 2\ns_and_b32 s34, s6, 3\ns_add_u32 s24, s24, s34\ns_lshl_b32 s24, s24, 12")
    srd(a, 16, sWS, SZ_X, WS_XRF)
    get_nonce(a)
    a("s_cmp_ge_u32 s54, 16\ns_cbranch_scc1 Lc_nodq1")
    dq_now(a, DQ, WSH, "s28")
    a("Lc_nodq1:")
    stamp(a, 1)
    XW = {0: 5, 1: 4, 2: 4, 4: 5, 6: 6}
    a("s_mov_b32 s23, 4\ns_barrier")
    stamp(a, 9)
    for r in x_reads(0, 0, 0): a(r)
    a("s_branch Lx_mid")
    a("Lx_loop:")
    for s in range(NSL):
        a("s_barrier")
        interleave(a, x_mfmas(1, {}), spread(x_reads(s, 0, 0), 1))
        if s == 0: a("Lx_mid:")
        if OPT.get("xfront", 1):
            rd = x_reads(s, 1, 1)
            interleave(a, x_mfmas(0, {0: 5, 1: 5, 2: 6, 4: 9, 6: 8}), {i: rd[2*i:2*i+2] for i in range(4)})
        else:
            interleave(a, x_mfmas(0, XW), spread(x_reads(s, 1, 1), 1))
        XACK = OPT.get("xack", 5)
        if s == XACK - 5: a("s_cmp_eq_u32 s23, 4\ns_cbranch_scc1 Lx_na\ns_waitcnt vmcnt(0)\nLx_na:")
        if s == NSL - 1:
            a("s_sub_u32 s23, s23, 1\ns_cmp_lg_u32 s23, 0")
        a("s_waitcnt vmcnt(0) lgkmcnt(0)" if s == XACK - 1 else "s_waitcnt lgkmcnt(0)")
    a("s_cbranch_scc1 Lx_loop")
    stamp(a, 10)
    a("s_cmp_lg_u32 s5, 0\ns_cbranch_scc1 Lc_h")
    a("s_barrier")
    stamp(a, 2)
    LO, HI = [0, 1], [2, 3]
    sc = Sched(a)
    rd = b_rdT(0, 0) + b_rdP(0, 0) + b_rdT(0, 1) + b_rdP(0, 1) + b_rdP(0, 2)
    interleave(a, x_mfmas(1, {}), spread([r[0] for r in rd[:8]], 1))
    for r in rd[8:]: a(r[0])
    a(f"s_lshl_b32 s25, s32, 2\ns_add_u32 s25, s25, s3\ns_mov_b32 s23, {56 // NSL}")
    x_epilogue(a)
    a(f"s_lshr_b32 s34, s3, 1\ns_lshl_b32 s24, s32, 1\ns_add_u32 s24, s24, s34\ns_mul_i32 s24, s24, {2*224*1024}")
    a("s_and_b32 s34, s3, 1\ns_lshl_b32 s35, s33, 1\ns_add_u32 s34, s34, s35\ns_lshl_b32 s34, s34, 12\ns_add_u32 s24, s24, s34")
    srd(a, 16, sWS, SZ_W, WS_WPF)
    a(f"s_add_u32 s26, s24, {224*1024}")
    a("s_waitcnt lgkmcnt(0)\ns_branch Lb_mid")
    a("Lb_loop:")
    for s in range(NSL):
        a("s_barrier")
        sc.run(b_mf(HI), b_rdT(s, 0) + b_rdP(s, 0, 3) + b_rdT(s, 1) + b_rdP(s, 1, 7) + b_rdP(s, 2, 11), group=4)
        if s == 0: a("Lb_mid:")
        fill = {13: ["s_sub_u32 s23, s23, 1"], 14: ["s_cmp_lg_u32 s23, 0"]} if s == NSL - 1 else {}
        sc.run(b_mf(LO), b_rdP(s, 3) + b_rdT(s, 2) + b_rdT(s, 3), fill, group=4)
        sc.drain("vmcnt(0) " if s == NSL - 1 else "")
    a("s_cbranch_scc1 Lb_loop")
    a("s_barrier")
    stamp(a, 3)
    WT = 136
    def w_out(pair, o):
        lo, hi = ((2 * pair) * 4 + o) * 4, ((2 * pair + 1) * 4 + o) * 4
        t = WT + (pair * 4 + o) * 4
        return [f"v_cvt_pk_bf16_f32 v{t}, v{lo}, v{lo+1}", f"v_cvt_pk_bf16_f32 v{t+1}, v{lo+2}, v{lo+3}",
                f"v_cvt_pk_bf16_f32 v{t+2}, v{hi}, v{hi+1}", f"v_cvt_pk_bf16_f32 v{t+3}, v{hi+2}, v{hi+3}",
                f"buffer_store_dwordx4 v[{t}:{t+3}], v{V_L16}, s[16:19], s{24+2*pair} offen offset:{o*1024} sc1"]
    def w_lds(pair, o):
        t = WT + (pair * 4 + o) * 4
        return f"ds_write_b128 v{C_WA}, v[{t}:{t+3}] offset:{pair*8320 + o*1040}"
    fill = {}
    for n, (pair, o) in enumerate(((0, 0), (0, 1), (1, 0), (1, 1))):
        w = w_out(pair, o)
        fill[4 * n] = w[0:2]; fill[4 * n + 1] = w[2:4]; fill[4 * n + 2] = w[4:5]; fill[4 * n + 3] = [w_lds(pair, o)]
    sc.run(b_mf(HI), fill=fill)
    for pair, o in ((0, 2), (0, 3), (1, 3), (1, 2)):
        a("\n".join(w_out(pair, o)))
    for pair, o in ((0, 2), (0, 3), (1, 3), (1, 2)):
        a(w_lds(pair, o))
    srd(a, 16, sOUT, S * F * 2)
    a(f"s_lshl_b32 s34, s33, 8\ns_mul_i32 s24, s25, {64*7168}\ns_add_u32 s24, s24, s34")
    a("s_waitcnt lgkmcnt(0)")
    stamp(a, 4)
    LO, HI = [0, 1, 2, 3], [4, 5, 6, 7]
    def c_first(slot):
        return c_rdP(slot, 0) + c_rdQ(slot, LO) + c_rdP(slot, 1) + c_rdP(slot, 2)
    a("s_barrier")
    for r in c_first(0): sc.read(r)
    a("s_mov_b32 s23, 4")
    z = [f"v_mov_b32 v{(rt*8+c)*4+i}, 0" for rt in range(4) for c in HI for i in range(4)]
    sc.run(c_mf(LO, zero=True), c_rdP(0, 3) + c_rdQ(0, HI), {10 + i: z[3*i:3*i+3] for i in range(22)}, group=2)
    sc.drain("vmcnt(0) ")
    stamp(a, 5)
    EB = OPT.get("eb", 2)
    if EB: a("s_barrier")
    a("Lc_loop:")
    for s in (1, 2, 0):
        if not EB:
            if s == 2: a("s_cmp_eq_u32 s23, 4\ns_cbranch_scc1 Lc_peel")
            a("s_barrier")
        sc.run(c_mf(HI), c_rdQ(s, LO[:2]) + c_rdP(s, 0, 7) + c_rdQ(s, LO[2:]) + c_rdP(s, 1, 15) + c_rdP(s, 2, 23), every=2, group=8)
        if s == 2: a("Lc_mid:")
        fill = {21: ["s_sub_u32 s23, s23, 1"], 23: ["s_cmp_lg_u32 s23, 0"]} if s == 0 else {}
        if EB:
            fill[30 - EB] = ["s_waitcnt lgkmcnt(0)"]
            fill[31 - EB] = ["s_barrier"]
            if s == 1:
                fill[23] = ["s_cmp_eq_u32 s23, 4"]
                fill[31 - EB] = ["s_cbranch_scc1 Lc_peel", "s_barrier"]
        sc.run(c_mf(LO), c_rdP(s, 3) + c_rdQ(s, HI), fill, every=2, group=8)
        if EB: sc.q = []
        else: sc.drain()
    a("s_cbranch_scc1 Lc_loop")
    a("Lc_tail:")
    ynt = {0: "", 1: " nt", 2: " sc1", 3: " sc0 sc1"}[OPT.get("y_nt", 2)]

    def row_out(rt, r, t):
        o = []
        for p in range(4):
            o.append(f"v_cvt_pk_bf16_f32 v{t+p}, v{(rt*8+2*p)*4+r}, v{(rt*8+2*p+1)*4+r}")
        o.append(f"buffer_store_dwordx4 v[{t}:{t+3}], v{C_SA}, s[16:19], s24 offen{ynt}")
        o.append(f"s_add_u32 s24, s24, {7168 if r < 3 else 13*7168}")
        return o
    def u_slot(n): return (13 + n % 3) % 3
    def u_rdP(n, at=(0, 0)): return [r for k in range(2) for r in c_rdP(u_slot(n), 2 * (n // 3) + k, at[k], 2 * (n & 1) + k)]
    def u_mf(n, cs, rts=None):
        h = n // 3
        return c_mf(cs, rts or (2 * h, 2 * h + 1), preg=lambda rt, ks: cP(2 * (n & 1) + (rt & 1), ks))
    if not EB: a("s_barrier")
    sc.run(c_mf(HI), c_rdQ(u_slot(0), LO) + u_rdP(0, (7, 15)), every=2, group=8)
    outs = [row_out(rt, r, V_T + ((rt * 4 + r) & 1) * 4) for rt in range(4) for r in range(4)]
    def put(fill, pos, q):
        o = outs[q]
        fill[pos] = o[0:2]; fill[pos + 1] = o[2:4]; fill[pos + 2] = o[4:6]
    for n in range(5):
        f1, f2 = {}, {}
        if n >= 3:
            put(f1, 9, 3 * (n - 3)); put(f1, 12, 3 * (n - 3) + 1); put(f2, 12, 3 * (n - 3) + 2)
        sc.run(u_mf(n, LO), c_rdQ(u_slot(n), HI), f1, group=4)
        if n < 2: a("s_barrier")
        sc.run(u_mf(n, HI), u_rdP(n + 1)[:2] + c_rdQ(u_slot(n + 1), LO) + u_rdP(n + 1)[2:], f2, group=4)
    f1, f2 = {}, {}
    put(f1, 9, 6); put(f1, 12, 7)
    sc.run(u_mf(5, LO + HI, (2,)), c_rdQ(u_slot(5), HI), f1, group=2)
    stamp(a, 7)
    put(f2, 7, 8); put(f2, 10, 9); put(f2, 13, 10)
    sc.run(u_mf(5, (LO + HI)[::-1], (3,)), fill=f2)
    a("\n".join(outs[11]))
    a("s_nop 1")
    for q in range(12, 16):
        a("\n".join(row_out(3, q - 12, C_FR + (q & 3) * 4)))
    stamp(a, 8)
    a("s_or_b32 s14, s2, s3\ns_cmp_lg_u32 s14, 0\ns_cbranch_scc1 Lc_end")
    a(f"s_mov_b32 s14, {EPOCH}")
    flag_store(a, "s14", V_T, V_L16)
    a("Lc_end:")
    stamp_out(a, False)
    a("s_endpgm")
    a("Lc_peel:")
    sc.q = []
    sc.run((c_mf(LO)[32 - EB:] if EB else []) + c_mf(HI))
    a("s_barrier")
    stamp(a, 6)
    for r in c_first(2): a(r[0])
    a("s_branch Lc_mid")
    a("Lc_h:")
    interleave(a, x_mfmas(1, {}), {})
    a("s_nop 7")
    x_epilogue(a)
    a("s_waitcnt vmcnt(0)\ns_barrier")
    a("s_cmp_lg_u32 s3, 0\ns_cbranch_scc1 Lc_end")
    if OPT.get("warm", 0) & 2: touch_code(a, "L_tc1", NAME, "L_end", 250, 252, f"v{V_L16}", 3)
    own_fx(a)
    flag_store(a, "s27", V_T, V_L16)
    a("s_branch Lc_end")


L_T = 68
L_P = 72
L_TP = 76
L_TT = 77
L_Q = 78
L_L16 = 82
L_FI = 83
L_TMP = 84
L_FL = 92
L_CP = 93
L_CQ = 94
L_SP = 95


def rot_table(a, n, W, phi, psi, v, pw=0):
    lg = W.bit_length() - 1
    wmin = OPT.get("wmin", 1)
    a(f"s_add_u32 s14, {psi}, {n - wmin}\ns_lshr_b32 s14, s14, {lg}")
    a(f"v_add_u32 v{v+3}, {psi}, v0\nv_lshrrev_b32 v{v+3}, {lg}, v{v+3}\nv_min_u32 v{v+3}, s14, v{v+3}")
    a(f"v_cmp_eq_u32 vcc, s14, v{v+3}")
    a(f"v_lshlrev_b32 v{v}, {lg}, v{v+3}\nv_subrev_u32 v{v}, {psi}, v{v}")
    a(f"v_add_u32 v{v+1}, {W}, v{v}\nv_mov_b32 v{v+2}, {n}\nv_cndmask_b32 v{v+1}, v{v+1}, v{v+2}, vcc")
    a(f"v_max_i32 v{v}, 0, v{v}\nv_sub_u32 v{v+1}, v{v+1}, v{v}")
    a(f"v_mul_u32_u24 v{v+3}, {pw}, v{v+3}")
    a(f"v_add_u32 v{v+3}, {phi}, v{v+3}\nv_and_b32 v{v+3}, {W-1}, v{v+3}\nv_sub_u32 v{v+2}, v0, v{v}\nv_add_u32 v{v+2}, v{v+3}, v{v+2}")
    for i in range(W - 1):
        a(f"v_sub_u32 v{v+3}, v{v+2}, v{v+1}\nv_min_u32 v{v+2}, v{v+2}, v{v+3}")
    a(f"v_add_u32 v{v}, v{v}, v{v+2}")


def col_base(a, dst, tile, mix):
    if mix: a(f"s_lshr_b32 {dst}, {tile}, 2\ns_lshl_b32 {dst}, {dst}, 2\ns_add_u32 {dst}, {dst}, {tile}\ns_lshl_b32 {dst}, {dst}, 7")
    else: a(f"s_lshl_b32 {dst}, {tile}, 8")


def col_lane(a, dst, tmp, mix):
    a(f"v_and_b32 v{dst}, 15, v0\nv_lshlrev_b32 v{dst}, 4, v{dst}")
    if mix: a(f"v_and_b32 v{tmp}, 8, v0\nv_mul_u32_u24 v{tmp}, 48, v{tmp}\nv_add_u32 v{dst}, v{dst}, v{tmp}")


def t_voffs(a, t_row, natural, L_T=L_T, mix=0):
    t = L_TMP
    a(f"v_lshrrev_b32 v{t}, 4, v0\nv_and_b32 v{t+1}, 1, v{t}\nv_lshrrev_b32 v{t}, 1, v{t}")
    if natural:
        a(f"v_lshlrev_b32 v{t+1}, 4, v{t+1}\nv_lshl_add_u32 v{t}, v{t}, 2, v{t+1}")
    else:
        a(f"v_lshlrev_b32 v{t+1}, 3, v{t+1}\nv_lshl_add_u32 v{t}, v{t}, 5, v{t+1}")
    col_lane(a, t + 1, t + 2, mix)
    a(f"v_mul_u32_u24 v{t}, {t_row}, v{t}\nv_add_u32 v{L_T}, v{t+1}, v{t}")
    for j in range(1, 4):
        a(f"v_add_u32 v{L_T+j}, {j*(t_row-1056)}, v{L_T}")


def p_voffs(a, p_row, L_P=L_P):
    t = L_TMP
    a(f"v_lshrrev_b32 v{t}, 3, v0\nv_mul_u32_u24 v{t}, {p_row}, v{t}\nv_lshrrev_b32 v{t+1}, 4, v0\nv_and_b32 v{t+2}, 7, v0\nv_xor_b32 v{t+1}, v{t+1}, v{t+2}")
    a(f"v_lshl_add_u32 v{L_P}, v{t+1}, 4, v{t}\nv_xor_b32 v{L_P+1}, 64, v{L_P}")
    d = 8 * p_row - 1024
    a(f"v_add_u32 v{L_P+2}, {2*d}, v{L_P}\nv_add_u32 v{L_P+3}, {3*d}, v{L_P+1}\nv_add_u32 v{L_P+1}, {d}, v{L_P+1}")


def skip1_adj(a, v):
    a(f"v_lshrrev_b32 v{v+1}, 4, v0\nv_min_u32 v{v}, 1, v{v+1}\nv_lshlrev_b32 v{v}, 8, v{v}")
    a(f"v_add_u32 v{v+1}, 9, v{v+1}\nv_lshrrev_b32 v{v+1}, 2, v{v+1}\nv_lshlrev_b32 v{v+1}, 8, v{v+1}")


def loader(a):
    t = L_TMP + 4
    XT, XP, XTP, XTT = 4, 8, 12, 13
    AH = OPT.get("ah", 3)
    if OPT.get("xs", 2) == 99:
        a("s_and_b32 s34, s28, 1\ns_lshl_b32 s34, s34, 1\ns_lshr_b32 s14, s28, 1\ns_add_u32 s34, s34, s14\ns_lshl_b32 s34, s34, 2")
    else:
        a(f"s_mul_i32 s34, s28, {OPT.get('xs',2)}")
    a(f"s_add_u32 s15, s6, s7\ns_and_b32 s15, s15, 3\ns_sub_u32 s34, s34, s15")
    a(f"v_add_u32 v{t}, s15, v0\nv_add_u32 v{t+1}, 3, v{t}\nv_and_b32 v{t}, 0xfc, v{t}\nv_and_or_b32 v{t}, v{t+1}, 3, v{t}")
    a(f"v_add_u32 v{t}, s34, v{t}\nv_and_b32 v{t}, 15, v{t}")
    a(f"s_lshl_b32 s34, s6, 2\ns_add_u32 s34, s34, s3\ns_lshl_b32 s34, s34, 15\nv_lshl_add_u32 v{XTP}, v{t}, 7, s34")
    a("s_lshr_b32 s34, s3, 1\ns_lshl_b32 s34, s34, 5\ns_and_b32 s14, s3, 1\ns_lshl_b32 s14, s14, 3\ns_add_u32 s34, s34, s14")
    a(f"s_lshl_b32 s34, s34, 11\ns_lshl_b32 s14, s7, 8\ns_add_u32 s34, s34, s14\nv_lshl_add_u32 v{XTT}, v{t}, 17, s34")
    t_voffs(a, 2048, True, XT)
    p_voffs(a, 2048, XP)
    a("s_lshl_b32 s22, s3, 11\ns_mul_i32 s29, s3, 4224\ns_add_u32 s29, s29, 16384")
    a(f"v_readlane_b32 s21, v{XTT}, 0\ns_mov_b32 m0, s29\ns_mov_b32 s25, 0\ns_mov_b32 s28, 0\ns_mov_b32 s55, 0")
    get_args(a)
    stamp(a, 8)
    if OPT.get("trace"): a("v_mov_b32 v100, 0\ns_mov_b32 s96, 0")
    srd(a, 8, sX, SZ_X)
    srd(a, 16, sU, D * D * 2)
    def XTl(j): a(f"buffer_load_dwordx4 v{XT+j}, s[16:19], s21 offen offset:{j*1056} lds")
    def XPl(j): a(f"buffer_load_dwordx4 v{XP+j}, s[8:11], s20 offen offset:{j*1024} lds")
    def xbody(n, hook=False):
        XTl(0)
        a(f"v_readlane_b32 s20, v{XTP}, s25\ns_add_u32 s25, s25, 1")
        if hook:
            a("s_cmp_eq_u32 s25, s54\ns_cbranch_scc1 Lxl_ev")
            a("Lxl_evdone:")
        XTl(1)
        a(f"s_add_u32 s34, s28, s22\ns_add_u32 s28, s28, {SL}")
        XTl(2)
        a(f"s_cmp_eq_u32 s28, {NSL*SL}\ns_cselect_b32 s28, 0, s28")
        XTl(3)
        a(f"s_mov_b32 m0, s34\nv_readlane_b32 s21, v{XTT}, s25\ns_add_u32 s34, s28, s29\ns_cmp_lt_u32 s25, {n}")
        XPl(0)
    def x0():
        W = OPT.get("W", 4)
        a(f"s_mul_i32 s34, s32, {OPT.get('pm',0)}\ns_mul_i32 s35, s33, {OPT.get('pn',0)}\ns_add_u32 s34, s34, s35\ns_add_u32 s34, s34, {OPT.get('p0',3)}")
        a(f"s_mul_i32 s35, s33, {OPT.get('qn',1)}\ns_mul_i32 s14, s32, {OPT.get('qm',1)}\ns_add_u32 s35, s35, s14\ns_and_b32 s35, s35, {W-1}")
        rot_table(a, 56, W, "s34", "s35", t, OPT.get("pw", 0))
        a(f"s_and_b32 s34, s32, 4\nv_xor_b32 v{t}, s34, v{t}")
        CS = 24576 if OPT.get("skip1") else 16384
        a(f"s_mul_i32 s34, s32, {56*CS}\ns_mul_i32 s35, s3, {CS//4}\ns_add_u32 s34, s34, s35")
        a(f"v_mul_u32_u24 v{L_TP}, {CS}, v{t}\nv_add_u32 v{L_TP}, s34, v{L_TP}")
        a("s_lshr_b32 s34, s3, 1\ns_lshl_b32 s34, s34, 4\ns_and_b32 s35, s3, 1\ns_lshl_b32 s35, s35, 2\ns_add_u32 s34, s34, s35")
        col_base(a, "s35", "s33", OPT.get("mix", 0))
        a("s_mul_i32 s34, s34, 7168\ns_add_u32 s34, s34, s35")
        a(f"v_mul_u32_u24 v{t}, {64*7168}, v{t}\nv_add_u32 v{L_TT}, s34, v{t}")
        t_voffs(a, 7168, False, mix=OPT.get("mix", 0))
        p_voffs(a, 128)
        if OPT.get("skip1"):
            skip1_adj(a, L_TMP)
            a(f"v_add_u32 v{L_P}, v{L_P}, v{L_TMP}\nv_add_u32 v{L_P+1}, v{L_P+1}, v{L_TMP+1}")
            a(f"v_add_u32 v{L_P+2}, 1024, v{L_P}\nv_add_u32 v{L_P+3}, 1024, v{L_P+1}")
        if OPT.get("spf"):
            OFF = OPT.get("spo", 12)
            NW = OPT.get("spf")
            a(f"s_lshr_b32 s14, s2, 3\ns_mul_i32 s14, s14, {NW}\ns_add_u32 s14, s14, s3\ns_sub_u32 s14, s14, {4-NW}")
            a(f"v_add_u32 v{t}, {OFF}, v0\nv_and_b32 v{t+1}, 7, v{t}\nv_mul_u32_u24 v{t+1}, {28*NW}, v{t+1}\nv_add_u32 v{t+1}, s14, v{t+1}\nv_min_u32 v{t+1}, 511, v{t+1}")
            a(f"v_and_b32 v{t}, 0xf8, v{t}\nv_min_u32 v{t}, 48, v{t}\nv_lshrrev_b32 v{t+2}, 7, v{t+1}\nv_add_u32 v{t}, v{t}, v{t+2}")
            a(f"s_and_b32 s34, s32, 4\nv_xor_b32 v{t}, s34, v{t}\nv_and_b32 v{t+2}, 63, v{t+1}\nv_lshl_add_u32 v{t}, v{t}, 6, v{t+2}\nv_mul_u32_u24 v{t}, 7168, v{t}")
            a("s_bfe_u32 s14, s2, 0x20001\ns_mul_i32 s14, s14, 7\ns_add_u32 s34, s14, 2\ns_andn2_b32 s34, s34, 3\ns_add_u32 s34, s34, 1")
            a("s_add_u32 s35, s34, 4\ns_add_u32 s14, s14, 6\ns_min_u32 s35, s35, s14\ns_sub_u32 s35, s35, s34")
            a(f"v_bfe_u32 v{t+1}, v{t+1}, 6, 1\nv_mul_lo_u32 v{t+1}, s35, v{t+1}\nv_add_u32 v{t+1}, s34, v{t+1}\nv_lshl_add_u32 v{L_SP}, v{t+1}, 8, v{t}")
            a(f"s_cmp_ge_u32 s3, {4-NW}\ns_cselect_b32 s24, {56-OFF}, 0")
        a(f"v_lshrrev_b32 v{t}, 1, v0\nv_add_u32 v{t+1}, 3, v{t}\nv_xor_b32 v{t+1}, s32, v{t+1}\nv_and_b32 v{t+1}, 4, v{t+1}")
        a(f"v_add_u32 v{t}, s32, v{t}\nv_and_or_b32 v{t}, v{t}, 3, v{t+1}\nv_and_b32 v{t+1}, 1, v0\nv_lshl_add_u32 v{t}, v{t}, 1, v{t+1}")
        if OPT.get("cswap"):
            a(f"v_min_u32 v{t+1}, 2, v0\nv_lshrrev_b32 v{t+1}, 1, v{t+1}\nv_and_b32 v{t+1}, s33, v{t+1}\nv_xor_b32 v{t}, v{t}, v{t+1}")
        a(f"s_lshl_b32 s34, s32, 19\ns_lshl_b32 s35, s3, 13\ns_add_u32 s34, s34, s35\nv_lshl_add_u32 v{L_CP}, v{t}, 15, s34")
        a(f"s_lshr_b32 s34, s3, 1\ns_mul_i32 s34, s34, {224*1024}\ns_and_b32 s35, s3, 1\ns_lshl_b32 s14, s33, 1\ns_add_u32 s35, s35, s14\ns_lshl_b32 s35, s35, 12\ns_add_u32 s34, s34, s35")
        a(f"v_mul_u32_u24 v{t}, {2*224*1024}, v{t}\nv_add_u32 v{L_CQ}, s34, v{t}")
        srd(a, 40, sWS, SZ_X, WS_XRF)
        srd(a, 48, sWS, SZ_W + 64, WS_WPF - 64)
        a(f"v_lshlrev_b32 v{L_L16}, 4, v0\nv_lshlrev_b32 v{L_FI}, 8, v0")
        for j in range(4):
            a(f"v_add_u32 v{L_Q+j}, {64 - 16*j}, v{L_L16}")
        a(f"s_lshl_b32 s26, s32, 12\ns_add_u32 s26, s26, {FA1}\ns_lshl_b32 s27, s54, 8\ns_add_u32 s27, s27, s26")
        get_nonce(a)
        a(f"s_cmp_lt_u32 s54, 16\ns_cselect_b32 s54, {OPT.get('xack', 5) + AH + 1}, 255\ns_cmp_eq_u32 s3, 1\ns_cselect_b32 s54, s54, 255\ns_cselect_b32 s55, 2, 0")
        a(f"s_or_b32 s14, s3, s5\ns_cmp_eq_u32 s14, 0\ns_cselect_b32 s54, 13, s54")
    xbody(16)
    XPl(1)
    a("s_mov_b32 m0, s34")
    x0()
    a("s_branch Lxl_go")
    a("Lxl_loop:")
    XPl(1)
    trace(a, 2)
    a("s_mov_b32 m0, s34")
    if AH == 3: a("s_cmp_lt_u32 s25, 3\ns_cbranch_scc1 Lxl_go")
    a(f"s_waitcnt vmcnt({6*(AH-1)})\ns_barrier")
    a("Lxl_go:")
    xbody(16, True)
    a("s_cbranch_scc1 Lxl_loop")
    XPl(1)
    stamp(a, 1)
    a("s_cmp_lg_u32 s5, 0\ns_cbranch_scc1 Ll_h")
    srd(a, 8, sWS, SZ_WQ, WS_WQ)
    srd(a, 16, sV, F * F * 2)
    a("s_lshl_b32 s22, s3, 12")

    AUX = {0: "", 1: " sc1", 2: " sc0 sc1", 3: " sc0"}
    PAUX, TAUX = AUX[OPT.get("psc1", 1)], AUX[OPT.get("tsc1", 0)]
    def T(j): a(f"buffer_load_dwordx4 v{L_T+j}, s[16:19], s21 offen offset:{j*1056}{TAUX} lds")
    def P(j): a(f"buffer_load_dwordx4 v{L_P+j}, s[8:11], s20 offen offset:{j*1024}{PAUX} lds")
    a(f"v_readlane_b32 s21, v{L_TT}, 0\nv_readlane_b32 s20, v{L_TP}, 0\ns_mov_b32 m0, s29")
    WSH = OPT.get("wsh", 2)
    a(f"s_mul_i32 s26, s32, {14*1024}\ns_add_u32 s26, s26, {FA + (WSH - 1) * 1024}")
    a(f"s_cmp_eq_u32 s3, 0\ns_cselect_b32 s54, {4*WSH - 4}, 255\ns_cmp_eq_u32 s3, 1\ns_cselect_b32 s54, 8, s54\ns_mov_b32 s55, 0")
    if AH == 3:
        a("s_waitcnt vmcnt(12)\ns_barrier")
        for j in range(4): T(j)
        a(f"s_mov_b32 m0, s22\nv_readlane_b32 s21, v{L_TT}, 1")
        for j in range(4): P(j)
        a(f"s_add_u32 m0, s29, {SL}\ns_mov_b32 s25, 1\ns_mov_b32 s28, {SL}")
        a("s_waitcnt vmcnt(14)\ns_barrier")
    else:
        a("s_mov_b32 s25, 0")
        a("s_waitcnt vmcnt(6)\ns_barrier")
    a("s_branch Lw_go")

    def head():
        P(3)
        trace(a)
        a("s_add_u32 m0, s28, s29")
        a(f"s_waitcnt vmcnt({8*(AH-1)})\ns_barrier")
    def first():
        T(0)
        a(f"v_readlane_b32 s20, v{L_TP}, s25\ns_add_u32 s25, s25, 1")
    def rest(fill=()):
        n = (len(fill) + 6) // 7
        g = ["\n".join(fill[i*n:(i+1)*n]) for i in range(7)]
        def gap(i):
            if g[i]: a(g[i])
        gap(0)
        T(1)
        a(f"s_add_u32 s34, s28, s22\ns_add_u32 s28, s28, {SL}")
        gap(1)
        T(2)
        a(f"s_cmp_eq_u32 s28, {NSL*SL}\ns_cselect_b32 s28, 0, s28")
        gap(2)
        T(3)
        a(f"s_mov_b32 m0, s34\nv_readlane_b32 s21, v{L_TT}, s25")
        gap(3)
        P(0)
        if OPT.get("spf"):
            a(f"s_cmp_ge_u32 s25, s24\ns_cbranch_scc1 Lw_nsp\nv_readlane_b32 s23, v{L_SP}, s25")
            for q in range(4):
                a("s_buffer_load_dword s97, s[16:19], s23" + (f" offset:{64*q}" if q else ""))
            a("Lw_nsp:")
        gap(4)
        P(1)
        gap(5)
        a(f"s_cmp_lt_u32 s25, 56")
        P(2)
        gap(6)
    a("Lw_loop:")
    head()
    a("Lw_go:")
    first()
    a(f"s_cmp_eq_u32 s25, s54\ns_cbranch_scc1 Lw_ev")
    a("Lw_evdone:")
    rest()
    a("s_cbranch_scc1 Lw_loop")
    P(3)
    stamp(a, 4)
    a(f"s_lshl_b32 s22, s3, 13\ns_mul_i32 s29, s3, {4*1040}\ns_add_u32 s29, s29, {CQ0}")
    def PC(st, slot, mid=None):
        a(f"v_readlane_b32 s20, v{L_CP}, {st}\ns_add_u32 m0, s22, {slot}\ns_nop 3")
        for j in range(8):
            if j == 4:
                a("s_add_u32 m0, m0, 4096\ns_add_u32 s20, s20, 4096")
                if mid: a(mid)
            a(f"buffer_load_dwordx4 v{L_L16}, s[40:43], s20 offen offset:{(j&3)*1024} sc1 lds")
    def QC(st, slot):
        a(f"v_readlane_b32 s21, v{L_CQ}, {st}\ns_add_u32 m0, s29, {slot}\ns_nop 3")
        for j in range(4):
            a(f"buffer_load_dwordx4 v{L_Q+j}, s[48:51], s21 offen offset:{j*1040} sc1 lds")
    for i in range(AH):
        a(f"s_waitcnt vmcnt({8*(AH-1)})\ns_barrier")
        PC(i, i * SL)
    a("s_barrier")
    a(f"s_lshl_b32 s26, s33, 3\ns_add_u32 s26, s26, s32\ns_lshl_b32 s27, s26, 8\ns_add_u32 s27, s27, {FB}")
    a(f"s_andn2_b32 s26, s27, 0x300\ns_xor_b32 s26, s26, 0x400")
    a(f"s_waitcnt vmcnt({8*(AH-1)})\ns_barrier")
    sflag_sample(a)
    if AH == 2: PC(2, 2 * SL)
    a("s_cmp_lg_u32 s3, 0")
    a("s_waitcnt vmcnt(8)\ns_barrier")
    a("s_cbranch_scc1 Lw_nfb")
    flag_store(a, "s27", L_TMP, L_L16)
    a("Lw_nfb:")
    stamp(a, 6)
    a(f"s_mov_b32 s25, 5\ns_mov_b32 s28, {2*SL}\ns_mov_b32 s27, {2*SQ}")
    a("s_cmp_eq_u32 s3, 0\ns_cselect_b32 s54, 9, 255")
    LM = OPT.get("late", 0)
    if LM == 1: PC(3, 0)
    sflag_check(a, "Lw_pb", L_FI, L_FL)
    stamp(a, 7)
    a("s_xor_b32 s26, s26, 0x400")
    QC(2, 2 * SQ)
    QC(3, 0)
    if LM == 0:
        PC(3, 0)
        a("s_waitcnt vmcnt(12)\ns_barrier")
    elif LM == 1:
        a("s_waitcnt vmcnt(4)\ns_barrier")
    else:
        PC(3, 0, "s_waitcnt vmcnt(8)\ns_barrier")
    if LM < 2:
        QC(4, SQ)
        PC(4, SL, "s_waitcnt vmcnt(8)\ns_barrier")
    else:
        QC(4, SQ)
        a("s_waitcnt vmcnt(4)\ns_barrier")
        PC(4, SL)
        QC(5, 2 * SQ)
        PC(5, 2 * SL, "s_waitcnt vmcnt(8)\ns_barrier")
        a("s_mov_b32 s25, 6\ns_mov_b32 s28, 0\ns_mov_b32 s27, 0")
    a("Lw_cloop:")
    a("s_cmp_lg_u32 s25, s54\ns_cbranch_scc1 Lw_c3")
    if OPT.get("warm", 0) & 4: touch_code(a, "L_tc2", "Lc_tail", "Lc_end", 250, 252, n=1, back=False)
    sflag_sample(a)
    a("Lw_c3:")
    trace(a, 3)
    QC("s25", "s27")
    PC("s25", "s28")
    a(f"s_add_u32 s27, s27, {SQ}\ns_add_u32 s28, s28, {SL}\ns_cmp_eq_u32 s28, {3*SL}\ns_cselect_b32 s28, 0, s28\ns_cselect_b32 s27, 0, s27")
    trace(a, 4)
    a("s_cmp_lg_u32 s25, s54\ns_cbranch_scc1 Lw_pc_x")
    sflag_check(a, "Lw_pc", L_FI, L_FL)
    a("s_add_u32 s25, s25, 1\ns_cmp_lt_u32 s25, 16")
    a("s_waitcnt vmcnt(12)\ns_barrier")
    a("s_cbranch_scc1 Lw_cloop")
    a("s_waitcnt vmcnt(0)\ns_barrier")
    trace_out(a)
    stamp_out(a, True)
    a("s_endpgm")
    def events(L, done, evs):
        a(f"{L}:")
        for i, ev in enumerate(evs):
            if i + 1 < len(evs): a(f"s_cmp_lg_u32 s55, {i}\ns_cbranch_scc1 {L}{i+1}")
            a(f"s_mov_b32 s55, {i+1}")
            ev()
            a(f"s_branch {done}")
            if i + 1 < len(evs): a(f"{L}{i+1}:")

    a("Lw_ev:")
    a("s_cmp_lg_u32 s3, 0\ns_cbranch_scc1 Lw_evx")
    a("s_bitcmp1_b32 s25, 0\ns_cbranch_scc1 Lw_evc")
    a("s_add_u32 s26, s26, 2048\ns_add_u32 s54, s54, 1")
    sflag_sample(a)
    a("s_branch Lw_evdone")
    a("Lw_evc:")
    sflag_check(a, "Lw_pa", L_FI, L_FL)
    a("s_add_u32 s54, s54, 7\ns_cmp_gt_u32 s54, 48\ns_cselect_b32 s54, 255, s54")
    a("s_branch Lw_evdone")
    def b0():
        own_fx(a)
        flag_store(a, "s27", L_TMP, L_L16)
        a("s_mov_b32 s54, 52")
    def b1():
        a(f"s_lshl_b32 s26, s32, 13\ns_add_u32 s26, s26, {FX}\ns_mov_b32 s54, 55")
        flag_load(a, "s26", 32, L_FI, L_FL)
    def b2():
        flag_poll(a, "Lw_px", "s26", 32, L_FI, L_FL, loaded=True)
        a("s_mov_b32 s54, 255")
    events("Lw_evx", "Lw_evdone", [b0, b1, b2])

    def x1():
        flag_load(a, "s26", 16, L_FI, L_FL)
        a("s_mov_b32 s54, 16")
    def x2():
        stamp(a, 11)
        flag_poll(a, "Lw_pa0", "s26", 16, L_FI, L_FL, loaded=True)
        stamp(a, 3)
        a("s_mov_b32 s54, 255")
    def x3():
        flag_store(a, "s27", L_TMP, L_L16)
        stamp(a, 2)
        a("s_mov_b32 s54, 255")
    events("Lxl_ev", "Lxl_evdone", [x1, x2, x3])

    a("Ll_h:")
    for i in range(AH):
        a(f"s_waitcnt vmcnt({6*(AH-1-i)})\ns_barrier")
    stamp_out(a, True)
    a("s_endpgm")


def helper(a):
    BA = (4, 68)
    HQ, HS, HL = 132, 134, 135
    nt = " nt" if OPT.get("dq_nt", 1) else ""
    a("s_lshl_b32 s14, s32, 3\ns_add_u32 s14, s14, s4")
    a(f"s_mul_i32 s34, s14, {16*14336}\nv_lshrrev_b32 v1, 3, v0\nv_and_b32 v2, 7, v0")
    a(f"v_mul_u32_u24 v1, 14336, v1\nv_lshl_add_u32 v1, v2, 4, v1\nv_add_u32 v{HQ}, s34, v1\nv_add_u32 v{HQ+1}, {8*14336}, v{HQ}")
    a(f"s_lshr_b32 s34, s4, 2\ns_mul_i32 s34, s34, 7168\nv_lshl_add_u32 v{HS}, v2, 3, s34\nv_lshlrev_b32 v{HL}, 4, v0")
    CS = 24576 if OPT.get("skip1") else 16384
    if OPT.get("skip1"): skip1_adj(a, 140)
    else: a("v_mov_b32 v140, 0\nv_mov_b32 v141, 0")
    a(f"v_add_u32 v140, v140, v{HL}\nv_add_u32 v141, v141, v{HL}")
    a(f"s_mul_i32 s24, s32, {56*CS}\ns_mul_i32 s34, s4, {CS//8}\ns_add_u32 s24, s24, s34")
    def start(h):
        B = BA[h]
        a("s_add_u32 s15, s33, s23\ns_and_b32 s15, s15, 3\ns_lshl_b32 s14, s23, 2\ns_add_u32 s15, s15, s14\ns_xor_b32 s15, s15, s22\ns_min_u32 s15, s15, 55\ns_add_u32 s23, s23, 1")
        a(f"s_lshl_b32 s25, s15, 8\ns_mul_i32 s14, s15, {CS}\ns_add_u32 s{20+h}, s24, s14\ns_lshl_b32 s14, s15, 7\nv_add_u32 v{B+5}, s14, v{HS}")
        for rg in range(2):
            for t in range(2):
                r = B + 32 + rg * 8 + t * 4
                a(f"buffer_load_dwordx4 v[{r}:{r+3}], v{HQ+rg}, s[16:19], s25 offen offset:{128*t}{nt}")
    def scales(h):
        B = BA[h]
        for t in range(2):
            a(f"ds_read_b64 v[{B+8+2*t}:{B+9+2*t}], v{B+5} offset:{64*t}")
            a(f"ds_read_b64 v[{B+12+2*t}:{B+13+2*t}], v{B+5} offset:{14336 + 64*t}")
    WSH = OPT.get("wsh", 2)
    a(f"s_mov_b32 s23, {WSH}\ns_and_b32 s22, s32, 4")
    a("s_min_u32 s14, s4, 6\ns_lshl_b32 s26, s14, 11\ns_mul_i32 s35, s32, 14336\ns_add_u32 s35, s35, s26\ns_mov_b32 m0, s26")
    get_args(a)
    for i, p in enumerate((sSC, sZE)):
        srd(a, 8, p, 16 * F * 2)
        for j in range(2):
            a(f"buffer_load_dwordx4 v{HL}, s[8:11], s35 offen offset:{j*1024} lds")
        if i == 0: a("s_add_u32 m0, s26, 14336")
    srd(a, 16, sQW, D * F * 4)
    start(0)
    start(1)
    srd(a, 8, sWS, SZ_WQ, WS_WQ)
    a(f"s_mul_i32 s27, s32, 56\ns_add_u32 s27, s27, s33\ns_lshl_b32 s27, s27, 8\ns_add_u32 s27, s27, {FA + (WSH + 1) * 1024}")
    get_nonce(a)
    if OPT.get("hx", 0) & 2:
        for i in range(5):
            flag_store(a, "s27", 136, HL)
            a("s_add_u32 s27, s27, 2048")
        a("s_branch Lh_skip")
    a("s_waitcnt vmcnt(8)\ns_barrier")
    scales(0)
    a("s_waitcnt vmcnt(4)")
    a("s_branch Lh_mid")
    a("Lh_loop:")
    for h in range(2):
        start(1 - h)
        scales(h)
        if h == 0:
            a("s_waitcnt vmcnt(6)")
        else:
            a(f"s_cmp_eq_u32 s23, {WSH + 3}\ns_cselect_b32 s14, 1, s4\ns_cmp_lg_u32 s14, 0")
            a("s_waitcnt vmcnt(6)\ns_barrier")
            a(f"s_cbranch_scc1 Lh_nf{h}")
            flag_store(a, "s27", 136, HL)
            a("s_add_u32 s27, s27, 2048")
            a(f"Lh_nf{h}:")
        if h == 0: a("Lh_mid:")
        a("s_waitcnt lgkmcnt(0)")
        a("\n".join(dq_unpack(BA[h])))
        for rg in range(2):
            a("\n".join(dq_rows(BA[h], rg, f"s{20+h}", 140 + rg)))
    a("s_cmp_lt_u32 s23, 15\ns_cbranch_scc1 Lh_loop")
    a("Lh_skip:")
    a("s_cmp_lg_u32 s4, 0")
    a("s_waitcnt vmcnt(0)\ns_barrier")
    a("s_cbranch_scc1 Lh_nf")
    flag_store(a, "s27", 136, HL)
    a("Lh_nf:")
    stamp(a, 5)
    R0, R1 = OPT.get("pf0", 14), OPT.get("pf1", 14)
    if R0 < R1:
        a("s_and_b32 s14, s32, 1\ns_lshl_b32 s14, s14, 2\ns_add_u32 s14, s14, s33\ns_lshl_b32 s14, s14, 3\ns_add_u32 s14, s14, s4")
        a(f"s_mul_i32 s14, s14, {4*7168}\ns_lshr_b32 s34, s32, 1\ns_mul_i32 s34, s34, 1792\ns_add_u32 s14, s14, s34\ns_add_u32 s14, s14, {R0*256*7168}")
        a(f"v_lshrrev_b32 v1, 4, v0\nv_mul_u32_u24 v1, 7168, v1\nv_and_b32 v2, 15, v0\nv_min_u32 v2, 13, v2\nv_lshl_add_u32 v1, v2, 7, v1")
        srd(a, 16, sV, F * F * 2)
        a(f"s_mov_b32 s23, {R1 - R0}")
        a("Lh_pf:")
        a("buffer_load_dword v2, v1, s[16:19], s14 offen")
        a(f"s_add_u32 s14, s14, {256*7168}\ns_sub_u32 s23, s23, 1\ns_cmp_lg_u32 s23, 0\ns_waitcnt vmcnt(0)\ns_cbranch_scc1 Lh_pf")
    stamp(a, 6)
    if OPT.get("hx", 0) & 1:
        own_fx(a)
        flag_store(a, "s27", 136, HL)
        a("s_endpgm")
    a("s_branch L_role")


def gen(opt):
    global OPT
    OPT = opt
    a = Asm()
    a(HDR.rstrip())
    a(f"; @launch grid=(256,1,1) block=(512,1,1) lds={LDS_BYTES}")
    a('.amdgcn_target "amdgcn-amd-amdhsa--gfx950"\n.text')
    a(f".globl {NAME}\n.p2align 8\n.type {NAME},@function\n{NAME}:")
    a("s_cmp_ge_u32 s2, 256\ns_cbranch_scc1 L_end")
    stamp(a, 0)
    a("s_load_dwordx16 s[36:51], s[0:1], 0")
    a(f"s_load_dwordx2 s[{sWS}:{sWS+1}], s[0:1], 64")
    a("v_lshrrev_b32 v1, 6, v0")
    a("v_and_b32 v0, 63, v0")
    a("v_readfirstlane_b32 s4, v1")
    a("s_and_b32 s28, s2, 7\ns_lshr_b32 s29, s2, 3")
    a("s_and_b32 s3, s4, 3")
    if OPT.get("warm", 0) & 1:
        a("s_cmp_lg_u32 s4, 3\ns_cbranch_scc1 L_nw")
        touch_code(a, "L_tc0", NAME, "L_end", 250, 252)
        a("L_nw:")
    a("s_lshr_b32 s6, s28, 1\ns_mov_b32 s35, s29")
    if OPT.get("xmap", 0):
        a("s_sub_u32 s34, s29, 20\ns_cmp_lt_u32 s34, 8\ns_cselect_b32 s34, s6, 0\ns_cmp_eq_u32 s34, 1\ns_cselect_b32 s34, 28, 16\ns_xor_b32 s35, s29, s34")
    a("s_lshl_b32 s6, s6, 3\ns_and_b32 s34, s35, 7\ns_add_u32 s6, s6, s34")
    a("s_and_b32 s7, s28, 1\ns_lshl_b32 s7, s7, 2\ns_lshr_b32 s34, s35, 3\ns_add_u32 s7, s7, s34")
    a("s_and_b32 s32, s28, 1\ns_lshl_b32 s32, s32, 2\ns_and_b32 s33, s29, 3\ns_add_u32 s32, s32, s33")
    a("s_lshr_b32 s33, s28, 1\ns_mul_i32 s33, s33, 7\ns_lshr_b32 s34, s29, 2\ns_add_u32 s33, s33, s34")
    a("s_add_u32 s35, s33, 2\ns_lshr_b32 s35, s35, 2\ns_sub_u32 s54, s34, s35\ns_sub_u32 s35, s33, s34\ns_add_u32 s35, s35, 2\ns_lshr_b32 s35, s35, 2\ns_add_u32 s54, s54, s35")
    a("s_cmp_ge_u32 s54, 4\ns_cselect_b32 s54, 16, s54\ns_and_b32 s35, s33, 3\ns_cmp_eq_u32 s35, 1\ns_cselect_b32 s54, 16, s54")
    a("s_lshr_b32 s35, s28, 1\ns_lshl_b32 s35, s35, 2\ns_add_u32 s54, s54, s35")
    a("s_and_b32 s34, s29, 3\ns_cmp_ge_u32 s29, 28")
    a("s_cselect_b32 s5, 1, 0\ns_cselect_b32 s32, s28, s32\ns_cselect_b32 s33, s34, s33\ns_cselect_b32 s54, 16, s54")
    a("s_cbranch_scc1 L_h")
    a("L_role:")
    a("s_cmp_lt_u32 s4, 4\ns_cbranch_scc1 L_c")
    loader(a)
    a("L_h:")
    helper(a)
    a("L_c:")
    compute(a)
    a("L_end:\ns_endpgm")
    a('.section .rodata,"a"\n.p2align 6')
    a(kd(NAME, 256, 256))
    return a.text()


if __name__ == "__main__":
    opt = dict(kv.split("=") for kv in sys.argv[2:])
    opt = {k: (int(v) if v.lstrip("-").isdigit() else v) for k, v in opt.items()}
    open(sys.argv[1], "w").write(gen(opt))
```

```python
import sys
from asm import Asm, kd

NAME = "standalone__weight_only_int_quip__prompt_kernel"
S, D, F = 2048, 1024, 3584
WS_FLAG = 0
FA, FX, FB, EPOCH, FA1 = 0, 128 << 10, 192 << 10, 252 << 10, 256 << 10
SZ_FLAG = 288 << 10
WS_WQ = 1 << 20
WS_XRF = 13 << 20
WS_WPF = 20 << 20
WS_STAMP = 64 << 20
SZ_W = D * F * 2
SZ_X = S * D * 2
SZ_WQ = 8 * 56 * 24576
SPIN_MAX = 1 << 15

HDR = """; Kernarg layout (72 bytes, ptrs only, base s[0:1]):
"""
sX, sQW, sSC, sZE, sU, sV, sOUT, sWS, sNONCE = 36, 38, 40, 42, 44, 46, 48, 30, 52

OPT = {}


def srd(a, d, b, nbytes, add=0):
    if add:
        a(f"s_add_u32 s{d}, s{b}, {add}")
        a(f"s_addc_u32 s{d+1}, s{b+1}, 0")
    else:
        a(f"s_mov_b32 s{d}, s{b}")
        a(f"s_mov_b32 s{d+1}, s{b+1}")
    a(f"s_mov_b32 s{d+2}, {nbytes}")
    a(f"s_mov_b32 s{d+3}, 0x20000")


def interleave(a, mf, others):
    for i, m in enumerate(mf):
        if isinstance(m, tuple):
            for p in m[0]:
                a(p)
            a(m[1])
        else:
            a(m)
        for o in others.get(i, []):
            a(o)


class Sched:
    def __init__(self, a):
        self.a, self.q = a, []
    def read(self, r):
        self.a(r[0]); self.q.append(r[1])
    def need(self, regs):
        idx = [i for i, d in enumerate(self.q) if d in regs]
        if idx:
            n = min(len(self.q) - 1 - idx[-1], 15)
            self.a(f"s_waitcnt lgkmcnt({n})")
            self.q = self.q[len(self.q) - n:] if n else []
    def drain(self, extra=""):
        self.a(f"s_waitcnt {extra}lgkmcnt(0)"); self.q = []
    def run(self, mf, reads=(), fill=None, every=1, group=1):
        reads = list(reads); nxt = 0
        for i, (m, A, B) in enumerate(mf):
            if i % group == 0:
                self.need({x for mm in mf[i:i + group] for x in mm[1:]})
            self.a(m)
            if reads and i >= nxt:
                k = next((k for k, r in enumerate(reads) if r[2] <= i), None)
                if k is not None:
                    self.read(reads.pop(k)); nxt = i + every
            for o in (fill or {}).get(i, []): self.a(o)
        for r in reads: self.read(r)


def chain(acc, A, B, rts, cs, zero=False):
    out = []
    for n, rt in enumerate(rts):
        for c in (cs if n % 2 == 0 else cs[::-1]):
            for ks in range(2):
                out.append((mfma(acc(rt, c), A(rt, ks), B(c, ks), zero and ks == 0), A(rt, ks), B(c, ks)))
    return out


NSTAMP = 12
def stamp(a, idx):
    if not OPT.get("stamp"): return
    a(f"s_memrealtime s[{60+2*idx}:{61+2*idx}]")
    if idx == 0:
        a("s_memtime s[86:87]")
        for i in range(1, NSTAMP): a(f"s_mov_b32 s{60+2*i}, 0")


def stamp_out(a, loader):
    if not OPT.get("stamp"): return
    a("s_mov_b64 exec, -1\ns_waitcnt vmcnt(0)")
    a(f"s_memrealtime s[84:85]\ns_memtime s[88:89]\ns_waitcnt lgkmcnt(0)")
    a("s_sub_u32 s88, s88, s86")
    srd(a, 92, sWS, 1 << 20, WS_STAMP)
    a(f"s_lshl_b32 s90, s2, 3\ns_add_u32 s90, s90, s3\ns_add_u32 s90, s90, {4 if loader else 0}\ns_lshl_b32 s90, s90, 6")
    a("v_mov_b32 v0, 0")
    a("s_getreg_b32 s89, hwreg(HW_REG_XCC_ID)\ns_getreg_b32 s91, hwreg(HW_REG_HW_ID)")
    vals = [f"s{60+2*i}" for i in range(NSTAMP + 1)] + ["s88", "s89", "s91"]
    for i, v in enumerate(vals):
        a(f"v_mov_b32 v1, {v}\nbuffer_store_dword v1, v0, s[92:95], s90 offen offset:{4*i}")


def trace(a, mode=1):
    if OPT.get("trace") != mode: return
    a("s_waitcnt lgkmcnt(0)\ns_mov_b32 m0, s25\nv_writelane_b32 v100, s96, m0")
    a("s_cmp_eq_u32 s3, 2\ns_cbranch_scc1 1f\ns_memrealtime s[96:97]\ns_branch 2f\n1:\ns_memtime s[96:97]\n2:")


def trace_out(a):
    if not OPT.get("trace"): return
    srd(a, 92, sWS, 1 << 20, WS_STAMP + (1 << 20))
    a(f"s_lshl_b32 s90, s2, 2\ns_add_u32 s90, s90, s3\ns_lshl_b32 s90, s90, 8\nv_lshlrev_b32 v1, 2, v0")
    a("buffer_store_dword v100, v1, s[92:95], s90 offen")


def mfma(acc, A, B, zero=False):
    C = "0" if zero else f"v[{acc}:{acc+3}]"
    return f"v_mfma_f32_16x16x32_bf16 v[{acc}:{acc+3}], v[{A}:{A+3}], v[{B}:{B+3}], {C}"


def flag_store(a, soff, vt, lane16):
    for i in range(4): a(f"v_mov_b32 v{vt+i}, s{sNONCE}")
    a("s_mov_b64 exec, 0xff")
    a(f"buffer_store_dwordx4 v[{vt}:{vt+3}], v{lane16}, s[56:59], {soff} offen sc1")
    a("s_mov_b64 exec, -1")


def flag_load(a, soff, n, vidx, vt):
    a(f"s_mov_b64 exec, {hex((1 << n) - 1)}")
    a(f"buffer_load_dword v{vt}, v{vidx}, s[56:59], {soff} offen sc1")
    a("s_mov_b64 exec, -1")


def flag_poll(a, L, soff, n, vidx, vt, loaded=False):
    a(f"s_mov_b32 s53, {SPIN_MAX}")
    if loaded: a(f"s_branch {L}_c")
    a(f"{L}:")
    flag_load(a, soff, n, vidx, vt)
    a("s_sub_u32 s53, s53, 1\ns_cmp_eq_u32 s53, 0")
    a(f"s_cbranch_scc1 {L}_x")
    a("s_waitcnt vmcnt(0)")
    a(f"{L}_c:")
    a(f"v_cmp_ne_u32 vcc, s{sNONCE}, v{vt}")
    a(f"s_and_b32 vcc_lo, vcc_lo, {hex((1 << n) - 1)}")
    a(f"s_cbranch_scc1 {L}")
    a(f"{L}_x:")


def sflag_sample(a):
    a(f"s_add_u32 s12, s{sWS}, s26\ns_addc_u32 s13, s{sWS+1}, 0")
    for q in range(4):
        a(f"s_load_dword s{98+q}, s[12:13], {WS_FLAG + q*256}")


def sflag_test(a):
    a("s_waitcnt lgkmcnt(0)")
    a(f"s_xor_b32 s14, s98, s{sNONCE}")
    for q in range(1, 4):
        a(f"s_xor_b32 s15, s{98+q}, s{sNONCE}\ns_or_b32 s14, s14, s15")


def sflag_check(a, L, vidx, vt):
    sflag_test(a)
    a(f"s_cbranch_scc0 {L}_x")
    flag_poll(a, L, "s26", 4, vidx, vt)


def touch_code(a, L, lo, hi, va, vd, lane="v0", sh=7, n=3, back=True):
    a(f"s_getpc_b64 s[12:13]\n{L}:")
    if back: a(f"s_sub_u32 s12, s12, {L}-{lo}\ns_subb_u32 s13, s13, 0")
    else: a(f"s_add_u32 s12, s12, {lo}-{L}\ns_addc_u32 s13, s13, 0")
    a(f"v_lshlrev_b32 v{va}, {sh}, {lane}")
    for i in range(n):
        a(f"v_min_u32 v{va+1}, {hi}-{lo}-4, v{va}\nglobal_load_dword v{vd}, v{va+1}, s[12:13]\nv_add_u32 v{va}, 8192, v{va}")


def get_args(a):
    a("s_waitcnt lgkmcnt(0)")
    a(f"s_load_dword s{sNONCE}, s[{sWS}:{sWS+1}], {WS_FLAG + EPOCH}")


def get_nonce(a):
    srd(a, 56, sWS, SZ_FLAG, WS_FLAG)
    a(f"s_waitcnt lgkmcnt(0)\ns_mul_i32 s{sNONCE}, s{sNONCE}, 1664525\ns_add_u32 s{sNONCE}, s{sNONCE}, 1013904223")


def dq_addr(a, B, nrg, wreg, sout):
    sh = {2: 3, 4: 2}[nrg]
    a(f"s_lshl_b32 s14, s32, {sh}\ns_add_u32 s14, s14, {wreg}")
    a(f"s_mul_i32 s34, s14, {nrg*8*14336}\ns_lshl_b32 s35, s15, 8\ns_add_u32 s34, s34, s35")
    a(f"s_lshr_b32 s14, s14, {sh-1}\ns_mul_i32 s35, s14, 7168\ns_lshl_b32 s14, s15, 7\ns_add_u32 s35, s35, s14")
    a(f"v_lshrrev_b32 v{B}, 3, v0\nv_and_b32 v{B+5}, 7, v0")
    a(f"v_mul_u32_u24 v{B}, 14336, v{B}\nv_lshl_add_u32 v{B}, v{B+5}, 4, v{B}\nv_add_u32 v{B}, s34, v{B}")
    for rg in range(1, nrg):
        a(f"v_add_u32 v{B+rg}, {rg*8*14336}, v{B}")
    a(f"v_lshl_add_u32 v{B+5}, v{B+5}, 3, s35\nv_lshlrev_b32 v{B+4}, 4, v0")
    a(f"s_mul_i32 {sout}, s32, 56\ns_add_u32 {sout}, {sout}, s15\ns_lshl_b32 {sout}, {sout}, {sh}\ns_add_u32 {sout}, {sout}, {wreg}\ns_lshl_b32 {sout}, {sout}, {14-sh}")


def dq_issue(a, B, rgs, scales=True):
    nt = " nt" if OPT.get("dq_nt", 1) else ""
    if scales:
        for t in range(2):
            a(f"global_load_dwordx2 v[{B+8+2*t}:{B+9+2*t}], v{B+5}, s[{sSC}:{sSC+1}] offset:{64*t}")
            a(f"global_load_dwordx2 v[{B+12+2*t}:{B+13+2*t}], v{B+5}, s[{sZE}:{sZE+1}] offset:{64*t}")
    for rg in rgs:
        for t in range(2):
            r = B + 32 + rg * 8 + t * 4
            a(f"global_load_dwordx4 v[{r}:{r+3}], v{B+rg}, s[{sQW}:{sQW+1}] offset:{128*t}{nt}")


def dq_unpack(B):
    o = []
    for j in range(4):
        o += [f"v_lshlrev_b32 v{B+16+2*j}, 16, v{B+8+j}", f"v_and_b32 v{B+17+2*j}, 0xffff0000, v{B+8+j}"]
        o += [f"v_lshlrev_b32 v{B+24+2*j}, 16, v{B+12+j}", f"v_and_b32 v{B+25+2*j}, 0xffff0000, v{B+12+j}"]
    return o


def dq_rows(B, rg, sout, vaddr=None):
    r = B + 32 + rg * 8
    o = [f"v_cvt_f32_i32 v{r+e}, v{r+e}" for e in range(8)]
    o += [f"v_sub_f32 v{r+e}, v{r+e}, v{B+24+e}" for e in range(8)]
    o += [f"v_cvt_pk_bf16_f32 v{B+8+p}, v{r+2*p}, v{r+2*p+1}" for p in range(4)]
    for p in range(4):
        o += [f"v_lshlrev_b32 v{r+2*p}, 16, v{B+8+p}", f"v_and_b32 v{r+2*p+1}, 0xffff0000, v{B+8+p}"]
    o += [f"v_mul_f32 v{r+e}, v{r+e}, v{B+16+e}" for e in range(8)]
    o += [f"v_cvt_pk_bf16_f32 v{r+p}, v{r+2*p}, v{r+2*p+1}" for p in range(4)]
    o.append(f"buffer_store_dwordx4 v[{r}:{r+3}], v{vaddr or B+4}, s[8:11], {sout} offen offset:{rg*1024} sc1")
    return o


def dq_now(a, B, nrg, sout):
    a(f"s_waitcnt vmcnt({2*nrg})")
    a("\n".join(dq_unpack(B)))
    for rg in range(nrg):
        a(f"s_waitcnt vmcnt({2*nrg - 2 - 2*rg + rg})")
        a("\n".join(dq_rows(B, rg, sout)))


SL = 16384 + 16 * 1056
NSL = 4
CQ0 = 3 * SL
SQ = 16 * 1040
LDS_BYTES = max(NSL * SL, CQ0 + 3 * SQ)

B_FR = 64
B_PA = 230
B_TA = 234
V_L16 = 248
V_T = 240
def bP(rt, ks, buf=0): return B_FR + buf * 64 + (rt * 2 + ks) * 4
def bT(c, ks): return B_FR + 32 + (c * 2 + ks) * 4
def b_mf(cs, buf=0):
    if not OPT.get("cmaj", 1): return chain(lambda rt, c: (rt * 4 + c) * 4, bP, bT, range(4), cs)
    return [(mfma((rt * 4 + c) * 4, bP(rt, ks, buf), bT(c, ks)), bP(rt, ks, buf), bT(c, ks))
            for c in cs for rt in (range(4) if c % 2 == 0 else range(3, -1, -1)) for ks in range(2)]


def b_rdP(slot, rt, at=0):
    b = slot & 1 if OPT.get("cmaj", 1) else 0
    return [(f"ds_read_b128 v[{bP(rt,ks,b)}:{bP(rt,ks,b)+3}], v{B_PA + (slot//2)*2 + ks} offset:{(slot%2)*SL + rt*2048}", bP(rt, ks, b), at) for ks in range(2)]


def b_rdT(slot, c):
    return [(f"ds_read_b64_tr_b16 v[{bT(c,ks)+t*2}:{bT(c,ks)+t*2+1}], v{B_TA + slot//2} offset:{(slot%2)*SL + 16384 + ks*8448 + t*512 + c*32}", bT(c, ks), 0)
            for ks in range(2) for t in range(2)]


def row_read_base(a, dst, t0, wshift):
    a(f"v_and_b32 v{t0}, 15, v0\nv_lshrrev_b32 v{t0+1}, 4, v0")
    a(f"v_lshrrev_b32 v{t0+2}, 1, v{t0}\nv_xor_b32 v{t0+2}, v{t0+2}, v{t0+1}\nv_lshlrev_b32 v{t0+2}, 4, v{t0+2}\nv_lshl_add_u32 v{t0+2}, v{t0}, 7, v{t0+2}")
    a(f"s_lshr_b32 s14, s3, 1\ns_lshl_b32 s14, s14, {wshift}\nv_add_u32 v{dst}, s14, v{t0+2}\nv_xor_b32 v{dst+1}, 64, v{dst}")


def tr_read_base(a, dst, t0):
    a(f"v_bfe_u32 v{t0}, v0, 2, 3\nv_mul_u32_u24 v{t0}, 1056, v{t0}\nv_lshrrev_b32 v{t0+1}, 5, v0\nv_lshl_add_u32 v{t0}, v{t0+1}, 8, v{t0}")
    a(f"v_and_b32 v{t0+1}, 3, v0\nv_lshl_add_u32 v{t0}, v{t0+1}, 3, v{t0}\ns_and_b32 s14, s3, 1\ns_lshl_b32 s14, s14, 7")
    a(f"v_add_u32 v{dst}, s14, v{t0}")


C_FR = 128
C_PA = 224
C_QA = 227
C_WA = 228
C_SA = 229


def cP(rt, ks): return C_FR + (rt * 2 + ks) * 4
def cQ(c, ks): return C_FR + 32 + (c * 2 + ks) * 4
def c_mf(cs, rts=range(4), zero=False, preg=None):
    return chain(lambda rt, c: (rt * 8 + c) * 4, preg or cP, cQ, rts, cs, zero)


def c_rdP(slot, rt, at=0, dst=None):
    d = rt if dst is None else dst
    return [(f"ds_read_b128 v[{cP(d,ks)}:{cP(d,ks)+3}], v{C_PA+slot} offset:{ks*16384 + rt*1024}", cP(d, ks), at) for ks in range(2)]


def c_rdQ(slot, cs):
    return [(f"ds_read_b128 v[{cQ(c,ks)}:{cQ(c,ks)+3}], v{C_QA} offset:{slot*SQ + ks*8320 + c*16}", cQ(c, ks), 0) for c in cs for ks in range(2)]


def spread(rd, every=2):
    return {every * i: [r] for i, r in enumerate(rd)}


X_ACC = 136
X_FR = 168
X_PA = 216
X_TA = 220


def x_reads(slot, ks, buf):
    b = X_FR + buf * 24
    P = [f"ds_read_b128 v[{b+rt*4}:{b+rt*4+3}], v{X_PA + (slot//2)*2 + ks} offset:{(slot%2)*SL + rt*2048}" for rt in range(4)]
    T = [f"ds_read_b64_tr_b16 v[{b+16+c*4+t*2}:{b+16+c*4+t*2+1}], v{X_TA + slot//2} offset:{(slot%2)*SL + 16384 + ks*8448 + t*512 + c*32}"
         for c in range(2) for t in range(2)]
    return [T[0], T[1], P[0], T[2], T[3], P[1], P[2], P[3]]


def x_mfmas(buf, waits):
    b = X_FR + buf * 24
    out = []
    for n in range(8):
        rt, c = n >> 1, (n ^ (n >> 1)) & 1
        m = mfma(X_ACC + (rt * 2 + c) * 4, b + 16 + c * 4, b + rt * 4)
        out.append(([f"s_waitcnt lgkmcnt({waits[n]})"], m) if n in waits else m)
    return out


def x_epilogue(a):
    for rt in range(4):
        lo = X_ACC + rt * 8
        t = V_T + (rt & 1) * 4
        for p in range(4):
            a(f"v_cvt_pk_bf16_f32 v{t+p}, v{lo+2*p}, v{lo+2*p+1}")
        a(f"buffer_store_dwordx4 v[{t}:{t+3}], v{V_L16}, s[16:19], s24 offen offset:{rt*1024} sc1")


def roles(a):
    a("s_and_b32 s32, s2, 1\ns_bfe_u32 s33, s2, 0x20003\ns_lshl2_add_u32 s32, s32, s33")
    a("s_bfe_u32 s14, s2, 0x20001\ns_mul_i32 s35, s14, 7\ns_lshr_b32 s34, s2, 5\ns_add_u32 s33, s35, s34")
    a("s_add_u32 s35, s35, 2\ns_lshr_b32 s35, s35, 2\ns_add_u32 s54, s34, s35\ns_add_u32 s35, s33, 2\ns_lshr_b32 s35, s35, 2\ns_sub_u32 s54, s54, s35")
    a("s_cmp_ge_u32 s54, 4\ns_cselect_b32 s54, 16, s54\ns_and_b32 s35, s33, 3\ns_cmp_eq_u32 s35, 1\ns_cselect_b32 s54, 16, s54")
    a("s_lshl2_add_u32 s54, s14, s54")


def own_fx(a):
    a(f"s_lshl_b32 s27, s6, 3\ns_add_u32 s27, s27, s7\ns_lshl_b32 s27, s27, 8\ns_add_u32 s27, s27, {FX}")


def compute(a):
    DQ = 64
    roles(a)
    WSH = OPT.get("wsh", 2)
    if WSH == 4:
        a("s_and_b32 s15, s32, 4\ns_xor_b32 s15, s15, s54")
        dq_addr(a, DQ, 4, "s3", "s28")
    else:
        a("s_lshr_b32 s15, s54, 1\ns_and_b32 s29, s54, 1\ns_lshl_b32 s29, s29, 2\ns_add_u32 s29, s29, s3")
        dq_addr(a, DQ, 2, "s29", "s28")
    get_args(a)
    a("s_cmp_ge_u32 s54, 16\ns_cbranch_scc1 Lc_nodq0")
    dq_issue(a, DQ, range(WSH))
    a("Lc_nodq0:")
    if OPT.get("tlb"):
        a("s_cmp_lg_u32 s3, 3\ns_cbranch_scc1 Lc_ntlb")
        for p, sz in ((sV, F * F * 2), (sOUT, S * F * 2), (sWS, 28 << 20))[:OPT["tlb"]]:
            a(f"v_mul_u32_u24 v250, {sz // 64 // 128 * 128}, v0\nglobal_load_dword v251, v250, s[{p}:{p+1}]")
        a("s_waitcnt vmcnt(0)")
        a("Lc_ntlb:")
    srd(a, 8, sWS, SZ_WQ, WS_WQ)
    a(f"v_lshlrev_b32 v{V_L16}, 4, v0")
    row_read_base(a, B_PA, V_T, 13)
    a(f"v_mov_b32 v{X_PA}, v{V_T+2}\nv_xor_b32 v{X_PA+1}, 64, v{X_PA}")
    tr_read_base(a, B_TA, V_T)
    a(f"s_lshl_b32 s14, s3, 6\nv_add_u32 v{X_TA}, s14, v{V_T}")
    for r_ in (B_PA, X_PA):
        a(f"v_add_u32 v{r_+2}, {2*SL}, v{r_}\nv_add_u32 v{r_+3}, {2*SL}, v{r_+1}")
    for r_ in (B_TA, X_TA):
        a(f"v_add_u32 v{r_+1}, {2*SL}, v{r_}")
    a(f"s_lshl_b32 s14, s3, 12\nv_add_u32 v{C_PA}, s14, v{V_L16}\nv_add_u32 v{C_PA+1}, {SL}, v{C_PA}\nv_add_u32 v{C_PA+2}, {2*SL}, v{C_PA}")
    a(f"v_bfe_u32 v{V_T}, v0, 1, 3\nv_mul_u32_u24 v{V_T}, 1040, v{V_T}\nv_lshrrev_b32 v{V_T+1}, 4, v0\nv_lshl_add_u32 v{V_T}, v{V_T+1}, 8, v{V_T}")
    a(f"v_and_b32 v{V_T+2}, 1, v0\nv_lshl_add_u32 v{V_T}, v{V_T+2}, 7, v{V_T}\nv_add_u32 v{C_QA}, {CQ0}, v{V_T}")
    a(f"s_lshr_b32 s14, s3, 1\ns_mul_i32 s14, s14, {SQ}\ns_and_b32 s34, s3, 1\ns_mul_i32 s34, s34, {4*1040}\ns_add_u32 s14, s14, s34\ns_add_u32 s14, s14, {CQ0}")
    a(f"v_add_u32 v{C_WA}, s14, v{V_L16}")
    col_lane(a, V_T + 2, V_T + 3, OPT.get("mix", 0))
    a(f"v_mul_u32_u24 v{V_T+1}, {4*7168}, v{V_T+1}\nv_add_u32 v{C_SA}, v{V_T+2}, v{V_T+1}")
    for i in list(range(64)) + list(range(X_ACC, X_ACC + 32)):
        a(f"v_mov_b32 v{i}, 0")
    a("s_lshr_b32 s24, s6, 2\ns_lshl_b32 s24, s24, 5\ns_lshl_b32 s34, s7, 2\ns_add_u32 s24, s24, s34\ns_add_u32 s24, s24, s3")
    a("s_lshl_b32 s24, s24, 2\ns_and_b32 s34, s6, 3\ns_add_u32 s24, s24, s34\ns_lshl_b32 s24, s24, 12")
    srd(a, 16, sWS, SZ_X, WS_XRF)
    get_nonce(a)
    a("s_cmp_ge_u32 s54, 16\ns_cbranch_scc1 Lc_nodq1")
    dq_now(a, DQ, WSH, "s28")
    a("Lc_nodq1:")
    stamp(a, 1)
    XW = {0: 5, 1: 4, 2: 4, 4: 5, 6: 6}
    a("s_mov_b32 s23, 4\ns_barrier")
    stamp(a, 9)
    for r in x_reads(0, 0, 0): a(r)
    a("s_branch Lx_mid")
    a("Lx_loop:")
    for s in range(NSL):
        a("s_barrier")
        interleave(a, x_mfmas(1, {}), spread(x_reads(s, 0, 0), 1))
        if s == 0: a("Lx_mid:")
        if OPT.get("xfront", 1):
            rd = x_reads(s, 1, 1)
            interleave(a, x_mfmas(0, {0: 5, 1: 5, 2: 6, 4: 9, 6: 8}), {i: rd[2*i:2*i+2] for i in range(4)})
        else:
            interleave(a, x_mfmas(0, XW), spread(x_reads(s, 1, 1), 1))
        XACK = OPT.get("xack", 3)
        if s == XACK - 5: a("s_cmp_eq_u32 s23, 4\ns_cbranch_scc1 Lx_na\ns_waitcnt vmcnt(0)\nLx_na:")
        if s == NSL - 1:
            a("s_sub_u32 s23, s23, 1\ns_cmp_lg_u32 s23, 0")
        a("s_waitcnt vmcnt(0) lgkmcnt(0)" if s == XACK - 1 else "s_waitcnt lgkmcnt(0)")
    a("s_cbranch_scc1 Lx_loop")
    stamp(a, 10)
    a("s_cmp_lg_u32 s5, 0\ns_cbranch_scc1 Lc_h")
    a("s_barrier")
    stamp(a, 2)
    LO, HI = [0, 1], [2, 3]
    sc = Sched(a)
    CM = OPT.get("cmaj", 1)
    def b_h1(s):
        if CM: return b_rdT(s, 0) + b_rdP(s, 0) + b_rdP(s, 1) + b_rdP(s, 2) + b_rdP(s, 3) + b_rdT(s, 1)[:2]
        return b_rdT(s, 0) + b_rdP(s, 0, 3) + b_rdT(s, 1) + b_rdP(s, 1, 7) + b_rdP(s, 2, 11)
    def b_h2(s):
        return (b_rdT(s, 1)[2:] if CM else b_rdP(s, 3)) + b_rdT(s, 2) + b_rdT(s, 3)
    rd = b_h1(0)
    interleave(a, x_mfmas(1, {}), spread([r[0] for r in rd[:8]], 1))
    for r in rd[8:]: a(r[0])
    a(f"s_lshl_b32 s25, s32, 2\ns_add_u32 s25, s25, s3\ns_mov_b32 s23, {56 // NSL}")
    x_epilogue(a)
    a(f"s_lshr_b32 s34, s3, 1\ns_lshl_b32 s24, s32, 1\ns_add_u32 s24, s24, s34\ns_mul_i32 s24, s24, {2*224*1024}")
    a("s_and_b32 s34, s3, 1\ns_lshl_b32 s35, s33, 1\ns_add_u32 s34, s34, s35\ns_lshl_b32 s34, s34, 12\ns_add_u32 s24, s24, s34")
    srd(a, 16, sWS, SZ_W, WS_WPF)
    a(f"s_add_u32 s26, s24, {224*1024}")
    a("s_waitcnt lgkmcnt(0)\ns_branch Lb_mid")
    a("Lb_loop:")
    for s in range(NSL):
        a("s_barrier")
        sc.run(b_mf(HI, (s - 1) & 1), b_h1(s), group=4)
        if s == 0: a("Lb_mid:")
        fill = {13: ["s_sub_u32 s23, s23, 1"], 14: ["s_cmp_lg_u32 s23, 0"]} if s == NSL - 1 else {}
        sc.run(b_mf(LO, s & 1), b_h2(s), fill, group=4)
        sc.drain("vmcnt(0) " if s == NSL - 1 else "")
    a("s_cbranch_scc1 Lb_loop")
    a("s_barrier")
    stamp(a, 3)
    WT = 160
    def w_out(pair, o):
        lo, hi = ((2 * pair) * 4 + o) * 4, ((2 * pair + 1) * 4 + o) * 4
        t = WT + (pair * 4 + o) * 4
        return [f"v_cvt_pk_bf16_f32 v{t}, v{lo}, v{lo+1}", f"v_cvt_pk_bf16_f32 v{t+1}, v{lo+2}, v{lo+3}",
                f"v_cvt_pk_bf16_f32 v{t+2}, v{hi}, v{hi+1}", f"v_cvt_pk_bf16_f32 v{t+3}, v{hi+2}, v{hi+3}",
                f"buffer_store_dwordx4 v[{t}:{t+3}], v{V_L16}, s[16:19], s{24+2*pair} offen offset:{o*1024} sc1"]
    def w_lds(pair, o):
        t = WT + (pair * 4 + o) * 4
        return f"ds_write_b128 v{C_WA}, v[{t}:{t+3}] offset:{pair*8320 + o*1040}"
    fill = {}
    for n, (pair, o) in enumerate(((0, 0), (1, 0), (1, 1), (0, 1)) if CM else ((0, 0), (0, 1), (1, 0), (1, 1))):
        w = w_out(pair, o)
        fill[4 * n] = w[0:2]; fill[4 * n + 1] = w[2:4]; fill[4 * n + 2] = w[4:5]; fill[4 * n + 3] = [w_lds(pair, o)]
    sc.run(b_mf(HI, 1), fill=fill)
    rest = ((0, 2), (1, 2), (1, 3), (0, 3)) if CM else ((0, 2), (0, 3), (1, 3), (1, 2))
    for pair, o in rest:
        a("\n".join(w_out(pair, o)))
    for pair, o in rest:
        a(w_lds(pair, o))
    srd(a, 16, sOUT, S * F * 2)
    a(f"s_lshl_b32 s34, s33, 8\ns_mul_i32 s24, s25, {64*7168}\ns_add_u32 s24, s24, s34")
    a("s_waitcnt lgkmcnt(0)")
    stamp(a, 4)
    LO, HI = [0, 1, 2, 3], [4, 5, 6, 7]
    def c_first(slot):
        return c_rdP(slot, 0) + c_rdQ(slot, LO) + c_rdP(slot, 1) + c_rdP(slot, 2)
    a("s_barrier")
    for r in c_first(0): sc.read(r)
    a("s_mov_b32 s23, 4")
    z = [f"v_mov_b32 v{(rt*8+c)*4+i}, 0" for rt in range(4) for c in HI for i in range(4)]
    sc.run(c_mf(LO, zero=True), c_rdP(0, 3) + c_rdQ(0, HI), {10 + i: z[3*i:3*i+3] for i in range(22)}, group=2)
    sc.drain("vmcnt(0) ")
    stamp(a, 5)
    EB = OPT.get("eb", 2)
    if EB: a("s_barrier")
    a("Lc_loop:")
    for s in (1, 2, 0):
        if not EB:
            if s == 2: a("s_cmp_eq_u32 s23, 4\ns_cbranch_scc1 Lc_peel")
            a("s_barrier")
        sc.run(c_mf(HI), c_rdQ(s, LO[:2]) + c_rdP(s, 0, 7) + c_rdQ(s, LO[2:]) + c_rdP(s, 1, 15) + c_rdP(s, 2, 23), every=2, group=8)
        if s == 2: a("Lc_mid:")
        fill = {21: ["s_sub_u32 s23, s23, 1"], 23: ["s_cmp_lg_u32 s23, 0"]} if s == 0 else {}
        if EB:
            fill[30 - EB] = ["s_waitcnt lgkmcnt(0)"]
            fill[31 - EB] = ["s_barrier"]
            if s == 1:
                fill[23] = ["s_cmp_eq_u32 s23, 4"]
                fill[31 - EB] = ["s_cbranch_scc1 Lc_peel", "s_barrier"]
        sc.run(c_mf(LO), c_rdP(s, 3) + c_rdQ(s, HI), fill, every=2, group=8)
        if EB: sc.q = []
        else: sc.drain()
    a("s_cbranch_scc1 Lc_loop")
    a("Lc_tail:")
    ynt = {0: "", 1: " nt", 2: " sc1", 3: " sc0 sc1"}[OPT.get("y_nt", 2)]

    def row_out(rt, r, t):
        o = []
        for p in range(4):
            o.append(f"v_cvt_pk_bf16_f32 v{t+p}, v{(rt*8+2*p)*4+r}, v{(rt*8+2*p+1)*4+r}")
        o.append(f"buffer_store_dwordx4 v[{t}:{t+3}], v{C_SA}, s[16:19], s24 offen{ynt}")
        o.append(f"s_add_u32 s24, s24, {7168 if r < 3 else 13*7168}")
        return o
    def u_slot(n): return (13 + n % 3) % 3
    def u_rdP(n, at=(0, 0)): return [r for k in range(2) for r in c_rdP(u_slot(n), 2 * (n // 3) + k, at[k], 2 * (n & 1) + k)]
    def u_mf(n, cs, rts=None):
        h = n // 3
        return c_mf(cs, rts or (2 * h, 2 * h + 1), preg=lambda rt, ks: cP(2 * (n & 1) + (rt & 1), ks))
    if not EB: a("s_barrier")
    sc.run(c_mf(HI), c_rdQ(u_slot(0), LO) + u_rdP(0, (7, 15)), every=2, group=8)
    outs = [row_out(rt, r, V_T + ((rt * 4 + r) & 1) * 4) for rt in range(4) for r in range(4)]
    def put(fill, pos, q):
        o = outs[q]
        fill[pos] = o[0:2]; fill[pos + 1] = o[2:4]; fill[pos + 2] = o[4:6]
    for n in range(5):
        f1, f2 = {}, {}
        if n >= 3:
            put(f1, 9, 3 * (n - 3)); put(f1, 12, 3 * (n - 3) + 1); put(f2, 12, 3 * (n - 3) + 2)
        sc.run(u_mf(n, LO), c_rdQ(u_slot(n), HI), f1, group=4)
        if n < 2: a("s_barrier")
        sc.run(u_mf(n, HI), u_rdP(n + 1)[:2] + c_rdQ(u_slot(n + 1), LO) + u_rdP(n + 1)[2:], f2, group=4)
    f1, f2 = {}, {}
    put(f1, 9, 6); put(f1, 12, 7)
    sc.run(u_mf(5, LO + HI, (2,)), c_rdQ(u_slot(5), HI), f1, group=2)
    stamp(a, 7)
    put(f2, 7, 8); put(f2, 10, 9); put(f2, 13, 10)
    sc.run(u_mf(5, (LO + HI)[::-1], (3,)), fill=f2)
    a("\n".join(outs[11]))
    a("s_nop 1")
    for q in range(12, 16):
        a("\n".join(row_out(3, q - 12, C_FR + (q & 3) * 4)))
    stamp(a, 8)
    a("s_or_b32 s14, s2, s3\ns_cmp_lg_u32 s14, 0\ns_cbranch_scc1 Lc_end")
    a(f"s_mov_b32 s14, {EPOCH}")
    flag_store(a, "s14", V_T, V_L16)
    a("Lc_end:")
    stamp_out(a, False)
    a("s_endpgm")
    a("Lc_peel:")
    sc.q = []
    sc.run((c_mf(LO)[32 - EB:] if EB else []) + c_mf(HI))
    a("s_barrier")
    stamp(a, 6)
    for r in c_first(2): a(r[0])
    a("s_branch Lc_mid")
    a("Lc_h:")
    interleave(a, x_mfmas(1, {}), {})
    a("s_nop 7")
    x_epilogue(a)
    a("s_waitcnt vmcnt(0)\ns_barrier")
    a("s_cmp_lg_u32 s3, 0\ns_cbranch_scc1 Lc_end")
    if OPT.get("warm", 0) & 2: touch_code(a, "L_tc1", NAME, "L_end", 250, 252, f"v{V_L16}", 3)
    own_fx(a)
    flag_store(a, "s27", V_T, V_L16)
    a("s_branch Lc_end")


L_T = 68
L_P = 72
L_TP = 76
L_TT = 77
L_Q = 78
L_L16 = 82
L_FI = 83
L_TMP = 84
L_FL = 92
L_CP = 93
L_CQ = 94
L_SP = 95


def rot_table(a, n, W, phi, psi, v, pw=0):
    lg = W.bit_length() - 1
    wmin = OPT.get("wmin", 1)
    a(f"s_add_u32 s14, {psi}, {n - wmin}\ns_lshr_b32 s14, s14, {lg}")
    a(f"v_add_u32 v{v+3}, {psi}, v0\nv_lshrrev_b32 v{v+3}, {lg}, v{v+3}\nv_min_u32 v{v+3}, s14, v{v+3}")
    a(f"v_cmp_eq_u32 vcc, s14, v{v+3}")
    a(f"v_lshlrev_b32 v{v}, {lg}, v{v+3}\nv_subrev_u32 v{v}, {psi}, v{v}")
    a(f"v_add_u32 v{v+1}, {W}, v{v}\nv_mov_b32 v{v+2}, {n}\nv_cndmask_b32 v{v+1}, v{v+1}, v{v+2}, vcc")
    a(f"v_max_i32 v{v}, 0, v{v}\nv_sub_u32 v{v+1}, v{v+1}, v{v}")
    a(f"v_mul_u32_u24 v{v+3}, {pw}, v{v+3}")
    a(f"v_add_u32 v{v+3}, {phi}, v{v+3}\nv_and_b32 v{v+3}, {W-1}, v{v+3}\nv_sub_u32 v{v+2}, v0, v{v}\nv_add_u32 v{v+2}, v{v+3}, v{v+2}")
    for i in range(W - 1):
        a(f"v_sub_u32 v{v+3}, v{v+2}, v{v+1}\nv_min_u32 v{v+2}, v{v+2}, v{v+3}")
    a(f"v_add_u32 v{v}, v{v}, v{v+2}")


def col_base(a, dst, tile, mix):
    if mix: a(f"s_lshr_b32 {dst}, {tile}, 2\ns_lshl_b32 {dst}, {dst}, 2\ns_add_u32 {dst}, {dst}, {tile}\ns_lshl_b32 {dst}, {dst}, 7")
    else: a(f"s_lshl_b32 {dst}, {tile}, 8")


def col_lane(a, dst, tmp, mix):
    a(f"v_and_b32 v{dst}, 15, v0\nv_lshlrev_b32 v{dst}, 4, v{dst}")
    if mix: a(f"v_and_b32 v{tmp}, 8, v0\nv_mul_u32_u24 v{tmp}, 48, v{tmp}\nv_add_u32 v{dst}, v{dst}, v{tmp}")


def t_voffs(a, t_row, natural, L_T=L_T, mix=0):
    t = L_TMP
    a(f"v_lshrrev_b32 v{t}, 4, v0\nv_and_b32 v{t+1}, 1, v{t}\nv_lshrrev_b32 v{t}, 1, v{t}")
    if natural:
        a(f"v_lshlrev_b32 v{t+1}, 4, v{t+1}\nv_lshl_add_u32 v{t}, v{t}, 2, v{t+1}")
    else:
        a(f"v_lshlrev_b32 v{t+1}, 3, v{t+1}\nv_lshl_add_u32 v{t}, v{t}, 5, v{t+1}")
    col_lane(a, t + 1, t + 2, mix)
    a(f"v_mul_u32_u24 v{t}, {t_row}, v{t}\nv_add_u32 v{L_T}, v{t+1}, v{t}")
    for j in range(1, 4):
        a(f"v_add_u32 v{L_T+j}, {j*(t_row-1056)}, v{L_T}")


def p_voffs(a, p_row, L_P=L_P, n=4):
    t = L_TMP
    a(f"v_lshrrev_b32 v{t}, 3, v0\nv_mul_u32_u24 v{t}, {p_row}, v{t}\nv_lshrrev_b32 v{t+1}, 4, v0\nv_and_b32 v{t+2}, 7, v0\nv_xor_b32 v{t+1}, v{t+1}, v{t+2}")
    a(f"v_lshl_add_u32 v{L_P}, v{t+1}, 4, v{t}\nv_xor_b32 v{L_P+1}, 64, v{L_P}")
    d = 8 * p_row - 1024
    if n == 4: a(f"v_add_u32 v{L_P+2}, {2*d}, v{L_P}\nv_add_u32 v{L_P+3}, {3*d}, v{L_P+1}")
    a(f"v_add_u32 v{L_P+1}, {d}, v{L_P+1}")


def skip1_adj(a, v):
    a(f"v_lshrrev_b32 v{v+1}, 4, v0\nv_min_u32 v{v}, 1, v{v+1}\nv_lshlrev_b32 v{v}, 8, v{v}")
    a(f"v_add_u32 v{v+1}, 9, v{v+1}\nv_lshrrev_b32 v{v+1}, 2, v{v+1}\nv_lshlrev_b32 v{v+1}, 8, v{v+1}")


def loader(a):
    t = L_TMP + 4
    XT, XP, XTP, XTT = 4, 8, 12, 13
    AH = OPT.get("ah", 3)
    a(f"s_add_u32 s15, s6, s7\ns_and_b32 s15, s15, 3\ns_lshl_b32 s34, s2, 1\ns_sub_u32 s34, s34, s15")
    a(f"v_add_u32 v{t}, s15, v0\nv_add_u32 v{t+1}, 3, v{t}\nv_and_b32 v{t}, 0xfc, v{t}\nv_and_or_b32 v{t}, v{t+1}, 3, v{t}")
    a(f"v_add_u32 v{t}, s34, v{t}\nv_and_b32 v{t}, 15, v{t}")
    a("s_and_b32 s34, s3, 2\ns_add_u32 s34, s34, s3\ns_lshl_b32 s34, s34, 6\ns_add_u32 s34, s34, s7\ns_lshl_b32 s34, s34, 8")
    a(f"v_lshl_add_u32 v{XTT}, v{t}, 17, s34")
    t_voffs(a, 2048, True, XT)
    a("s_mul_i32 s29, s3, 4224\ns_add_u32 s29, s29, 16384")
    a(f"v_readlane_b32 s21, v{XTT}, 0\ns_mov_b32 m0, s29\ns_mov_b32 s18, {D*D*2}\ns_mov_b32 s19, 0x20000")
    get_args(a)
    stamp(a, 8)
    if OPT.get("trace"): a("v_mov_b32 v100, 0\ns_mov_b32 s96, 0")
    a(f"s_mov_b64 s[16:17], s[{sU}:{sU+1}]")
    def XTl(j): a(f"buffer_load_dwordx4 v{XT+j}, s[16:19], s21 offen offset:{j*1056} lds")
    def XPl(j): a(f"buffer_load_dwordx4 v{XP+j}, s[8:11], s20 offen offset:{j*1024} lds")
    def xbody(n, hook=False):
        XTl(0)
        a(f"v_readlane_b32 s20, v{XTP}, s25\ns_add_u32 s25, s25, 1")
        if hook:
            a("s_cmp_eq_u32 s25, s54\ns_cbranch_scc1 Lxl_ev")
            a("Lxl_evdone:")
        XTl(1)
        a("Lxl_go2:")
        a(f"s_add_u32 s34, s28, s22\ns_add_u32 s28, s28, {SL}")
        XTl(2)
        a(f"s_cmp_eq_u32 s28, {NSL*SL}\ns_cselect_b32 s28, 0, s28")
        XTl(3)
        a(f"s_mov_b32 m0, s34\nv_readlane_b32 s21, v{XTT}, s25\ns_add_u32 s34, s28, s29\ns_cmp_lt_u32 s25, {n}")
        XPl(0)
    def x0():
        W = OPT.get("W", 4)
        roles(a)
        a(f"s_mul_i32 s34, s32, {OPT.get('pm',0)}\ns_mul_i32 s35, s33, {OPT.get('pn',0)}\ns_add_u32 s34, s34, s35\ns_add_u32 s34, s34, {OPT.get('p0',3)}")
        a(f"s_mul_i32 s35, s33, {OPT.get('qn',1)}\ns_mul_i32 s14, s32, {OPT.get('qm',1)}\ns_add_u32 s35, s35, s14\ns_and_b32 s35, s35, {W-1}")
        rot_table(a, 56, W, "s34", "s35", t, OPT.get("pw", 0))
        a(f"s_and_b32 s34, s32, 4\nv_xor_b32 v{t}, s34, v{t}")
        CS = 24576 if OPT.get("skip1") else 16384
        a(f"s_mul_i32 s34, s32, {56*CS}\ns_mul_i32 s35, s3, {CS//4}\ns_add_u32 s34, s34, s35")
        a(f"v_mul_u32_u24 v{L_TP}, {CS}, v{t}\nv_add_u32 v{L_TP}, s34, v{L_TP}")
        a("s_lshr_b32 s34, s3, 1\ns_lshl_b32 s34, s34, 4\ns_and_b32 s35, s3, 1\ns_lshl_b32 s35, s35, 2\ns_add_u32 s34, s34, s35")
        col_base(a, "s35", "s33", OPT.get("mix", 0))
        a("s_mul_i32 s34, s34, 7168\ns_add_u32 s34, s34, s35")
        a(f"v_mul_u32_u24 v{t}, {64*7168}, v{t}\nv_add_u32 v{L_TT}, s34, v{t}")
        t_voffs(a, 7168, False, mix=OPT.get("mix", 0))
        p_voffs(a, 128)
        if OPT.get("skip1"):
            skip1_adj(a, L_TMP)
            a(f"v_add_u32 v{L_P}, v{L_P}, v{L_TMP}\nv_add_u32 v{L_P+1}, v{L_P+1}, v{L_TMP+1}")
            a(f"v_add_u32 v{L_P+2}, 1024, v{L_P}\nv_add_u32 v{L_P+3}, 1024, v{L_P+1}")
        if OPT.get("spf"):
            OFF = OPT.get("spo", 12)
            NW = OPT.get("spf")
            a(f"s_lshr_b32 s14, s2, 3\ns_mul_i32 s14, s14, {NW}\ns_add_u32 s14, s14, s3\ns_sub_u32 s14, s14, {4-NW}")
            a(f"v_add_u32 v{t}, {OFF}, v0\nv_and_b32 v{t+1}, 7, v{t}\nv_mul_u32_u24 v{t+1}, {28*NW}, v{t+1}\nv_add_u32 v{t+1}, s14, v{t+1}\nv_min_u32 v{t+1}, 511, v{t+1}")
            a(f"v_and_b32 v{t}, 0xf8, v{t}\nv_min_u32 v{t}, 48, v{t}\nv_lshrrev_b32 v{t+2}, 7, v{t+1}\nv_add_u32 v{t}, v{t}, v{t+2}")
            a(f"s_and_b32 s34, s32, 4\nv_xor_b32 v{t}, s34, v{t}\nv_and_b32 v{t+2}, 63, v{t+1}\nv_lshl_add_u32 v{t}, v{t}, 6, v{t+2}\nv_mul_u32_u24 v{t}, 7168, v{t}")
            a("s_bfe_u32 s14, s2, 0x20001\ns_mul_i32 s14, s14, 7\ns_add_u32 s34, s14, 2\ns_andn2_b32 s34, s34, 3\ns_add_u32 s34, s34, 1")
            a("s_add_u32 s35, s34, 4\ns_add_u32 s14, s14, 6\ns_min_u32 s35, s35, s14\ns_sub_u32 s35, s35, s34")
            a(f"v_bfe_u32 v{t+1}, v{t+1}, 6, 1\nv_mul_lo_u32 v{t+1}, s35, v{t+1}\nv_add_u32 v{t+1}, s34, v{t+1}\nv_lshl_add_u32 v{L_SP}, v{t+1}, 8, v{t}")
            a(f"s_cmp_ge_u32 s3, {4-NW}\ns_cselect_b32 s24, {56-OFF}, 0")
        a(f"v_lshrrev_b32 v{t}, 1, v0\nv_add_u32 v{t+1}, 3, v{t}\nv_xor_b32 v{t+1}, s32, v{t+1}\nv_and_b32 v{t+1}, 4, v{t+1}")
        a(f"v_add_u32 v{t}, s32, v{t}\nv_and_or_b32 v{t}, v{t}, 3, v{t+1}\nv_and_b32 v{t+1}, 1, v0\nv_lshl_add_u32 v{t}, v{t}, 1, v{t+1}")
        if OPT.get("cswap"):
            a(f"v_min_u32 v{t+1}, 2, v0\nv_lshrrev_b32 v{t+1}, 1, v{t+1}\nv_and_b32 v{t+1}, s33, v{t+1}\nv_xor_b32 v{t}, v{t}, v{t+1}")
        a(f"s_lshl_b32 s34, s32, 19\ns_lshl_b32 s35, s3, 13\ns_add_u32 s34, s34, s35\nv_lshl_add_u32 v{L_CP}, v{t}, 15, s34")
        a(f"s_lshr_b32 s34, s3, 1\ns_mul_i32 s34, s34, {224*1024}\ns_and_b32 s35, s3, 1\ns_lshl_b32 s14, s33, 1\ns_add_u32 s35, s35, s14\ns_lshl_b32 s35, s35, 12\ns_add_u32 s34, s34, s35")
        a(f"v_mul_u32_u24 v{t}, {2*224*1024}, v{t}\nv_add_u32 v{L_CQ}, s34, v{t}")
        srd(a, 40, sWS, SZ_X, WS_XRF)
        srd(a, 48, sWS, SZ_W + 64, WS_WPF - 64)
        a(f"v_lshlrev_b32 v{L_L16}, 4, v0\nv_lshlrev_b32 v{L_FI}, 8, v0")
        for j in range(4):
            a(f"v_add_u32 v{L_Q+j}, {64 - 16*j}, v{L_L16}")
        a(f"s_lshl_b32 s26, s32, 12\ns_add_u32 s26, s26, {FA1}\ns_lshl_b32 s27, s54, 8\ns_add_u32 s27, s27, s26")
        get_nonce(a)
        a(f"s_cmp_lt_u32 s54, 16\ns_cselect_b32 s54, {OPT.get('xack', 3) + AH + 1}, 255\ns_cmp_eq_u32 s3, 1\ns_cselect_b32 s54, s54, 255\ns_cselect_b32 s55, 2, 0")
        a(f"s_or_b32 s14, s3, s5\ns_cmp_eq_u32 s14, 0\ns_cselect_b32 s54, 13, s54")
    for j in range(4): XTl(j)
    a(f"s_lshl2_add_u32 s34, s6, s3\ns_lshl_b32 s34, s34, 15\nv_lshl_add_u32 v{XTP}, v{t}, 7, s34")
    a(f"s_lshl_b32 s22, s3, 11\ns_mov_b32 m0, s22\nv_readlane_b32 s20, v{XTP}, 0\nv_readlane_b32 s21, v{XTT}, 1")
    p_voffs(a, 2048, XP, 2)
    srd(a, 8, sX, SZ_X)
    XPl(0)
    XPl(1)
    if OPT.get("pre", 1):
        a(f"s_add_u32 m0, s29, {SL}\ns_mov_b32 s25, 2\ns_mov_b32 s28, {SL}\nv_readlane_b32 s20, v{XTP}, 1")
        XTl(0)
        XTl(1)
        x0()
        a("s_branch Lxl_go2")
    else:
        a(f"s_add_u32 m0, s29, {SL}\ns_mov_b32 s25, 1\ns_mov_b32 s28, {SL}")
        x0()
        a("s_branch Lxl_go")
    a("Lxl_loop:")
    XPl(1)
    trace(a, 2)
    a("s_mov_b32 m0, s34")
    if AH == 3: a("s_cmp_lt_u32 s25, 3\ns_cbranch_scc1 Lxl_go")
    a(f"s_waitcnt vmcnt({6*(AH-1)})\ns_barrier")
    a("Lxl_go:")
    xbody(16, True)
    a("s_cbranch_scc1 Lxl_loop")
    XPl(1)
    stamp(a, 1)
    a("s_cmp_lg_u32 s5, 0\ns_cbranch_scc1 Ll_h")
    srd(a, 8, sWS, SZ_WQ, WS_WQ)
    srd(a, 16, sV, F * F * 2)
    a("s_lshl_b32 s22, s3, 12")

    AUX = {0: "", 1: " sc1", 2: " sc0 sc1", 3: " sc0"}
    PAUX, TAUX = AUX[OPT.get("psc1", 1)], AUX[OPT.get("tsc1", 0)]
    def T(j): a(f"buffer_load_dwordx4 v{L_T+j}, s[16:19], s21 offen offset:{j*1056}{TAUX} lds")
    def P(j): a(f"buffer_load_dwordx4 v{L_P+j}, s[8:11], s20 offen offset:{j*1024}{PAUX} lds")
    a(f"v_readlane_b32 s21, v{L_TT}, 0\nv_readlane_b32 s20, v{L_TP}, 0\ns_mov_b32 m0, s29")
    WSH = OPT.get("wsh", 2)
    a(f"s_mul_i32 s26, s32, {14*1024}\ns_add_u32 s26, s26, {FA + (WSH - 1) * 1024}")
    a(f"s_cmp_eq_u32 s3, 0\ns_cselect_b32 s54, {4*WSH - 4}, 255\ns_cmp_eq_u32 s3, 1\ns_cselect_b32 s54, 8, s54\ns_mov_b32 s55, 0")
    if AH == 3:
        a("s_waitcnt vmcnt(12)\ns_barrier")
        for j in range(4): T(j)
        a(f"s_mov_b32 m0, s22\nv_readlane_b32 s21, v{L_TT}, 1")
        for j in range(4): P(j)
        a(f"s_add_u32 m0, s29, {SL}\ns_mov_b32 s25, 1\ns_mov_b32 s28, {SL}")
        a("s_waitcnt vmcnt(14)\ns_barrier")
    else:
        a("s_mov_b32 s25, 0")
        a("s_waitcnt vmcnt(6)\ns_barrier")
    a("s_branch Lw_go")

    def head():
        P(3)
        trace(a)
        a("s_add_u32 m0, s28, s29")
        a(f"s_waitcnt vmcnt({8*(AH-1)})\ns_barrier")
    def first():
        T(0)
        a(f"v_readlane_b32 s20, v{L_TP}, s25\ns_add_u32 s25, s25, 1")
    def rest(fill=()):
        n = (len(fill) + 6) // 7
        g = ["\n".join(fill[i*n:(i+1)*n]) for i in range(7)]
        def gap(i):
            if g[i]: a(g[i])
        gap(0)
        T(1)
        a(f"s_add_u32 s34, s28, s22\ns_add_u32 s28, s28, {SL}")
        gap(1)
        T(2)
        a(f"s_cmp_eq_u32 s28, {NSL*SL}\ns_cselect_b32 s28, 0, s28")
        gap(2)
        T(3)
        a(f"s_mov_b32 m0, s34\nv_readlane_b32 s21, v{L_TT}, s25")
        gap(3)
        P(0)
        if OPT.get("spf"):
            a(f"s_cmp_ge_u32 s25, s24\ns_cbranch_scc1 Lw_nsp\nv_readlane_b32 s23, v{L_SP}, s25")
            for q in range(4):
                a("s_buffer_load_dword s97, s[16:19], s23" + (f" offset:{64*q}" if q else ""))
            a("Lw_nsp:")
        gap(4)
        P(1)
        gap(5)
        a(f"s_cmp_lt_u32 s25, 56")
        P(2)
        gap(6)
    a("Lw_loop:")
    head()
    a("Lw_go:")
    first()
    a(f"s_cmp_eq_u32 s25, s54\ns_cbranch_scc1 Lw_ev")
    a("Lw_evdone:")
    rest()
    a("s_cbranch_scc1 Lw_loop")
    P(3)
    stamp(a, 4)
    a(f"s_lshl_b32 s22, s3, 13\ns_mul_i32 s29, s3, {4*1040}\ns_add_u32 s29, s29, {CQ0}")
    def PC(st, slot, mid=None):
        a(f"v_readlane_b32 s20, v{L_CP}, {st}\ns_add_u32 m0, s22, {slot}\ns_nop 3")
        for j in range(8):
            if j == 4:
                a("s_add_u32 m0, m0, 4096\ns_add_u32 s20, s20, 4096")
                if mid: a(mid)
            a(f"buffer_load_dwordx4 v{L_L16}, s[40:43], s20 offen offset:{(j&3)*1024} sc1 lds")
    def QC(st, slot):
        a(f"v_readlane_b32 s21, v{L_CQ}, {st}\ns_add_u32 m0, s29, {slot}\ns_nop 3")
        for j in range(4):
            a(f"buffer_load_dwordx4 v{L_Q+j}, s[48:51], s21 offen offset:{j*1040} sc1 lds")
    for i in range(AH):
        a(f"s_waitcnt vmcnt({8*(AH-1)})\ns_barrier")
        PC(i, i * SL)
    a("s_barrier")
    a(f"s_lshl_b32 s26, s33, 3\ns_add_u32 s26, s26, s32\ns_lshl_b32 s27, s26, 8\ns_add_u32 s27, s27, {FB}")
    a(f"s_andn2_b32 s26, s27, 0x300\ns_xor_b32 s26, s26, 0x400")
    a(f"s_waitcnt vmcnt({8*(AH-1)})\ns_barrier")
    sflag_sample(a)
    if AH == 2: PC(2, 2 * SL)
    a("s_cmp_lg_u32 s3, 0")
    a("s_waitcnt vmcnt(8)\ns_barrier")
    a("s_cbranch_scc1 Lw_nfb")
    flag_store(a, "s27", L_TMP, L_L16)
    a("Lw_nfb:")
    stamp(a, 6)
    a(f"s_mov_b32 s25, 5\ns_mov_b32 s28, {2*SL}\ns_mov_b32 s27, {2*SQ}")
    a("s_cmp_eq_u32 s3, 0\ns_cselect_b32 s54, 9, 255")
    LM = OPT.get("late", 0)
    if LM == 1: PC(3, 0)
    sflag_check(a, "Lw_pb", L_FI, L_FL)
    stamp(a, 7)
    a("s_xor_b32 s26, s26, 0x400")
    QC(2, 2 * SQ)
    QC(3, 0)
    if LM == 0:
        PC(3, 0)
        a("s_waitcnt vmcnt(12)\ns_barrier")
    elif LM == 1:
        a("s_waitcnt vmcnt(4)\ns_barrier")
    else:
        PC(3, 0, "s_waitcnt vmcnt(8)\ns_barrier")
    if LM < 2:
        QC(4, SQ)
        PC(4, SL, "s_waitcnt vmcnt(8)\ns_barrier")
    else:
        QC(4, SQ)
        a("s_waitcnt vmcnt(4)\ns_barrier")
        PC(4, SL)
        QC(5, 2 * SQ)
        PC(5, 2 * SL, "s_waitcnt vmcnt(8)\ns_barrier")
        a("s_mov_b32 s25, 6\ns_mov_b32 s28, 0\ns_mov_b32 s27, 0")
    a("Lw_cloop:")
    a("s_cmp_lg_u32 s25, s54\ns_cbranch_scc1 Lw_c3")
    if OPT.get("warm", 0) & 4: touch_code(a, "L_tc2", "Lc_tail", "Lc_end", 250, 252, n=1, back=False)
    sflag_sample(a)
    a("Lw_c3:")
    trace(a, 3)
    QC("s25", "s27")
    PC("s25", "s28")
    a(f"s_add_u32 s27, s27, {SQ}\ns_add_u32 s28, s28, {SL}\ns_cmp_eq_u32 s28, {3*SL}\ns_cselect_b32 s28, 0, s28\ns_cselect_b32 s27, 0, s27")
    trace(a, 4)
    a("s_cmp_lg_u32 s25, s54\ns_cbranch_scc1 Lw_pc_x")
    sflag_check(a, "Lw_pc", L_FI, L_FL)
    a("s_add_u32 s25, s25, 1\ns_cmp_lt_u32 s25, 16")
    a("s_waitcnt vmcnt(12)\ns_barrier")
    a("s_cbranch_scc1 Lw_cloop")
    a("s_waitcnt vmcnt(0)\ns_barrier")
    trace_out(a)
    stamp_out(a, True)
    a("s_endpgm")
    def events(L, done, evs):
        a(f"{L}:")
        for i, ev in enumerate(evs):
            if i + 1 < len(evs): a(f"s_cmp_lg_u32 s55, {i}\ns_cbranch_scc1 {L}{i+1}")
            a(f"s_mov_b32 s55, {i+1}")
            ev()
            a(f"s_branch {done}")
            if i + 1 < len(evs): a(f"{L}{i+1}:")

    a("Lw_ev:")
    a("s_cmp_lg_u32 s3, 0\ns_cbranch_scc1 Lw_evx")
    a("s_bitcmp1_b32 s25, 0\ns_cbranch_scc1 Lw_evc")
    a("s_add_u32 s26, s26, 2048\ns_add_u32 s54, s54, 1")
    sflag_sample(a)
    a("s_branch Lw_evdone")
    a("Lw_evc:")
    sflag_check(a, "Lw_pa", L_FI, L_FL)
    a("s_add_u32 s54, s54, 7\ns_cmp_gt_u32 s54, 48\ns_cselect_b32 s54, 255, s54")
    a("s_branch Lw_evdone")
    def b0():
        own_fx(a)
        flag_store(a, "s27", L_TMP, L_L16)
        a("s_mov_b32 s54, 52")
    def b1():
        a(f"s_lshl_b32 s26, s32, 13\ns_add_u32 s26, s26, {FX}\ns_mov_b32 s54, 55")
        flag_load(a, "s26", 32, L_FI, L_FL)
    def b2():
        flag_poll(a, "Lw_px", "s26", 32, L_FI, L_FL, loaded=True)
        a("s_mov_b32 s54, 255")
    events("Lw_evx", "Lw_evdone", [b0, b1, b2])

    def x1():
        flag_load(a, "s26", 16, L_FI, L_FL)
        a("s_mov_b32 s54, 16")
    def x2():
        stamp(a, 11)
        flag_poll(a, "Lw_pa0", "s26", 16, L_FI, L_FL, loaded=True)
        stamp(a, 3)
        a("s_mov_b32 s54, 255")
    def x3():
        flag_store(a, "s27", L_TMP, L_L16)
        stamp(a, 2)
        a("s_mov_b32 s54, 255")
    events("Lxl_ev", "Lxl_evdone", [x1, x2, x3])

    a("Ll_h:")
    for i in range(AH):
        a(f"s_waitcnt vmcnt({6*(AH-1-i)})\ns_barrier")
    stamp_out(a, True)
    a("s_endpgm")


def helper(a):
    a("s_and_b32 s32, s2, 7\ns_bfe_u32 s33, s2, 0x20003")
    BA = (4, 68)
    HQ, HS, HL = 132, 134, 135
    nt = " nt" if OPT.get("dq_nt", 1) else ""
    a("s_lshl_b32 s14, s32, 3\ns_add_u32 s14, s14, s4")
    a(f"s_mul_i32 s34, s14, {16*14336}\nv_lshrrev_b32 v1, 3, v0\nv_and_b32 v2, 7, v0")
    a(f"v_mul_u32_u24 v1, 14336, v1\nv_lshl_add_u32 v1, v2, 4, v1\nv_add_u32 v{HQ}, s34, v1\nv_add_u32 v{HQ+1}, {8*14336}, v{HQ}")
    a(f"s_lshr_b32 s34, s4, 2\ns_mul_i32 s34, s34, 7168\nv_lshl_add_u32 v{HS}, v2, 3, s34\nv_lshlrev_b32 v{HL}, 4, v0")
    CS = 24576 if OPT.get("skip1") else 16384
    if OPT.get("skip1"): skip1_adj(a, 140)
    else: a("v_mov_b32 v140, 0\nv_mov_b32 v141, 0")
    a(f"v_add_u32 v140, v140, v{HL}\nv_add_u32 v141, v141, v{HL}")
    a(f"s_mul_i32 s24, s32, {56*CS}\ns_mul_i32 s34, s4, {CS//8}\ns_add_u32 s24, s24, s34")
    def start(h):
        B = BA[h]
        a("s_add_u32 s15, s33, s23\ns_and_b32 s15, s15, 3\ns_lshl_b32 s14, s23, 2\ns_add_u32 s15, s15, s14\ns_xor_b32 s15, s15, s22\ns_add_u32 s23, s23, 1")
        a("s_lshl_b32 s25, s15, 8")
        if h == 0:
            a(f"s_cmp_ge_u32 s15, 56\ns_cselect_b32 s14, 0x40000000, 0\nv_or_b32 v{HQ}, s14, v{HQ}\nv_or_b32 v{HQ+1}, s14, v{HQ+1}")
        a(f"s_mul_i32 s14, s15, {CS}\ns_add_u32 s{20+h}, s24, s14\ns_lshl_b32 s14, s15, 7\nv_add_u32 v{B+5}, s14, v{HS}")
        for rg in range(2):
            for t in range(2):
                r = B + 32 + rg * 8 + t * 4
                a(f"buffer_load_dwordx4 v[{r}:{r+3}], v{HQ+rg}, s[16:19], s25 offen offset:{128*t}{nt}")
    def scales(h):
        B = BA[h]
        for t in range(2):
            a(f"ds_read_b64 v[{B+8+2*t}:{B+9+2*t}], v{B+5} offset:{64*t}")
            a(f"ds_read_b64 v[{B+12+2*t}:{B+13+2*t}], v{B+5} offset:{14336 + 64*t}")
    WSH = OPT.get("wsh", 2)
    a(f"s_mov_b32 s23, {WSH}\ns_and_b32 s22, s32, 4")
    a("s_min_u32 s14, s4, 6\ns_lshl_b32 s26, s14, 11\ns_mul_i32 s35, s32, 14336\ns_add_u32 s35, s35, s26\ns_mov_b32 m0, s26")
    get_args(a)
    for i, p in enumerate((sSC, sZE)):
        srd(a, 8, p, 16 * F * 2)
        for j in range(2):
            a(f"buffer_load_dwordx4 v{HL}, s[8:11], s35 offen offset:{j*1024} lds")
        if i == 0: a("s_add_u32 m0, s26, 14336")
    srd(a, 16, sQW, D * F * 4)
    start(0)
    start(1)
    srd(a, 8, sWS, SZ_WQ, WS_WQ)
    a(f"s_mul_i32 s27, s32, 56\ns_add_u32 s27, s27, s33\ns_lshl_b32 s27, s27, 8\ns_add_u32 s27, s27, {FA + (WSH + 1) * 1024}")
    get_nonce(a)
    if OPT.get("hx", 0) & 2:
        for i in range(5):
            flag_store(a, "s27", 136, HL)
            a("s_add_u32 s27, s27, 2048")
        a("s_branch Lh_skip")
    a("s_waitcnt vmcnt(8)\ns_barrier")
    scales(0)
    a("s_waitcnt vmcnt(4)")
    a("s_branch Lh_mid")
    a("Lh_loop:")
    for h in range(2):
        start(1 - h)
        scales(h)
        if h == 0:
            a("s_waitcnt vmcnt(6)")
        else:
            a(f"s_cmp_eq_u32 s23, {WSH + 3}\ns_cselect_b32 s14, 1, s4\ns_cmp_lg_u32 s14, 0")
            a("s_waitcnt vmcnt(6)\ns_barrier")
            a(f"s_cbranch_scc1 Lh_nf{h}")
            flag_store(a, "s27", 136, HL)
            a("s_add_u32 s27, s27, 2048")
            a(f"Lh_nf{h}:")
        if h == 0: a("Lh_mid:")
        a("s_waitcnt lgkmcnt(0)")
        a("\n".join(dq_unpack(BA[h])))
        for rg in range(2):
            a("\n".join(dq_rows(BA[h], rg, f"s{20+h}", 140 + rg)))
    a("s_cmp_lt_u32 s23, 15\ns_cbranch_scc1 Lh_loop")
    a("Lh_skip:")
    a("s_cmp_lg_u32 s4, 0")
    a("s_waitcnt vmcnt(0)\ns_barrier")
    a("s_cbranch_scc1 Lh_nf")
    flag_store(a, "s27", 136, HL)
    a("Lh_nf:")
    stamp(a, 5)
    R0, R1 = OPT.get("pf0", 14), OPT.get("pf1", 14)
    if R0 < R1:
        a("s_and_b32 s14, s32, 1\ns_lshl_b32 s14, s14, 2\ns_add_u32 s14, s14, s33\ns_lshl_b32 s14, s14, 3\ns_add_u32 s14, s14, s4")
        a(f"s_mul_i32 s14, s14, {4*7168}\ns_lshr_b32 s34, s32, 1\ns_mul_i32 s34, s34, 1792\ns_add_u32 s14, s14, s34\ns_add_u32 s14, s14, {R0*256*7168}")
        a(f"v_lshrrev_b32 v1, 4, v0\nv_mul_u32_u24 v1, 7168, v1\nv_and_b32 v2, 15, v0\nv_min_u32 v2, 13, v2\nv_lshl_add_u32 v1, v2, 7, v1")
        srd(a, 16, sV, F * F * 2)
        a(f"s_mov_b32 s23, {R1 - R0}")
        a("Lh_pf:")
        a("buffer_load_dword v2, v1, s[16:19], s14 offen")
        a(f"s_add_u32 s14, s14, {256*7168}\ns_sub_u32 s23, s23, 1\ns_cmp_lg_u32 s23, 0\ns_waitcnt vmcnt(0)\ns_cbranch_scc1 Lh_pf")
    stamp(a, 6)
    if OPT.get("hx", 0) & 1:
        own_fx(a)
        flag_store(a, "s27", 136, HL)
        a("s_endpgm")
    a("s_branch L_role")


def gen(opt):
    global OPT
    OPT = opt
    a = Asm()
    a(HDR.rstrip())
    a(f"; @launch grid=(256,1,1) block=(512,1,1) lds={LDS_BYTES}")
    a('.amdgcn_target "amdgcn-amd-amdhsa--gfx950"\n.text')
    a(f".globl {NAME}\n.p2align 8\n.type {NAME},@function\n{NAME}:")
    a("s_cmp_ge_u32 s2, 256\ns_cbranch_scc1 L_end")
    stamp(a, 0)
    a("s_load_dwordx16 s[36:51], s[0:1], 0")
    a(f"s_load_dwordx2 s[{sWS}:{sWS+1}], s[0:1], 64")
    a("v_lshrrev_b32 v1, 6, v0")
    a("v_and_b32 v0, 63, v0")
    a("v_readfirstlane_b32 s4, v1")
    a("s_bfe_u32 s6, s2, 0x20001\ns_bfe_u32 s34, s2, 0x30003\ns_lshl3_add_u32 s6, s6, s34")
    a("s_and_b32 s7, s2, 1\ns_lshr_b32 s34, s2, 6\ns_lshl2_add_u32 s7, s7, s34")
    a("s_and_b32 s3, s4, 3")
    a("s_cmp_ge_u32 s2, 224\ns_cselect_b32 s5, 1, 0\ns_cbranch_scc1 L_h")
    a("L_role:")
    a("s_cmp_lt_u32 s4, 4\ns_cbranch_scc1 L_c")
    loader(a)
    a("L_h:")
    helper(a)
    a("L_c:")
    compute(a)
    a("L_end:\ns_endpgm")
    a('.section .rodata,"a"\n.p2align 6')
    a(kd(NAME, 256, 256))
    return a.text()


if __name__ == "__main__":
    opt = dict(kv.split("=") for kv in sys.argv[2:])
    opt = {k: (int(v) if v.lstrip("-").isdigit() else v) for k, v in opt.items()}
    open(sys.argv[1], "w").write(gen(opt))
```

```python
import sys
from asm import Asm, kd

NAME = "standalone__weight_only_int_quip__prompt_kernel"
S, D, F = 2048, 1024, 3584
WS_FLAG = 0
FA, FX, FB, EPOCH, FA1 = 0, 128 << 10, 192 << 10, 252 << 10, 256 << 10
SZ_FLAG = 288 << 10
WS_WQ = 1 << 20
WS_XRF = 13 << 20
WS_WPF = 20 << 20
WS_STAMP = 64 << 20
SZ_W = D * F * 2
SZ_X = S * D * 2
SZ_WQ = 8 * 56 * 24576
SPIN_MAX = 1 << 15

HDR = """; Kernarg layout for this problem (72 bytes, ptrs only, base s[0:1]):
;
"""
sX, sQW, sSC, sZE, sU, sV, sOUT, sWS, sNONCE = 36, 38, 40, 42, 44, 46, 48, 30, 52

OPT = {}


def srd(a, d, b, nbytes, add=0):
    if add:
        a(f"s_add_u32 s{d}, s{b}, {add}")
        a(f"s_addc_u32 s{d+1}, s{b+1}, 0")
    else:
        a(f"s_mov_b32 s{d}, s{b}")
        a(f"s_mov_b32 s{d+1}, s{b+1}")
    a(f"s_mov_b32 s{d+2}, {nbytes}")
    a(f"s_mov_b32 s{d+3}, 0x20000")


def interleave(a, mf, others):
    for i, m in enumerate(mf):
        if isinstance(m, tuple):
            for p in m[0]:
                a(p)
            a(m[1])
        else:
            a(m)
        for o in others.get(i, []):
            a(o)


class Sched:
    def __init__(self, a):
        self.a, self.q = a, []
    def read(self, r):
        self.a(r[0]); self.q.append(r[1])
    def need(self, regs):
        idx = [i for i, d in enumerate(self.q) if d in regs]
        if idx:
            n = min(len(self.q) - 1 - idx[-1], 15)
            self.a(f"s_waitcnt lgkmcnt({n})")
            self.q = self.q[len(self.q) - n:] if n else []
    def drain(self, extra=""):
        self.a(f"s_waitcnt {extra}lgkmcnt(0)"); self.q = []
    def run(self, mf, reads=(), fill=None, every=1, group=1):
        reads = list(reads); nxt = 0
        for i, (m, A, B) in enumerate(mf):
            if i % group == 0:
                self.need({x for mm in mf[i:i + group] for x in mm[1:]})
            self.a(m)
            if reads and i >= nxt:
                k = next((k for k, r in enumerate(reads) if r[2] <= i), None)
                if k is not None:
                    self.read(reads.pop(k)); nxt = i + every
            for o in (fill or {}).get(i, []): self.a(o)
        for r in reads: self.read(r)


def chain(acc, A, B, rts, cs, zero=False):
    out = []
    for n, rt in enumerate(rts):
        for c in (cs if n % 2 == 0 else cs[::-1]):
            for ks in range(2):
                out.append((mfma(acc(rt, c), A(rt, ks), B(c, ks), zero and ks == 0), A(rt, ks), B(c, ks)))
    return out


NSTAMP = 12
def stamp(a, idx):
    if not OPT.get("stamp"): return
    a(f"s_memrealtime s[{60+2*idx}:{61+2*idx}]")
    if idx == 0:
        a("s_memtime s[86:87]")
        for i in range(1, NSTAMP): a(f"s_mov_b32 s{60+2*i}, 0")


def stamp_out(a, loader):
    if not OPT.get("stamp"): return
    a("s_mov_b64 exec, -1\ns_waitcnt vmcnt(0)")
    a(f"s_memrealtime s[84:85]\ns_memtime s[88:89]\ns_waitcnt lgkmcnt(0)")
    a("s_sub_u32 s88, s88, s86")
    srd(a, 92, sWS, 1 << 20, WS_STAMP)
    a(f"s_lshl_b32 s90, s2, 3\ns_add_u32 s90, s90, s3\ns_add_u32 s90, s90, {4 if loader else 0}\ns_lshl_b32 s90, s90, 6")
    a("v_mov_b32 v0, 0")
    a("s_getreg_b32 s89, hwreg(HW_REG_XCC_ID)\ns_getreg_b32 s91, hwreg(HW_REG_HW_ID)")
    vals = [f"s{60+2*i}" for i in range(NSTAMP + 1)] + ["s88", "s89", "s91"]
    for i, v in enumerate(vals):
        a(f"v_mov_b32 v1, {v}\nbuffer_store_dword v1, v0, s[92:95], s90 offen offset:{4*i}")


def trace(a, mode=1):
    if OPT.get("trace") != mode: return
    a("s_waitcnt lgkmcnt(0)\ns_mov_b32 m0, s25\nv_writelane_b32 v100, s96, m0")
    a("s_cmp_eq_u32 s3, 2\ns_cbranch_scc1 1f\ns_memrealtime s[96:97]\ns_branch 2f\n1:\ns_memtime s[96:97]\n2:")


def trace_out(a):
    if not OPT.get("trace"): return
    srd(a, 92, sWS, 1 << 20, WS_STAMP + (1 << 20))
    a(f"s_lshl_b32 s90, s2, 2\ns_add_u32 s90, s90, s3\ns_lshl_b32 s90, s90, 8\nv_lshlrev_b32 v1, 2, v0")
    a("buffer_store_dword v100, v1, s[92:95], s90 offen")


def mfma(acc, A, B, zero=False):
    C = "0" if zero else f"v[{acc}:{acc+3}]"
    return f"v_mfma_f32_16x16x32_bf16 v[{acc}:{acc+3}], v[{A}:{A+3}], v[{B}:{B+3}], {C}"


def flag_store(a, soff, vt, lane16):
    for i in range(4): a(f"v_mov_b32 v{vt+i}, s{sNONCE}")
    a("s_mov_b64 exec, 0xff")
    a(f"buffer_store_dwordx4 v[{vt}:{vt+3}], v{lane16}, s[56:59], {soff} offen sc1")
    a("s_mov_b64 exec, -1")


def flag_load(a, soff, n, vidx, vt):
    a(f"s_mov_b64 exec, {hex((1 << n) - 1)}")
    a(f"buffer_load_dword v{vt}, v{vidx}, s[56:59], {soff} offen sc1")
    a("s_mov_b64 exec, -1")


def flag_poll(a, L, soff, n, vidx, vt, loaded=False):
    a(f"s_mov_b32 s53, {SPIN_MAX}")
    if loaded: a(f"s_branch {L}_c")
    a(f"{L}:")
    flag_load(a, soff, n, vidx, vt)
    a("s_sub_u32 s53, s53, 1\ns_cmp_eq_u32 s53, 0")
    a(f"s_cbranch_scc1 {L}_x")
    a("s_waitcnt vmcnt(0)")
    a(f"{L}_c:")
    a(f"v_cmp_ne_u32 vcc, s{sNONCE}, v{vt}")
    a(f"s_and_b32 vcc_lo, vcc_lo, {hex((1 << n) - 1)}")
    a(f"s_cbranch_scc1 {L}")
    a(f"{L}_x:")


def sflag_sample(a):
    a(f"s_add_u32 s12, s{sWS}, s26\ns_addc_u32 s13, s{sWS+1}, 0")
    for q in range(4):
        a(f"s_load_dword s{98+q}, s[12:13], {WS_FLAG + q*256}")


def sflag_test(a):
    a("s_waitcnt lgkmcnt(0)")
    a(f"s_xor_b32 s14, s98, s{sNONCE}")
    for q in range(1, 4):
        a(f"s_xor_b32 s15, s{98+q}, s{sNONCE}\ns_or_b32 s14, s14, s15")


def sflag_check(a, L, vidx, vt):
    sflag_test(a)
    a(f"s_cbranch_scc0 {L}_x")
    flag_poll(a, L, "s26", 4, vidx, vt)


def touch_code(a, L, lo, hi, va, vd, lane="v0", sh=7, n=3, back=True):
    a(f"s_getpc_b64 s[12:13]\n{L}:")
    if back: a(f"s_sub_u32 s12, s12, {L}-{lo}\ns_subb_u32 s13, s13, 0")
    else: a(f"s_add_u32 s12, s12, {lo}-{L}\ns_addc_u32 s13, s13, 0")
    a(f"v_lshlrev_b32 v{va}, {sh}, {lane}")
    for i in range(n):
        a(f"v_min_u32 v{va+1}, {hi}-{lo}-4, v{va}\nglobal_load_dword v{vd}, v{va+1}, s[12:13]\nv_add_u32 v{va}, 8192, v{va}")


def get_args(a):
    a("s_waitcnt lgkmcnt(0)")
    a(f"s_load_dword s{sNONCE}, s[{sWS}:{sWS+1}], {WS_FLAG + EPOCH}")


def get_nonce(a):
    srd(a, 56, sWS, SZ_FLAG, WS_FLAG)
    a(f"s_waitcnt lgkmcnt(0)\ns_mul_i32 s{sNONCE}, s{sNONCE}, 1664525\ns_add_u32 s{sNONCE}, s{sNONCE}, 1013904223")


def dq_addr(a, B, nrg, wreg, sout):
    sh = {2: 3, 4: 2}[nrg]
    a(f"s_lshl_b32 s14, s32, {sh}\ns_add_u32 s14, s14, {wreg}")
    a(f"s_mul_i32 s34, s14, {nrg*8*14336}\ns_lshl_b32 s35, s15, 8\ns_add_u32 s34, s34, s35")
    a(f"s_lshr_b32 s14, s14, {sh-1}\ns_mul_i32 s35, s14, 7168\ns_lshl_b32 s14, s15, 7\ns_add_u32 s35, s35, s14")
    a(f"v_lshrrev_b32 v{B}, 3, v0\nv_and_b32 v{B+5}, 7, v0")
    a(f"v_mul_u32_u24 v{B}, 14336, v{B}\nv_lshl_add_u32 v{B}, v{B+5}, 4, v{B}\nv_add_u32 v{B}, s34, v{B}")
    for rg in range(1, nrg):
        a(f"v_add_u32 v{B+rg}, {rg*8*14336}, v{B}")
    a(f"v_lshl_add_u32 v{B+5}, v{B+5}, 3, s35\nv_lshlrev_b32 v{B+4}, 4, v0")
    a(f"s_mul_i32 {sout}, s32, 56\ns_add_u32 {sout}, {sout}, s15\ns_lshl_b32 {sout}, {sout}, {sh}\ns_add_u32 {sout}, {sout}, {wreg}\ns_lshl_b32 {sout}, {sout}, {14-sh}")


def dq_issue(a, B, rgs, scales=True):
    nt = " nt" if OPT.get("dq_nt", 1) else ""
    if scales:
        for t in range(2):
            a(f"global_load_dwordx2 v[{B+8+2*t}:{B+9+2*t}], v{B+5}, s[{sSC}:{sSC+1}] offset:{64*t}")
            a(f"global_load_dwordx2 v[{B+12+2*t}:{B+13+2*t}], v{B+5}, s[{sZE}:{sZE+1}] offset:{64*t}")
    for rg in rgs:
        for t in range(2):
            r = B + 32 + rg * 8 + t * 4
            a(f"global_load_dwordx4 v[{r}:{r+3}], v{B+rg}, s[{sQW}:{sQW+1}] offset:{128*t}{nt}")


def dq_unpack(B):
    o = []
    for j in range(4):
        o += [f"v_lshlrev_b32 v{B+16+2*j}, 16, v{B+8+j}", f"v_and_b32 v{B+17+2*j}, 0xffff0000, v{B+8+j}"]
        o += [f"v_lshlrev_b32 v{B+24+2*j}, 16, v{B+12+j}", f"v_and_b32 v{B+25+2*j}, 0xffff0000, v{B+12+j}"]
    return o


def dq_rows(B, rg, sout, vaddr=None):
    r = B + 32 + rg * 8
    o = [f"v_cvt_f32_i32 v{r+e}, v{r+e}" for e in range(8)]
    o += [f"v_sub_f32 v{r+e}, v{r+e}, v{B+24+e}" for e in range(8)]
    o += [f"v_cvt_pk_bf16_f32 v{B+8+p}, v{r+2*p}, v{r+2*p+1}" for p in range(4)]
    for p in range(4):
        o += [f"v_lshlrev_b32 v{r+2*p}, 16, v{B+8+p}", f"v_and_b32 v{r+2*p+1}, 0xffff0000, v{B+8+p}"]
    o += [f"v_mul_f32 v{r+e}, v{r+e}, v{B+16+e}" for e in range(8)]
    o += [f"v_cvt_pk_bf16_f32 v{r+p}, v{r+2*p}, v{r+2*p+1}" for p in range(4)]
    o.append(f"buffer_store_dwordx4 v[{r}:{r+3}], v{vaddr or B+4}, s[8:11], {sout} offen offset:{rg*1024} sc1")
    return o


def dq_now(a, B, nrg, sout):
    a(f"s_waitcnt vmcnt({2*nrg})")
    a("\n".join(dq_unpack(B)))
    for rg in range(nrg):
        a(f"s_waitcnt vmcnt({2*nrg - 2 - 2*rg + rg})")
        a("\n".join(dq_rows(B, rg, sout)))


SL = 16384 + 16 * 1056
NSL = 4
CQ0 = 3 * SL
SQ = 16 * 1040
LDS_BYTES = max(NSL * SL, CQ0 + 3 * SQ)

B_FR = 64
B_PA = 230
B_TA = 234
V_L16 = 248
V_T = 240
def bP(rt, ks, buf=0): return B_FR + buf * 64 + (rt * 2 + ks) * 4
def bT(c, ks): return B_FR + 32 + (c * 2 + ks) * 4
def b_mf(cs, buf=0):
    if not OPT.get("cmaj", 1): return chain(lambda rt, c: (rt * 4 + c) * 4, bP, bT, range(4), cs)
    return [(mfma((rt * 4 + c) * 4, bP(rt, ks, buf), bT(c, ks)), bP(rt, ks, buf), bT(c, ks))
            for c in cs for rt in (range(4) if c % 2 == 0 else range(3, -1, -1)) for ks in range(2)]


def b_rdP(slot, rt, at=0):
    b = slot & 1 if OPT.get("cmaj", 1) else 0
    return [(f"ds_read_b128 v[{bP(rt,ks,b)}:{bP(rt,ks,b)+3}], v{B_PA + (slot//2)*2 + ks} offset:{(slot%2)*SL + rt*2048}", bP(rt, ks, b), at) for ks in range(2)]


def b_rdT(slot, c):
    return [(f"ds_read_b64_tr_b16 v[{bT(c,ks)+t*2}:{bT(c,ks)+t*2+1}], v{B_TA + slot//2} offset:{(slot%2)*SL + 16384 + ks*8448 + t*512 + c*32}", bT(c, ks), 0)
            for ks in range(2) for t in range(2)]


def row_read_base(a, dst, t0, wshift):
    a(f"v_and_b32 v{t0}, 15, v0\nv_lshrrev_b32 v{t0+1}, 4, v0")
    a(f"v_lshrrev_b32 v{t0+2}, 1, v{t0}\nv_xor_b32 v{t0+2}, v{t0+2}, v{t0+1}\nv_lshlrev_b32 v{t0+2}, 4, v{t0+2}\nv_lshl_add_u32 v{t0+2}, v{t0}, 7, v{t0+2}")
    a(f"s_lshr_b32 s14, s3, 1\ns_lshl_b32 s14, s14, {wshift}\nv_add_u32 v{dst}, s14, v{t0+2}\nv_xor_b32 v{dst+1}, 64, v{dst}")


def tr_read_base(a, dst, t0):
    a(f"v_bfe_u32 v{t0}, v0, 2, 3\nv_mul_u32_u24 v{t0}, 1056, v{t0}\nv_lshrrev_b32 v{t0+1}, 5, v0\nv_lshl_add_u32 v{t0}, v{t0+1}, 8, v{t0}")
    a(f"v_and_b32 v{t0+1}, 3, v0\nv_lshl_add_u32 v{t0}, v{t0+1}, 3, v{t0}\ns_and_b32 s14, s3, 1\ns_lshl_b32 s14, s14, 7")
    a(f"v_add_u32 v{dst}, s14, v{t0}")


C_FR = 128
C_PA = 224
C_QA = 227
C_WA = 228
C_SA = 229


def cP(rt, ks): return C_FR + (rt * 2 + ks) * 4
def cQ(c, ks): return C_FR + 32 + (c * 2 + ks) * 4
def c_mf(cs, rts=range(4), zero=False, preg=None):
    return chain(lambda rt, c: (rt * 8 + c) * 4, preg or cP, cQ, rts, cs, zero)


def c_rdP(slot, rt, at=0, dst=None):
    d = rt if dst is None else dst
    return [(f"ds_read_b128 v[{cP(d,ks)}:{cP(d,ks)+3}], v{C_PA+slot} offset:{ks*16384 + rt*1024}", cP(d, ks), at) for ks in range(2)]


def c_rdQ(slot, cs):
    return [(f"ds_read_b128 v[{cQ(c,ks)}:{cQ(c,ks)+3}], v{C_QA} offset:{slot*SQ + ks*8320 + c*16}", cQ(c, ks), 0) for c in cs for ks in range(2)]


def spread(rd, every=2):
    return {every * i: [r] for i, r in enumerate(rd)}


X_ACC = 136
X_FR = 168
X_PA = 216
X_TA = 220


def x_reads(slot, ks, buf):
    b = X_FR + buf * 24
    P = [f"ds_read_b128 v[{b+rt*4}:{b+rt*4+3}], v{X_PA + (slot//2)*2 + ks} offset:{(slot%2)*SL + rt*2048}" for rt in range(4)]
    T = [f"ds_read_b64_tr_b16 v[{b+16+c*4+t*2}:{b+16+c*4+t*2+1}], v{X_TA + slot//2} offset:{(slot%2)*SL + 16384 + ks*8448 + t*512 + c*32}"
         for c in range(2) for t in range(2)]
    return [T[0], T[1], P[0], T[2], T[3], P[1], P[2], P[3]]


def x_mfmas(buf, waits):
    if OPT.get("xnomf"): return ["s_nop 0"] * 8
    b = X_FR + buf * 24
    out = []
    for n in range(8):
        rt, c = n >> 1, (n ^ (n >> 1)) & 1
        m = mfma(X_ACC + (rt * 2 + c) * 4, b + 16 + c * 4, b + rt * 4)
        out.append(([f"s_waitcnt lgkmcnt({waits[n]})"], m) if n in waits else m)
    return out


def x_epilogue(a):
    for rt in range(4):
        lo = X_ACC + rt * 8
        t = V_T + (rt & 1) * 4
        for p in range(4):
            a(f"v_cvt_pk_bf16_f32 v{t+p}, v{lo+2*p}, v{lo+2*p+1}")
        a(f"buffer_store_dwordx4 v[{t}:{t+3}], v{V_L16}, s[16:19], s24 offen offset:{rt*1024} sc1")


def roles(a):
    a("s_and_b32 s32, s2, 1\ns_bfe_u32 s33, s2, 0x20003\ns_lshl2_add_u32 s32, s32, s33")
    a("s_bfe_u32 s14, s2, 0x20001\ns_mul_i32 s35, s14, 7\ns_lshr_b32 s34, s2, 5\ns_add_u32 s33, s35, s34")
    a("s_add_u32 s35, s35, 2\ns_lshr_b32 s35, s35, 2\ns_add_u32 s54, s34, s35\ns_add_u32 s35, s33, 2\ns_lshr_b32 s35, s35, 2\ns_sub_u32 s54, s54, s35")
    a("s_cmp_ge_u32 s54, 4\ns_cselect_b32 s54, 16, s54\ns_and_b32 s35, s33, 3\ns_cmp_eq_u32 s35, 1\ns_cselect_b32 s54, 16, s54")
    a("s_lshl2_add_u32 s54, s14, s54")
    if OPT.get("nodq"): a("s_mov_b32 s54, 16")


def own_fx(a):
    a(f"s_lshl_b32 s27, s6, 3\ns_add_u32 s27, s27, s7\ns_lshl_b32 s27, s27, 8\ns_add_u32 s27, s27, {FX}")


def compute(a):
    DQ = 64
    roles(a)
    WSH = OPT.get("wsh", 2)
    if WSH == 4:
        a("s_and_b32 s15, s32, 4\ns_xor_b32 s15, s15, s54")
        dq_addr(a, DQ, 4, "s3", "s28")
    else:
        a("s_lshr_b32 s15, s54, 1\ns_and_b32 s29, s54, 1\ns_lshl_b32 s29, s29, 2\ns_add_u32 s29, s29, s3")
        dq_addr(a, DQ, 2, "s29", "s28")
    get_args(a)
    a("s_cmp_ge_u32 s54, 16\ns_cbranch_scc1 Lc_nodq0")
    dq_issue(a, DQ, range(WSH))
    a("Lc_nodq0:")
    if OPT.get("tlb"):
        a("s_cmp_lg_u32 s3, 3\ns_cbranch_scc1 Lc_ntlb")
        for p, sz in ((sV, F * F * 2), (sOUT, S * F * 2), (sWS, 28 << 20))[:OPT["tlb"]]:
            a(f"v_mul_u32_u24 v250, {sz // 64 // 128 * 128}, v0\nglobal_load_dword v251, v250, s[{p}:{p+1}]")
        a("s_waitcnt vmcnt(0)")
        a("Lc_ntlb:")
    srd(a, 8, sWS, SZ_WQ, WS_WQ)
    a(f"v_lshlrev_b32 v{V_L16}, 4, v0")
    row_read_base(a, B_PA, V_T, 13)
    a(f"v_mov_b32 v{X_PA}, v{V_T+2}\nv_xor_b32 v{X_PA+1}, 64, v{X_PA}")
    tr_read_base(a, B_TA, V_T)
    a(f"s_lshl_b32 s14, s3, 6\nv_add_u32 v{X_TA}, s14, v{V_T}")
    for r_ in (B_PA, X_PA):
        a(f"v_add_u32 v{r_+2}, {2*SL}, v{r_}\nv_add_u32 v{r_+3}, {2*SL}, v{r_+1}")
    for r_ in (B_TA, X_TA):
        a(f"v_add_u32 v{r_+1}, {2*SL}, v{r_}")
    a(f"s_lshl_b32 s14, s3, 12\nv_add_u32 v{C_PA}, s14, v{V_L16}\nv_add_u32 v{C_PA+1}, {SL}, v{C_PA}\nv_add_u32 v{C_PA+2}, {2*SL}, v{C_PA}")
    a(f"v_bfe_u32 v{V_T}, v0, 1, 3\nv_mul_u32_u24 v{V_T}, 1040, v{V_T}\nv_lshrrev_b32 v{V_T+1}, 4, v0\nv_lshl_add_u32 v{V_T}, v{V_T+1}, 8, v{V_T}")
    a(f"v_and_b32 v{V_T+2}, 1, v0\nv_lshl_add_u32 v{V_T}, v{V_T+2}, 7, v{V_T}\nv_add_u32 v{C_QA}, {CQ0}, v{V_T}")
    a(f"s_lshr_b32 s14, s3, 1\ns_mul_i32 s14, s14, {SQ}\ns_and_b32 s34, s3, 1\ns_mul_i32 s34, s34, {4*1040}\ns_add_u32 s14, s14, s34\ns_add_u32 s14, s14, {CQ0}")
    a(f"v_add_u32 v{C_WA}, s14, v{V_L16}")
    col_lane(a, V_T + 2, V_T + 3, OPT.get("mix", 0))
    a(f"v_mul_u32_u24 v{V_T+1}, {4*7168}, v{V_T+1}\nv_add_u32 v{C_SA}, v{V_T+2}, v{V_T+1}")
    for i in list(range(64)) + list(range(X_ACC, X_ACC + 32)):
        a(f"v_mov_b32 v{i}, 0")
    a("s_lshr_b32 s24, s6, 2\ns_lshl_b32 s24, s24, 5\ns_lshl_b32 s34, s7, 2\ns_add_u32 s24, s24, s34\ns_add_u32 s24, s24, s3")
    a("s_lshl_b32 s24, s24, 2\ns_and_b32 s34, s6, 3\ns_add_u32 s24, s24, s34\ns_lshl_b32 s24, s24, 12")
    srd(a, 16, sWS, SZ_X, WS_XRF)
    get_nonce(a)
    a("s_cmp_ge_u32 s54, 16\ns_cbranch_scc1 Lc_nodq1")
    dq_now(a, DQ, WSH, "s28")
    a("Lc_nodq1:")
    stamp(a, 1)
    XW = {0: 5, 1: 4, 2: 4, 4: 5, 6: 6}
    a("s_mov_b32 s23, 4\ns_barrier")
    stamp(a, 9)
    for r in x_reads(0, 0, 0): a(r)
    a("s_branch Lx_mid")
    a("Lx_loop:")
    for s in range(NSL):
        a("s_barrier")
        interleave(a, x_mfmas(1, {}), spread(x_reads(s, 0, 0), 1))
        if s == 0: a("Lx_mid:")
        if OPT.get("xfront", 1):
            rd = x_reads(s, 1, 1)
            interleave(a, x_mfmas(0, {0: 5, 1: 5, 2: 6, 4: 9, 6: 8}), {i: rd[2*i:2*i+2] for i in range(4)})
        else:
            interleave(a, x_mfmas(0, XW), spread(x_reads(s, 1, 1), 1))
        XACK = OPT.get("xack", 3)
        if s == XACK - 5: a("s_cmp_eq_u32 s23, 4\ns_cbranch_scc1 Lx_na\ns_waitcnt vmcnt(0)\nLx_na:")
        if s == NSL - 1:
            a("s_sub_u32 s23, s23, 1\ns_cmp_lg_u32 s23, 0")
        a("s_waitcnt vmcnt(0) lgkmcnt(0)" if s == XACK - 1 else "s_waitcnt lgkmcnt(0)")
    a("s_cbranch_scc1 Lx_loop")
    stamp(a, 10)
    a("s_cmp_lg_u32 s5, 0\ns_cbranch_scc1 Lc_h")
    a("s_barrier")
    stamp(a, 2)
    LO, HI = [0, 1], [2, 3]
    sc = Sched(a)
    CM = OPT.get("cmaj", 1)
    def b_h1(s):
        if CM: return b_rdT(s, 0) + b_rdP(s, 0) + b_rdP(s, 1) + b_rdP(s, 2) + b_rdP(s, 3) + b_rdT(s, 1)[:2]
        return b_rdT(s, 0) + b_rdP(s, 0, 3) + b_rdT(s, 1) + b_rdP(s, 1, 7) + b_rdP(s, 2, 11)
    def b_h2(s):
        return (b_rdT(s, 1)[2:] if CM else b_rdP(s, 3)) + b_rdT(s, 2) + b_rdT(s, 3)
    rd = b_h1(0)
    interleave(a, x_mfmas(1, {}), spread([r[0] for r in rd[:8]], 1))
    for r in rd[8:]: a(r[0])
    a(f"s_lshl_b32 s25, s32, 2\ns_add_u32 s25, s25, s3\ns_mov_b32 s23, {56 // NSL}")
    x_epilogue(a)
    a(f"s_lshr_b32 s34, s3, 1\ns_lshl_b32 s24, s32, 1\ns_add_u32 s24, s24, s34\ns_mul_i32 s24, s24, {2*224*1024}")
    a("s_and_b32 s34, s3, 1\ns_lshl_b32 s35, s33, 1\ns_add_u32 s34, s34, s35\ns_lshl_b32 s34, s34, 12\ns_add_u32 s24, s24, s34")
    srd(a, 16, sWS, SZ_W, WS_WPF)
    a(f"s_add_u32 s26, s24, {224*1024}")
    a("s_waitcnt lgkmcnt(0)\ns_branch Lb_mid")
    a("Lb_loop:")
    for s in range(NSL):
        a("s_barrier")
        sc.run(b_mf(HI, (s - 1) & 1), b_h1(s), group=4)
        if s == 0: a("Lb_mid:")
        fill = {13: ["s_sub_u32 s23, s23, 1"], 14: ["s_cmp_lg_u32 s23, 0"]} if s == NSL - 1 else {}
        sc.run(b_mf(LO, s & 1), b_h2(s), fill, group=4)
        sc.drain("vmcnt(0) " if s == NSL - 1 else "")
    a("s_cbranch_scc1 Lb_loop")
    a("s_barrier")
    stamp(a, 3)
    WT = 160
    def w_out(pair, o):
        lo, hi = ((2 * pair) * 4 + o) * 4, ((2 * pair + 1) * 4 + o) * 4
        t = WT + (pair * 4 + o) * 4
        return [f"v_cvt_pk_bf16_f32 v{t}, v{lo}, v{lo+1}", f"v_cvt_pk_bf16_f32 v{t+1}, v{lo+2}, v{lo+3}",
                f"v_cvt_pk_bf16_f32 v{t+2}, v{hi}, v{hi+1}", f"v_cvt_pk_bf16_f32 v{t+3}, v{hi+2}, v{hi+3}",
                f"buffer_store_dwordx4 v[{t}:{t+3}], v{V_L16}, s[16:19], s{24+2*pair} offen offset:{o*1024} sc1"]
    def w_lds(pair, o):
        t = WT + (pair * 4 + o) * 4
        return f"ds_write_b128 v{C_WA}, v[{t}:{t+3}] offset:{pair*8320 + o*1040}"
    fill = {}
    for n, (pair, o) in enumerate(((0, 0), (1, 0), (1, 1), (0, 1)) if CM else ((0, 0), (0, 1), (1, 0), (1, 1))):
        w = w_out(pair, o)
        fill[4 * n] = w[0:2]; fill[4 * n + 1] = w[2:4]; fill[4 * n + 2] = w[4:5]; fill[4 * n + 3] = [w_lds(pair, o)]
    sc.run(b_mf(HI, 1), fill=fill)
    rest = ((0, 2), (1, 2), (1, 3), (0, 3)) if CM else ((0, 2), (0, 3), (1, 3), (1, 2))
    for pair, o in rest:
        a("\n".join(w_out(pair, o)))
    for pair, o in rest:
        a(w_lds(pair, o))
    srd(a, 16, sOUT, S * F * 2)
    a(f"s_lshl_b32 s34, s33, 8\ns_mul_i32 s24, s25, {64*7168}\ns_add_u32 s24, s24, s34")
    a("s_waitcnt lgkmcnt(0)")
    stamp(a, 4)
    a("; ---- phase C")
    LO, HI = [0, 1, 2, 3], [4, 5, 6, 7]
    def c_first(slot):
        return c_rdP(slot, 0) + c_rdQ(slot, LO) + c_rdP(slot, 1) + c_rdP(slot, 2)
    a("s_barrier")
    for r in c_first(0): sc.read(r)
    a("s_mov_b32 s23, 4")
    z = [f"v_mov_b32 v{(rt*8+c)*4+i}, 0" for rt in range(4) for c in HI for i in range(4)]
    sc.run(c_mf(LO, zero=True), c_rdP(0, 3) + c_rdQ(0, HI), {10 + i: z[3*i:3*i+3] for i in range(22)}, group=2)
    sc.drain("vmcnt(0) ")
    stamp(a, 5)
    EB = OPT.get("eb", 2)
    if EB: a("s_barrier")
    a("Lc_loop:")
    for s in (1, 2, 0):
        if not EB:
            if s == 2: a("s_cmp_eq_u32 s23, 4\ns_cbranch_scc1 Lc_peel")
            a("s_barrier")
        sc.run(c_mf(HI), c_rdQ(s, LO[:2]) + c_rdP(s, 0, 7) + c_rdQ(s, LO[2:]) + c_rdP(s, 1, 15) + c_rdP(s, 2, 23), every=2, group=8)
        if s == 2: a("Lc_mid:")
        fill = {21: ["s_sub_u32 s23, s23, 1"], 23: ["s_cmp_lg_u32 s23, 0"]} if s == 0 else {}
        if EB:
            fill[30 - EB] = ["s_waitcnt lgkmcnt(0)"]
            fill[31 - EB] = ["s_barrier"]
            if s == 1:
                fill[23] = ["s_cmp_eq_u32 s23, 4"]
                fill[31 - EB] = ["s_cbranch_scc1 Lc_peel", "s_barrier"]
        sc.run(c_mf(LO), c_rdP(s, 3) + c_rdQ(s, HI), fill, every=2, group=8)
        if EB: sc.q = []
        else: sc.drain()
    a("s_cbranch_scc1 Lc_loop")
    a("Lc_tail:")
    ynt = {0: "", 1: " nt", 2: " sc1", 3: " sc0 sc1"}[OPT.get("y_nt", 2)]

    def row_out(rt, r, t):
        o = []
        for p in range(4):
            o.append(f"v_cvt_pk_bf16_f32 v{t+p}, v{(rt*8+2*p)*4+r}, v{(rt*8+2*p+1)*4+r}")
        o.append(f"buffer_store_dwordx4 v[{t}:{t+3}], v{C_SA}, s[16:19], s24 offen{ynt}")
        o.append(f"s_add_u32 s24, s24, {7168 if r < 3 else 13*7168}")
        return o
    def u_slot(n): return (13 + n % 3) % 3
    def u_rdP(n, at=(0, 0)): return [r for k in range(2) for r in c_rdP(u_slot(n), 2 * (n // 3) + k, at[k], 2 * (n & 1) + k)]
    def u_mf(n, cs, rts=None):
        h = n // 3
        return c_mf(cs, rts or (2 * h, 2 * h + 1), preg=lambda rt, ks: cP(2 * (n & 1) + (rt & 1), ks))
    if not EB: a("s_barrier")
    sc.run(c_mf(HI), c_rdQ(u_slot(0), LO) + u_rdP(0, (7, 15)), every=2, group=8)
    outs = [row_out(rt, r, V_T + ((rt * 4 + r) & 1) * 4) for rt in range(4) for r in range(4)]
    def put(fill, pos, q):
        o = outs[q]
        fill[pos] = o[0:2]; fill[pos + 1] = o[2:4]; fill[pos + 2] = o[4:6]
    for n in range(5):
        f1, f2 = {}, {}
        if n >= 3:
            put(f1, 9, 3 * (n - 3)); put(f1, 12, 3 * (n - 3) + 1); put(f2, 12, 3 * (n - 3) + 2)
        sc.run(u_mf(n, LO), c_rdQ(u_slot(n), HI), f1, group=4)
        if n < 2: a("s_barrier")
        sc.run(u_mf(n, HI), u_rdP(n + 1)[:2] + c_rdQ(u_slot(n + 1), LO) + u_rdP(n + 1)[2:], f2, group=4)
    f1, f2 = {}, {}
    put(f1, 9, 6); put(f1, 12, 7)
    sc.run(u_mf(5, LO + HI, (2,)), c_rdQ(u_slot(5), HI), f1, group=2)
    stamp(a, 7)
    put(f2, 7, 8); put(f2, 10, 9); put(f2, 13, 10)
    sc.run(u_mf(5, (LO + HI)[::-1], (3,)), fill=f2)
    a("\n".join(outs[11]))
    a("s_nop 1")
    for q in range(12, 16):
        a("\n".join(row_out(3, q - 12, C_FR + (q & 3) * 4)))
    stamp(a, 8)
    a("s_or_b32 s14, s2, s3\ns_cmp_lg_u32 s14, 0\ns_cbranch_scc1 Lc_end")
    a(f"s_mov_b32 s14, {EPOCH}")
    flag_store(a, "s14", V_T, V_L16)
    a("Lc_end:")
    stamp_out(a, False)
    a("s_endpgm")
    a("Lc_peel:")
    sc.q = []
    sc.run((c_mf(LO)[32 - EB:] if EB else []) + c_mf(HI))
    a("s_barrier")
    stamp(a, 6)
    for r in c_first(2): a(r[0])
    a("s_branch Lc_mid")
    a("Lc_h:")
    interleave(a, x_mfmas(1, {}), {})
    a("s_nop 7")
    x_epilogue(a)
    a("s_waitcnt vmcnt(0)\ns_barrier")
    a("s_cmp_lg_u32 s3, 0\ns_cbranch_scc1 Lc_end")
    if OPT.get("warm", 0) & 2: touch_code(a, "L_tc1", NAME, "L_end", 250, 252, f"v{V_L16}", 3)
    own_fx(a)
    flag_store(a, "s27", V_T, V_L16)
    a("s_branch Lc_end")


L_T = 68
L_P = 72
L_TP = 76
L_TT = 77
L_Q = 78
L_L16 = 82
L_FI = 83
L_TMP = 84
L_FL = 92
L_CP = 93
L_CQ = 94
L_SP = 95


def rot_table(a, n, W, phi, psi, v, pw=0):
    lg = W.bit_length() - 1
    wmin = OPT.get("wmin", 1)
    a(f"s_add_u32 s14, {psi}, {n - wmin}\ns_lshr_b32 s14, s14, {lg}")
    a(f"v_add_u32 v{v+3}, {psi}, v0\nv_lshrrev_b32 v{v+3}, {lg}, v{v+3}\nv_min_u32 v{v+3}, s14, v{v+3}")
    a(f"v_cmp_eq_u32 vcc, s14, v{v+3}")
    a(f"v_lshlrev_b32 v{v}, {lg}, v{v+3}\nv_subrev_u32 v{v}, {psi}, v{v}")
    a(f"v_add_u32 v{v+1}, {W}, v{v}\nv_mov_b32 v{v+2}, {n}\nv_cndmask_b32 v{v+1}, v{v+1}, v{v+2}, vcc")
    a(f"v_max_i32 v{v}, 0, v{v}\nv_sub_u32 v{v+1}, v{v+1}, v{v}")
    a(f"v_mul_u32_u24 v{v+3}, {pw}, v{v+3}")
    a(f"v_add_u32 v{v+3}, {phi}, v{v+3}\nv_and_b32 v{v+3}, {W-1}, v{v+3}\nv_sub_u32 v{v+2}, v0, v{v}\nv_add_u32 v{v+2}, v{v+3}, v{v+2}")
    for i in range(W - 1):
        a(f"v_sub_u32 v{v+3}, v{v+2}, v{v+1}\nv_min_u32 v{v+2}, v{v+2}, v{v+3}")
    a(f"v_add_u32 v{v}, v{v}, v{v+2}")


def lead_table(a, n, psi, v):
    a(f"v_add_u32 v{v}, {psi}, v0\nv_and_b32 v{v+1}, 3, v{v}\nv_min_u32 v{v+1}, v{v+1}, v0\nv_cmp_eq_u32 vcc, 0, v{v+1}")
    a(f"v_or_b32 v{v}, 3, v{v}\nv_subrev_u32 v{v}, {psi}, v{v}\nv_min_u32 v{v}, {n-1}, v{v}\nv_add_u32 v{v+1}, -1, v0")
    a(f"v_cndmask_b32 v{v}, v{v+1}, v{v}, vcc")


def col_base(a, dst, tile, mix):
    if mix: a(f"s_lshr_b32 {dst}, {tile}, 2\ns_lshl_b32 {dst}, {dst}, 2\ns_add_u32 {dst}, {dst}, {tile}\ns_lshl_b32 {dst}, {dst}, 7")
    else: a(f"s_lshl_b32 {dst}, {tile}, 8")


def col_lane(a, dst, tmp, mix):
    a(f"v_and_b32 v{dst}, 15, v0\nv_lshlrev_b32 v{dst}, 4, v{dst}")
    if mix: a(f"v_and_b32 v{tmp}, 8, v0\nv_mul_u32_u24 v{tmp}, 48, v{tmp}\nv_add_u32 v{dst}, v{dst}, v{tmp}")


def t_voffs(a, t_row, natural, L_T=L_T, mix=0):
    t = L_TMP
    a(f"v_lshrrev_b32 v{t}, 4, v0\nv_and_b32 v{t+1}, 1, v{t}\nv_lshrrev_b32 v{t}, 1, v{t}")
    if natural:
        a(f"v_lshlrev_b32 v{t+1}, 4, v{t+1}\nv_lshl_add_u32 v{t}, v{t}, 2, v{t+1}")
    else:
        a(f"v_lshlrev_b32 v{t+1}, 3, v{t+1}\nv_lshl_add_u32 v{t}, v{t}, 5, v{t+1}")
    col_lane(a, t + 1, t + 2, mix)
    a(f"v_mul_u32_u24 v{t}, {t_row}, v{t}\nv_add_u32 v{L_T}, v{t+1}, v{t}")
    for j in range(1, 4):
        a(f"v_add_u32 v{L_T+j}, {j*(t_row-1056)}, v{L_T}")


def p_voffs(a, p_row, L_P=L_P, n=4):
    t = L_TMP
    a(f"v_lshrrev_b32 v{t}, 3, v0\nv_mul_u32_u24 v{t}, {p_row}, v{t}\nv_lshrrev_b32 v{t+1}, 4, v0\nv_and_b32 v{t+2}, 7, v0\nv_xor_b32 v{t+1}, v{t+1}, v{t+2}")
    a(f"v_lshl_add_u32 v{L_P}, v{t+1}, 4, v{t}\nv_xor_b32 v{L_P+1}, 64, v{L_P}")
    d = 8 * p_row - 1024
    if n == 4: a(f"v_add_u32 v{L_P+2}, {2*d}, v{L_P}\nv_add_u32 v{L_P+3}, {3*d}, v{L_P+1}")
    a(f"v_add_u32 v{L_P+1}, {d}, v{L_P+1}")


def skip1_adj(a, v):
    a(f"v_lshrrev_b32 v{v+1}, 4, v0\nv_min_u32 v{v}, 1, v{v+1}\nv_lshlrev_b32 v{v}, 8, v{v}")
    a(f"v_add_u32 v{v+1}, 9, v{v+1}\nv_lshrrev_b32 v{v+1}, 2, v{v+1}\nv_lshlrev_b32 v{v+1}, 8, v{v+1}")


def loader(a):
    t = L_TMP + 4
    XT, XP, XTP, XTT = 4, 8, 12, 13
    AH = OPT.get("ah", 3)
    XS = OPT.get("xs", 97)
    if XS == 98: a("s_and_b32 s34, s2, 1\ns_bfe_u32 s15, s2, 0x20001\ns_xor_b32 s34, s34, s15\ns_lshl_b32 s34, s34, 2")
    elif XS == 97: a("s_lshl_b32 s34, s2, 2")
    elif XS == 99: a("s_and_b32 s34, s2, 1\ns_bfe_u32 s15, s2, 0x20001\ns_lshl1_add_u32 s34, s34, s15\ns_lshl_b32 s34, s34, 2")
    else: a(f"s_mul_i32 s34, s2, {XS}")
    a("s_add_u32 s15, s6, s7\ns_and_b32 s15, s15, 3")
    if OPT.get("lead", 3) & 1:
        lead_table(a, 16, "s15", t)
    else:
        a("s_sub_u32 s34, s34, s15")
        a(f"v_add_u32 v{t}, s15, v0\nv_add_u32 v{t+1}, 3, v{t}\nv_and_b32 v{t}, 0xfc, v{t}\nv_and_or_b32 v{t}, v{t+1}, 3, v{t}")
    a(f"{'v_xor_b32' if XS in (97, 98) else 'v_add_u32'} v{t}, s34, v{t}\nv_and_b32 v{t}, {OPT.get('xmask', 15)}, v{t}")
    a("s_and_b32 s34, s3, 2\ns_add_u32 s34, s34, s3\ns_lshl_b32 s34, s34, 6\ns_add_u32 s34, s34, s7\ns_lshl_b32 s34, s34, 8")
    a(f"v_lshl_add_u32 v{XTT}, v{t}, 17, s34")
    t_voffs(a, 2048, True, XT)
    a("s_mul_i32 s29, s3, 4224\ns_add_u32 s29, s29, 16384")
    a(f"v_readlane_b32 s21, v{XTT}, 0\ns_mov_b32 m0, s29\ns_mov_b32 s18, {D*D*2}\ns_mov_b32 s19, 0x20000")
    get_args(a)
    stamp(a, 8)
    if OPT.get("trace"): a("v_mov_b32 v100, 0\ns_mov_b32 s96, 0")
    a(f"s_mov_b64 s[16:17], s[{sU}:{sU+1}]")
    def XTl(j): a(f"buffer_load_dwordx4 v{XT+j}, s[16:19], s21 offen offset:{j*1056} lds")
    def XPl(j): a(f"buffer_load_dwordx4 v{XP+j}, s[8:11], s20 offen offset:{j*1024} lds")
    def xbody(n, hook=False):
        XTl(0)
        a(f"v_readlane_b32 s20, v{XTP}, s25\ns_add_u32 s25, s25, 1")
        if hook:
            a("s_cmp_eq_u32 s25, s54\ns_cbranch_scc1 Lxl_ev")
            a("Lxl_evdone:")
        XTl(1)
        a("Lxl_go2:")
        a(f"s_add_u32 s34, s28, s22\ns_add_u32 s28, s28, {SL}")
        XTl(2)
        a(f"s_cmp_eq_u32 s28, {NSL*SL}\ns_cselect_b32 s28, 0, s28")
        XTl(3)
        a(f"s_mov_b32 m0, s34\nv_readlane_b32 s21, v{XTT}, s25\ns_add_u32 s34, s28, s29\ns_cmp_lt_u32 s25, {n}")
        XPl(0)
    def x0():
        W = OPT.get("W", 4)
        roles(a)
        a("s_add_u32 s35, s32, s33\ns_and_b32 s35, s35, 3")
        lead_table(a, 56, "s35", t)
        a(f"s_and_b32 s34, s32, 4\nv_xor_b32 v{t}, s34, v{t}")
        CS = 24576 if OPT.get("skip1") else 16384
        a(f"s_mul_i32 s34, s32, {56*CS}\ns_mul_i32 s35, s3, {CS//4}\ns_add_u32 s34, s34, s35")
        a(f"v_mul_u32_u24 v{L_TP}, {CS}, v{t}\nv_add_u32 v{L_TP}, s34, v{L_TP}")
        a("s_lshr_b32 s34, s3, 1\ns_lshl_b32 s34, s34, 4\ns_and_b32 s35, s3, 1\ns_lshl_b32 s35, s35, 2\ns_add_u32 s34, s34, s35")
        col_base(a, "s35", "s33", OPT.get("mix", 0))
        a("s_mul_i32 s34, s34, 7168\ns_add_u32 s34, s34, s35")
        a(f"v_mul_u32_u24 v{t}, {64*7168}, v{t}\nv_add_u32 v{L_TT}, s34, v{t}")
        t_voffs(a, 7168, False, mix=OPT.get("mix", 0))
        p_voffs(a, 128)
        if OPT.get("skip1"):
            skip1_adj(a, L_TMP)
            a(f"v_add_u32 v{L_P}, v{L_P}, v{L_TMP}\nv_add_u32 v{L_P+1}, v{L_P+1}, v{L_TMP+1}")
            a(f"v_add_u32 v{L_P+2}, 1024, v{L_P}\nv_add_u32 v{L_P+3}, 1024, v{L_P+1}")
        if OPT.get("spf"):
            OFF = OPT.get("spo", 12)
            NW = OPT.get("spf")
            a(f"s_lshr_b32 s14, s2, 3\ns_mul_i32 s14, s14, {NW}\ns_add_u32 s14, s14, s3\ns_sub_u32 s14, s14, {4-NW}")
            a(f"v_add_u32 v{t}, {OFF}, v0\nv_and_b32 v{t+1}, 7, v{t}\nv_mul_u32_u24 v{t+1}, {28*NW}, v{t+1}\nv_add_u32 v{t+1}, s14, v{t+1}\nv_min_u32 v{t+1}, 511, v{t+1}")
            a(f"v_and_b32 v{t}, 0xf8, v{t}\nv_min_u32 v{t}, 48, v{t}\nv_lshrrev_b32 v{t+2}, 7, v{t+1}\nv_add_u32 v{t}, v{t}, v{t+2}")
            a(f"s_and_b32 s34, s32, 4\nv_xor_b32 v{t}, s34, v{t}\nv_and_b32 v{t+2}, 63, v{t+1}\nv_lshl_add_u32 v{t}, v{t}, 6, v{t+2}\nv_mul_u32_u24 v{t}, 7168, v{t}")
            a("s_bfe_u32 s14, s2, 0x20001\ns_mul_i32 s14, s14, 7\ns_add_u32 s34, s14, 2\ns_andn2_b32 s34, s34, 3\ns_add_u32 s34, s34, 1")
            a("s_add_u32 s35, s34, 4\ns_add_u32 s14, s14, 6\ns_min_u32 s35, s35, s14\ns_sub_u32 s35, s35, s34")
            a(f"v_bfe_u32 v{t+1}, v{t+1}, 6, 1\nv_mul_lo_u32 v{t+1}, s35, v{t+1}\nv_add_u32 v{t+1}, s34, v{t+1}\nv_lshl_add_u32 v{L_SP}, v{t+1}, 8, v{t}")
            a(f"s_cmp_ge_u32 s3, {4-NW}\ns_cselect_b32 s24, {56-OFF}, 0")
        a(f"v_lshrrev_b32 v{t}, 1, v0\nv_add_u32 v{t+1}, 3, v{t}\nv_xor_b32 v{t+1}, s32, v{t+1}\nv_and_b32 v{t+1}, 4, v{t+1}")
        a(f"v_add_u32 v{t}, s32, v{t}\nv_and_or_b32 v{t}, v{t}, 3, v{t+1}\nv_and_b32 v{t+1}, 1, v0\nv_lshl_add_u32 v{t}, v{t}, 1, v{t+1}")
        if OPT.get("cswap"):
            a(f"v_min_u32 v{t+1}, 2, v0\nv_lshrrev_b32 v{t+1}, 1, v{t+1}\nv_and_b32 v{t+1}, s33, v{t+1}\nv_xor_b32 v{t}, v{t}, v{t+1}")
        a(f"s_lshl_b32 s34, s32, 19\ns_lshl_b32 s35, s3, 13\ns_add_u32 s34, s34, s35\nv_lshl_add_u32 v{L_CP}, v{t}, 15, s34")
        a(f"s_lshr_b32 s34, s3, 1\ns_mul_i32 s34, s34, {224*1024}\ns_and_b32 s35, s3, 1\ns_lshl_b32 s14, s33, 1\ns_add_u32 s35, s35, s14\ns_lshl_b32 s35, s35, 12\ns_add_u32 s34, s34, s35")
        a(f"v_mul_u32_u24 v{t}, {2*224*1024}, v{t}\nv_add_u32 v{L_CQ}, s34, v{t}")
        srd(a, 40, sWS, SZ_X, WS_XRF)
        srd(a, 48, sWS, SZ_W + 64, WS_WPF - 64)
        a(f"v_lshlrev_b32 v{L_L16}, 4, v0\nv_lshlrev_b32 v{L_FI}, 8, v0")
        for j in range(4):
            a(f"v_add_u32 v{L_Q+j}, {64 - 16*j}, v{L_L16}")
        a(f"s_lshl_b32 s26, s32, 12\ns_add_u32 s26, s26, {FA1}\ns_lshl_b32 s27, s54, 8\ns_add_u32 s27, s27, s26")
        get_nonce(a)
        a(f"s_cmp_lt_u32 s54, 16\ns_cselect_b32 s54, {OPT.get('xack', 3) + AH + 1}, 255\ns_cmp_eq_u32 s3, 1\ns_cselect_b32 s54, s54, 255\ns_cselect_b32 s55, 2, 0")
        a(f"s_or_b32 s14, s3, s5\ns_cmp_eq_u32 s14, 0\ns_cselect_b32 s54, {255 if OPT.get('nodq') else 13}, s54")
    for j in range(4): XTl(j)
    a(f"s_lshl2_add_u32 s34, s6, s3\ns_lshl_b32 s34, s34, 15\nv_lshl_add_u32 v{XTP}, v{t}, 7, s34")
    a(f"s_lshl_b32 s22, s3, 11\ns_mov_b32 m0, s22\nv_readlane_b32 s20, v{XTP}, 0\nv_readlane_b32 s21, v{XTT}, 1")
    p_voffs(a, 2048, XP, 2)
    srd(a, 8, sX, SZ_X)
    XPl(0)
    XPl(1)
    if OPT.get("pre", 1):
        a(f"s_add_u32 m0, s29, {SL}\ns_mov_b32 s25, 2\ns_mov_b32 s28, {SL}\nv_readlane_b32 s20, v{XTP}, 1")
        XTl(0)
        XTl(1)
        x0()
        a("s_branch Lxl_go2")
    else:
        a(f"s_add_u32 m0, s29, {SL}\ns_mov_b32 s25, 1\ns_mov_b32 s28, {SL}")
        x0()
        a("s_branch Lxl_go")
    a("Lxl_loop:")
    XPl(1)
    trace(a, 2)
    a("s_mov_b32 m0, s34")
    if AH == 3: a("s_cmp_lt_u32 s25, 3\ns_cbranch_scc1 Lxl_go")
    a(f"s_waitcnt vmcnt({6*(AH-1)})\ns_barrier")
    a("Lxl_go:")
    xbody(16, True)
    a("s_cbranch_scc1 Lxl_loop")
    XPl(1)
    stamp(a, 1)
    a("s_cmp_lg_u32 s5, 0\ns_cbranch_scc1 Ll_h")
    srd(a, 8, sWS, SZ_WQ, WS_WQ)
    srd(a, 16, sV, F * F * 2)
    a("s_lshl_b32 s22, s3, 12")

    AUX = {0: "", 1: " sc1", 2: " sc0 sc1", 3: " sc0"}
    PAUX, TAUX = AUX[OPT.get("psc1", 1)], AUX[OPT.get("tsc1", 0)]
    def T(j): a(f"buffer_load_dwordx4 v{L_T+j}, s[16:19], s21 offen offset:{j*1056}{TAUX} lds")
    def P(j): a(f"buffer_load_dwordx4 v{L_P+j}, s[8:11], s20 offen offset:{j*1024}{PAUX} lds")
    a(f"v_readlane_b32 s21, v{L_TT}, 0\nv_readlane_b32 s20, v{L_TP}, 0\ns_mov_b32 m0, s29")
    WSH = OPT.get("wsh", 2)
    a(f"s_mul_i32 s26, s32, {14*1024}\ns_add_u32 s26, s26, {FA + (WSH - 1) * 1024}")
    a(f"s_cmp_eq_u32 s3, 0\ns_cselect_b32 s54, {4*WSH - 4}, 255\ns_cmp_eq_u32 s3, 1\ns_cselect_b32 s54, 8, s54\ns_mov_b32 s55, 0")
    if AH == 3:
        a("s_waitcnt vmcnt(12)\ns_barrier")
        for j in range(4): T(j)
        a(f"s_mov_b32 m0, s22\nv_readlane_b32 s21, v{L_TT}, 1")
        for j in range(4): P(j)
        a(f"s_add_u32 m0, s29, {SL}\ns_mov_b32 s25, 1\ns_mov_b32 s28, {SL}")
        a("s_waitcnt vmcnt(14)\ns_barrier")
    else:
        a("s_mov_b32 s25, 0")
        a("s_waitcnt vmcnt(6)\ns_barrier")
    a("s_branch Lw_go")

    def head():
        P(3)
        trace(a)
        a("s_add_u32 m0, s28, s29")
        a(f"s_waitcnt vmcnt({8*(AH-1)})\ns_barrier")
    def first():
        T(0)
        a(f"v_readlane_b32 s20, v{L_TP}, s25\ns_add_u32 s25, s25, 1")
    def rest(fill=()):
        n = (len(fill) + 6) // 7
        g = ["\n".join(fill[i*n:(i+1)*n]) for i in range(7)]
        def gap(i):
            if g[i]: a(g[i])
        gap(0)
        T(1)
        a(f"s_add_u32 s34, s28, s22\ns_add_u32 s28, s28, {SL}")
        gap(1)
        T(2)
        a(f"s_cmp_eq_u32 s28, {NSL*SL}\ns_cselect_b32 s28, 0, s28")
        gap(2)
        T(3)
        a(f"s_mov_b32 m0, s34\nv_readlane_b32 s21, v{L_TT}, s25")
        gap(3)
        P(0)
        if OPT.get("spf"):
            a(f"s_cmp_ge_u32 s25, s24\ns_cbranch_scc1 Lw_nsp\nv_readlane_b32 s23, v{L_SP}, s25")
            for q in range(4):
                a("s_buffer_load_dword s97, s[16:19], s23" + (f" offset:{64*q}" if q else ""))
            a("Lw_nsp:")
        gap(4)
        P(1)
        gap(5)
        a(f"s_cmp_lt_u32 s25, 56")
        P(2)
        gap(6)
    a("Lw_loop:")
    head()
    a("Lw_go:")
    first()
    a(f"s_cmp_eq_u32 s25, s54\ns_cbranch_scc1 Lw_ev")
    a("Lw_evdone:")
    rest()
    a("s_cbranch_scc1 Lw_loop")
    P(3)
    stamp(a, 4)
    a(f"s_lshl_b32 s22, s3, 13\ns_mul_i32 s29, s3, {4*1040}\ns_add_u32 s29, s29, {CQ0}")
    def PC(st, slot, mid=None):
        a(f"v_readlane_b32 s20, v{L_CP}, {st}\ns_add_u32 m0, s22, {slot}\ns_nop 3")
        for j in range(8):
            if j == 4:
                a("s_add_u32 m0, m0, 4096\ns_add_u32 s20, s20, 4096")
                if mid: a(mid)
            a(f"buffer_load_dwordx4 v{L_L16}, s[40:43], s20 offen offset:{(j&3)*1024} sc1 lds")
    def QC(st, slot):
        a(f"v_readlane_b32 s21, v{L_CQ}, {st}\ns_add_u32 m0, s29, {slot}\ns_nop 3")
        for j in range(4):
            a(f"buffer_load_dwordx4 v{L_Q+j}, s[48:51], s21 offen offset:{j*1040} sc1 lds")
    for i in range(AH):
        a(f"s_waitcnt vmcnt({8*(AH-1)})\ns_barrier")
        PC(i, i * SL)
    a("s_barrier")
    a(f"s_lshl_b32 s26, s33, 3\ns_add_u32 s26, s26, s32\ns_lshl_b32 s27, s26, 8\ns_add_u32 s27, s27, {FB}")
    a(f"s_andn2_b32 s26, s27, 0x300\ns_xor_b32 s26, s26, 0x400")
    a(f"s_waitcnt vmcnt({8*(AH-1)})\ns_barrier")
    sflag_sample(a)
    if AH == 2: PC(2, 2 * SL)
    a("s_cmp_lg_u32 s3, 0")
    a("s_waitcnt vmcnt(8)\ns_barrier")
    a("s_cbranch_scc1 Lw_nfb")
    flag_store(a, "s27", L_TMP, L_L16)
    a("Lw_nfb:")
    stamp(a, 6)
    a(f"s_mov_b32 s25, 5\ns_mov_b32 s28, {2*SL}\ns_mov_b32 s27, {2*SQ}")
    a("s_cmp_eq_u32 s3, 0\ns_cselect_b32 s54, 9, 255")
    LM = OPT.get("late", 0)
    if LM == 1: PC(3, 0)
    sflag_check(a, "Lw_pb", L_FI, L_FL)
    stamp(a, 7)
    a("s_xor_b32 s26, s26, 0x400")
    QC(2, 2 * SQ)
    QC(3, 0)
    if LM == 0:
        PC(3, 0)
        a("s_waitcnt vmcnt(12)\ns_barrier")
    elif LM == 1:
        a("s_waitcnt vmcnt(4)\ns_barrier")
    else:
        PC(3, 0, "s_waitcnt vmcnt(8)\ns_barrier")
    if LM < 2:
        QC(4, SQ)
        PC(4, SL, "s_waitcnt vmcnt(8)\ns_barrier")
    else:
        QC(4, SQ)
        a("s_waitcnt vmcnt(4)\ns_barrier")
        PC(4, SL)
        QC(5, 2 * SQ)
        PC(5, 2 * SL, "s_waitcnt vmcnt(8)\ns_barrier")
        a("s_mov_b32 s25, 6\ns_mov_b32 s28, 0\ns_mov_b32 s27, 0")
    a("Lw_cloop:")
    a("s_cmp_lg_u32 s25, s54\ns_cbranch_scc1 Lw_c3")
    if OPT.get("warm", 0) & 4: touch_code(a, "L_tc2", "Lc_tail", "Lc_end", 250, 252, n=1, back=False)
    sflag_sample(a)
    a("Lw_c3:")
    trace(a, 3)
    QC("s25", "s27")
    PC("s25", "s28")
    a(f"s_add_u32 s27, s27, {SQ}\ns_add_u32 s28, s28, {SL}\ns_cmp_eq_u32 s28, {3*SL}\ns_cselect_b32 s28, 0, s28\ns_cselect_b32 s27, 0, s27")
    trace(a, 4)
    a("s_cmp_lg_u32 s25, s54\ns_cbranch_scc1 Lw_pc_x")
    sflag_check(a, "Lw_pc", L_FI, L_FL)
    a("s_add_u32 s25, s25, 1\ns_cmp_lt_u32 s25, 16")
    a("s_waitcnt vmcnt(12)\ns_barrier")
    a("s_cbranch_scc1 Lw_cloop")
    a("s_waitcnt vmcnt(0)\ns_barrier")
    trace_out(a)
    stamp_out(a, True)
    a("s_endpgm")
    def events(L, done, evs):
        a(f"{L}:")
        for i, ev in enumerate(evs):
            if i + 1 < len(evs): a(f"s_cmp_lg_u32 s55, {i}\ns_cbranch_scc1 {L}{i+1}")
            a(f"s_mov_b32 s55, {i+1}")
            ev()
            a(f"s_branch {done}")
            if i + 1 < len(evs): a(f"{L}{i+1}:")

    a("Lw_ev:")
    a("s_cmp_lg_u32 s3, 0\ns_cbranch_scc1 Lw_evx")
    a("s_bitcmp1_b32 s25, 0\ns_cbranch_scc1 Lw_evc")
    a("s_add_u32 s26, s26, 2048\ns_add_u32 s54, s54, 1")
    sflag_sample(a)
    a("s_branch Lw_evdone")
    a("Lw_evc:")
    sflag_check(a, "Lw_pa", L_FI, L_FL)
    a("s_add_u32 s54, s54, 7\ns_cmp_gt_u32 s54, 48\ns_cselect_b32 s54, 255, s54")
    a("s_branch Lw_evdone")
    def b0():
        own_fx(a)
        flag_store(a, "s27", L_TMP, L_L16)
        a("s_mov_b32 s54, 52")
    def b1():
        a(f"s_lshl_b32 s26, s32, 13\ns_add_u32 s26, s26, {FX}\ns_mov_b32 s54, 55")
        flag_load(a, "s26", 32, L_FI, L_FL)
    def b2():
        flag_poll(a, "Lw_px", "s26", 32, L_FI, L_FL, loaded=True)
        a("s_mov_b32 s54, 255")
    events("Lw_evx", "Lw_evdone", [b0, b1, b2])

    def x1():
        flag_load(a, "s26", 16, L_FI, L_FL)
        a("s_mov_b32 s54, 16")
    def x2():
        stamp(a, 11)
        flag_poll(a, "Lw_pa0", "s26", 16, L_FI, L_FL, loaded=True)
        stamp(a, 3)
        a("s_mov_b32 s54, 255")
    def x3():
        flag_store(a, "s27", L_TMP, L_L16)
        stamp(a, 2)
        a("s_mov_b32 s54, 255")
    events("Lxl_ev", "Lxl_evdone", [x1, x2, x3])

    a("Ll_h:")
    for i in range(AH):
        a(f"s_waitcnt vmcnt({6*(AH-1-i)})\ns_barrier")
    stamp_out(a, True)
    a("s_endpgm")


def helper(a):
    a("; ---- helper workgroups: dequantisation")
    a("s_and_b32 s32, s2, 7\ns_bfe_u32 s33, s2, 0x20003")
    BA = (4, 68)
    HQ, HS, HL = 132, 134, 135
    nt = " nt" if OPT.get("dq_nt", 1) else ""
    a("s_lshl_b32 s14, s32, 3\ns_add_u32 s14, s14, s4")
    a(f"s_mul_i32 s34, s14, {16*14336}\nv_lshrrev_b32 v1, 3, v0\nv_and_b32 v2, 7, v0")
    a(f"v_mul_u32_u24 v1, 14336, v1\nv_lshl_add_u32 v1, v2, 4, v1\nv_add_u32 v{HQ}, s34, v1\nv_add_u32 v{HQ+1}, {8*14336}, v{HQ}")
    a(f"s_lshr_b32 s34, s4, 2\ns_mul_i32 s34, s34, 7168\nv_lshl_add_u32 v{HS}, v2, 3, s34\nv_lshlrev_b32 v{HL}, 4, v0")
    CS = 24576 if OPT.get("skip1") else 16384
    if OPT.get("skip1"): skip1_adj(a, 140)
    else: a("v_mov_b32 v140, 0\nv_mov_b32 v141, 0")
    a(f"v_add_u32 v140, v140, v{HL}\nv_add_u32 v141, v141, v{HL}")
    a(f"s_mul_i32 s24, s32, {56*CS}\ns_mul_i32 s34, s4, {CS//8}\ns_add_u32 s24, s24, s34")
    def start(h):
        B = BA[h]
        a("s_add_u32 s15, s33, s23\ns_and_b32 s15, s15, 3\ns_lshl_b32 s14, s23, 2\ns_add_u32 s15, s15, s14\ns_xor_b32 s15, s15, s22\ns_add_u32 s23, s23, 1")
        a("s_lshl_b32 s25, s15, 8")
        if h == 0:
            a(f"s_cmp_ge_u32 s15, 56\ns_cselect_b32 s14, 0x40000000, 0\nv_or_b32 v{HQ}, s14, v{HQ}\nv_or_b32 v{HQ+1}, s14, v{HQ+1}")
        a(f"s_mul_i32 s14, s15, {CS}\ns_add_u32 s{20+h}, s24, s14\ns_lshl_b32 s14, s15, 7\nv_add_u32 v{B+5}, s14, v{HS}")
        for rg in range(2):
            for t in range(2):
                r = B + 32 + rg * 8 + t * 4
                a(f"buffer_load_dwordx4 v[{r}:{r+3}], v{HQ+rg}, s[16:19], s25 offen offset:{128*t}{nt}")
    def scales(h):
        B = BA[h]
        for t in range(2):
            a(f"ds_read_b64 v[{B+8+2*t}:{B+9+2*t}], v{B+5} offset:{64*t}")
            a(f"ds_read_b64 v[{B+12+2*t}:{B+13+2*t}], v{B+5} offset:{14336 + 64*t}")
    WSH = OPT.get("wsh", 2)
    a(f"s_mov_b32 s23, {WSH}\ns_and_b32 s22, s32, 4")
    a("s_min_u32 s14, s4, 6\ns_lshl_b32 s26, s14, 11\ns_mul_i32 s35, s32, 14336\ns_add_u32 s35, s35, s26\ns_mov_b32 m0, s26")
    get_args(a)
    for i, p in enumerate((sSC, sZE)):
        srd(a, 8, p, 16 * F * 2)
        for j in range(2):
            a(f"buffer_load_dwordx4 v{HL}, s[8:11], s35 offen offset:{j*1024} lds")
        if i == 0: a("s_add_u32 m0, s26, 14336")
    srd(a, 16, sQW, D * F * 4)
    start(0)
    start(1)
    srd(a, 8, sWS, SZ_WQ, WS_WQ)
    a(f"s_mul_i32 s27, s32, 56\ns_add_u32 s27, s27, s33\ns_lshl_b32 s27, s27, 8\ns_add_u32 s27, s27, {FA + (WSH + 1) * 1024}")
    get_nonce(a)
    if OPT.get("hx", 0) & 2:
        for i in range(5):
            flag_store(a, "s27", 136, HL)
            a("s_add_u32 s27, s27, 2048")
        a("s_branch Lh_skip")
    a("s_waitcnt vmcnt(8)\ns_barrier")
    scales(0)
    a("s_waitcnt vmcnt(4)")
    a("s_branch Lh_mid")
    a("Lh_loop:")
    for h in range(2):
        start(1 - h)
        scales(h)
        if h == 0:
            a("s_waitcnt vmcnt(6)")
        else:
            a(f"s_cmp_eq_u32 s23, {WSH + 3}\ns_cselect_b32 s14, 1, s4\ns_cmp_lg_u32 s14, 0")
            a("s_waitcnt vmcnt(6)\ns_barrier")
            a(f"s_cbranch_scc1 Lh_nf{h}")
            flag_store(a, "s27", 136, HL)
            a("s_add_u32 s27, s27, 2048")
            a(f"Lh_nf{h}:")
        if h == 0: a("Lh_mid:")
        a("s_waitcnt lgkmcnt(0)")
        a("\n".join(dq_unpack(BA[h])))
        for rg in range(2):
            a("\n".join(dq_rows(BA[h], rg, f"s{20+h}", 140 + rg)))
    a("s_cmp_lt_u32 s23, 15\ns_cbranch_scc1 Lh_loop")
    a("Lh_skip:")
    a("s_cmp_lg_u32 s4, 0")
    a("s_waitcnt vmcnt(0)\ns_barrier")
    a("s_cbranch_scc1 Lh_nf")
    flag_store(a, "s27", 136, HL)
    a("Lh_nf:")
    stamp(a, 5)
    R0, R1 = OPT.get("pf0", 14), OPT.get("pf1", 14)
    if R0 < R1:
        a("s_and_b32 s14, s32, 1\ns_lshl_b32 s14, s14, 2\ns_add_u32 s14, s14, s33\ns_lshl_b32 s14, s14, 3\ns_add_u32 s14, s14, s4")
        a(f"s_mul_i32 s14, s14, {4*7168}\ns_lshr_b32 s34, s32, 1\ns_mul_i32 s34, s34, 1792\ns_add_u32 s14, s14, s34\ns_add_u32 s14, s14, {R0*256*7168}")
        a(f"v_lshrrev_b32 v1, 4, v0\nv_mul_u32_u24 v1, 7168, v1\nv_and_b32 v2, 15, v0\nv_min_u32 v2, 13, v2\nv_lshl_add_u32 v1, v2, 7, v1")
        srd(a, 16, sV, F * F * 2)
        a(f"s_mov_b32 s23, {R1 - R0}")
        a("Lh_pf:")
        a("buffer_load_dword v2, v1, s[16:19], s14 offen")
        a(f"s_add_u32 s14, s14, {256*7168}\ns_sub_u32 s23, s23, 1\ns_cmp_lg_u32 s23, 0\ns_waitcnt vmcnt(0)\ns_cbranch_scc1 Lh_pf")
    stamp(a, 6)
    if OPT.get("hx", 0) & 1:
        own_fx(a)
        flag_store(a, "s27", 136, HL)
        a("s_endpgm")
    a("s_branch L_role")


def gen(opt):
    global OPT
    OPT = opt
    a = Asm()
    a(HDR.rstrip())
    a(f"; @launch grid=(256,1,1) block=(512,1,1) lds={LDS_BYTES}")
    a('.amdgcn_target "amdgcn-amd-amdhsa--gfx950"\n.text')
    a(f".globl {NAME}\n.p2align 8\n.type {NAME},@function\n{NAME}:")
    a("s_cmp_ge_u32 s2, 256\ns_cbranch_scc1 L_end")
    stamp(a, 0)
    a("s_load_dwordx16 s[36:51], s[0:1], 0")
    a(f"s_load_dwordx2 s[{sWS}:{sWS+1}], s[0:1], 64")
    a("v_lshrrev_b32 v1, 6, v0")
    a("v_and_b32 v0, 63, v0")
    a("v_readfirstlane_b32 s4, v1")
    a("s_bfe_u32 s6, s2, 0x20001\ns_bfe_u32 s34, s2, 0x30003\ns_lshl3_add_u32 s6, s6, s34")
    a("s_and_b32 s7, s2, 1\ns_lshr_b32 s34, s2, 6\ns_lshl2_add_u32 s7, s7, s34")
    a("s_and_b32 s3, s4, 3")
    a("s_cmp_ge_u32 s2, 224\ns_cselect_b32 s5, 1, 0\ns_cbranch_scc1 L_h")
    a("L_role:")
    a("s_cmp_lt_u32 s4, 4\ns_cbranch_scc1 L_c")
    loader(a)
    a("L_h:")
    helper(a)
    a("L_c:")
    compute(a)
    a("L_end:\ns_endpgm")
    a('.section .rodata,"a"\n.p2align 6')
    a(kd(NAME, 256, 256))
    return a.text()


if __name__ == "__main__":
    opt = dict(kv.split("=") for kv in sys.argv[2:])
    opt = {k: (int(v) if v.lstrip("-").isdigit() else v) for k, v in opt.items()}
    open(sys.argv[1], "w").write(gen(opt))
```

```python
import sys
from asm import Asm, kd

NAME = "standalone__weight_only_int_quip__prompt_kernel"
S, D, F = 2048, 1024, 3584
WS_FLAG = 0
FA, FX, FB, EPOCH, FA1 = 0, 128 << 10, 192 << 10, 252 << 10, 256 << 10
SZ_FLAG = 288 << 10
WS_WQ = 1 << 20
WS_XRF = 13 << 20
WS_WPF = 20 << 20
WS_STAMP = 64 << 20
SZ_W = D * F * 2
SZ_X = S * D * 2
SZ_WQ = 8 * 56 * 24576
SPIN_MAX = 1 << 15

HDR = """; Kernarg layout for this problem (72 bytes, ptrs only, base s[0:1]):
;
"""
sX, sQW, sSC, sZE, sU, sV, sOUT, sWS, sNONCE = 36, 38, 40, 42, 44, 46, 48, 30, 52

OPT = {}


def srd(a, d, b, nbytes, add=0):
    if add:
        a(f"s_add_u32 s{d}, s{b}, {add}")
        a(f"s_addc_u32 s{d+1}, s{b+1}, 0")
    else:
        a(f"s_mov_b32 s{d}, s{b}")
        a(f"s_mov_b32 s{d+1}, s{b+1}")
    a(f"s_mov_b32 s{d+2}, {nbytes}")
    a(f"s_mov_b32 s{d+3}, 0x20000")


def interleave(a, mf, others):
    for i, m in enumerate(mf):
        if isinstance(m, tuple):
            for p in m[0]:
                a(p)
            a(m[1])
        else:
            a(m)
        for o in others.get(i, []):
            a(o)


class Sched:
    def __init__(self, a):
        self.a, self.q = a, []
    def read(self, r):
        self.a(r[0]); self.q.append(r[1])
    def need(self, regs):
        idx = [i for i, d in enumerate(self.q) if d in regs]
        if idx:
            n = min(len(self.q) - 1 - idx[-1], 15)
            self.a(f"s_waitcnt lgkmcnt({n})")
            self.q = self.q[len(self.q) - n:] if n else []
    def drain(self, extra=""):
        self.a(f"s_waitcnt {extra}lgkmcnt(0)"); self.q = []
    def run(self, mf, reads=(), fill=None, every=1, group=1):
        reads = list(reads); nxt = 0
        for i, (m, A, B) in enumerate(mf):
            if i % group == 0:
                self.need({x for mm in mf[i:i + group] for x in mm[1:]})
            self.a(m)
            if reads and i >= nxt:
                k = next((k for k, r in enumerate(reads) if r[2] <= i), None)
                if k is not None:
                    self.read(reads.pop(k)); nxt = i + every
            for o in (fill or {}).get(i, []): self.a(o)
        for r in reads: self.read(r)


def chain(acc, A, B, rts, cs, zero=False):
    out = []
    for n, rt in enumerate(rts):
        for c in (cs if n % 2 == 0 else cs[::-1]):
            for ks in range(2):
                out.append((mfma(acc(rt, c), A(rt, ks), B(c, ks), zero and ks == 0), A(rt, ks), B(c, ks)))
    return out


NSTAMP = 12
def stamp(a, idx):
    if not OPT.get("stamp"): return
    a(f"s_memrealtime s[{60+2*idx}:{61+2*idx}]")
    if idx == 0:
        a("s_memtime s[86:87]")
        for i in range(1, NSTAMP): a(f"s_mov_b32 s{60+2*i}, 0")


def stamp_out(a, loader):
    if not OPT.get("stamp"): return
    a("s_mov_b64 exec, -1\ns_waitcnt vmcnt(0)")
    a(f"s_memrealtime s[84:85]\ns_memtime s[88:89]\ns_waitcnt lgkmcnt(0)")
    a("s_sub_u32 s88, s88, s86")
    srd(a, 92, sWS, 1 << 20, WS_STAMP)
    a(f"s_lshl_b32 s90, s2, 3\ns_add_u32 s90, s90, s3\ns_add_u32 s90, s90, {4 if loader else 0}\ns_lshl_b32 s90, s90, 6")
    a("v_mov_b32 v0, 0")
    a("s_getreg_b32 s89, hwreg(HW_REG_XCC_ID)\ns_getreg_b32 s91, hwreg(HW_REG_HW_ID)")
    vals = [f"s{60+2*i}" for i in range(NSTAMP + 1)] + ["s88", "s89", "s91"]
    for i, v in enumerate(vals):
        a(f"v_mov_b32 v1, {v}\nbuffer_store_dword v1, v0, s[92:95], s90 offen offset:{4*i}")


def trace(a, mode=1):
    if OPT.get("trace") != mode: return
    a("s_waitcnt lgkmcnt(0)\ns_mov_b32 m0, s25\nv_writelane_b32 v100, s96, m0")
    a("s_cmp_eq_u32 s3, 2\ns_cbranch_scc1 1f\ns_memrealtime s[96:97]\ns_branch 2f\n1:\ns_memtime s[96:97]\n2:")


def trace_out(a):
    if not OPT.get("trace"): return
    srd(a, 92, sWS, 1 << 20, WS_STAMP + (1 << 20))
    a(f"s_lshl_b32 s90, s2, 2\ns_add_u32 s90, s90, s3\ns_lshl_b32 s90, s90, 8\nv_lshlrev_b32 v1, 2, v0")
    a("buffer_store_dword v100, v1, s[92:95], s90 offen")


def mfma(acc, A, B, zero=False):
    C = "0" if zero else f"v[{acc}:{acc+3}]"
    return f"v_mfma_f32_16x16x32_bf16 v[{acc}:{acc+3}], v[{A}:{A+3}], v[{B}:{B+3}], {C}"


def flag_store(a, soff, vt, lane16):
    for i in range(4): a(f"v_mov_b32 v{vt+i}, s{sNONCE}")
    a("s_mov_b64 exec, 0xff")
    a(f"buffer_store_dwordx4 v[{vt}:{vt+3}], v{lane16}, s[56:59], {soff} offen sc1")
    a("s_mov_b64 exec, -1")


def flag_load(a, soff, n, vidx, vt):
    a(f"s_mov_b64 exec, {hex((1 << n) - 1)}")
    a(f"buffer_load_dword v{vt}, v{vidx}, s[56:59], {soff} offen sc1")
    a("s_mov_b64 exec, -1")


def flag_poll(a, L, soff, n, vidx, vt, loaded=False):
    a(f"s_mov_b32 s53, {SPIN_MAX}")
    if loaded: a(f"s_branch {L}_c")
    a(f"{L}:")
    flag_load(a, soff, n, vidx, vt)
    a("s_sub_u32 s53, s53, 1\ns_cmp_eq_u32 s53, 0")
    a(f"s_cbranch_scc1 {L}_x")
    a("s_waitcnt vmcnt(0)")
    a(f"{L}_c:")
    a(f"v_cmp_ne_u32 vcc, s{sNONCE}, v{vt}")
    a(f"s_and_b32 vcc_lo, vcc_lo, {hex((1 << n) - 1)}")
    a(f"s_cbranch_scc1 {L}")
    a(f"{L}_x:")


def sflag_sample(a):
    a(f"s_add_u32 s12, s{sWS}, s26\ns_addc_u32 s13, s{sWS+1}, 0")
    for q in range(4):
        a(f"s_load_dword s{98+q}, s[12:13], {WS_FLAG + q*256}")


def sflag_test(a):
    a("s_waitcnt lgkmcnt(0)")
    a(f"s_xor_b32 s14, s98, s{sNONCE}")
    for q in range(1, 4):
        a(f"s_xor_b32 s15, s{98+q}, s{sNONCE}\ns_or_b32 s14, s14, s15")


def sflag_check(a, L, vidx, vt):
    sflag_test(a)
    a(f"s_cbranch_scc0 {L}_x")
    flag_poll(a, L, "s26", 4, vidx, vt)


def touch_code(a, L, lo, hi, va, vd, lane="v0", sh=7, n=3, back=True):
    a(f"s_getpc_b64 s[12:13]\n{L}:")
    if back: a(f"s_sub_u32 s12, s12, {L}-{lo}\ns_subb_u32 s13, s13, 0")
    else: a(f"s_add_u32 s12, s12, {lo}-{L}\ns_addc_u32 s13, s13, 0")
    a(f"v_lshlrev_b32 v{va}, {sh}, {lane}")
    for i in range(n):
        a(f"v_min_u32 v{va+1}, {hi}-{lo}-4, v{va}\nglobal_load_dword v{vd}, v{va+1}, s[12:13]\nv_add_u32 v{va}, 8192, v{va}")


def align(a, bit):
    if OPT.get("al", 0) & bit:
        a(f".p2align {OPT.get('alp', 6)}")
        for i in range(OPT.get("alo", 0)): a("s_nop 0")


def get_args(a):
    a("s_waitcnt lgkmcnt(0)")
    a(f"s_load_dword s{sNONCE}, s[{sWS}:{sWS+1}], {WS_FLAG + EPOCH}")


def get_nonce(a):
    srd(a, 56, sWS, SZ_FLAG, WS_FLAG)
    a(f"s_waitcnt lgkmcnt(0)\ns_mul_i32 s{sNONCE}, s{sNONCE}, 1664525\ns_add_u32 s{sNONCE}, s{sNONCE}, 1013904223")


def dq_addr(a, B, nrg, wreg, sout):
    sh = {2: 3, 4: 2}[nrg]
    a(f"s_lshl_b32 s14, s32, {sh}\ns_add_u32 s14, s14, {wreg}")
    a(f"s_mul_i32 s34, s14, {nrg*8*14336}\ns_lshl_b32 s35, s15, 8\ns_add_u32 s34, s34, s35")
    a(f"s_lshr_b32 s14, s14, {sh-1}\ns_mul_i32 s35, s14, 7168\ns_lshl_b32 s14, s15, 7\ns_add_u32 s35, s35, s14")
    a(f"v_lshrrev_b32 v{B}, 3, v0\nv_and_b32 v{B+5}, 7, v0")
    a(f"v_mul_u32_u24 v{B}, 14336, v{B}\nv_lshl_add_u32 v{B}, v{B+5}, 4, v{B}\nv_add_u32 v{B}, s34, v{B}")
    for rg in range(1, nrg):
        a(f"v_add_u32 v{B+rg}, {rg*8*14336}, v{B}")
    a(f"v_lshl_add_u32 v{B+5}, v{B+5}, 3, s35\nv_lshlrev_b32 v{B+4}, 4, v0")
    a(f"s_mul_i32 {sout}, s32, 56\ns_add_u32 {sout}, {sout}, s15\ns_lshl_b32 {sout}, {sout}, {sh}\ns_add_u32 {sout}, {sout}, {wreg}\ns_lshl_b32 {sout}, {sout}, {14-sh}")


def dq_issue(a, B, rgs, scales=True):
    nt = " nt" if OPT.get("dq_nt", 1) else ""
    if scales:
        for t in range(2):
            a(f"global_load_dwordx2 v[{B+8+2*t}:{B+9+2*t}], v{B+5}, s[{sSC}:{sSC+1}] offset:{64*t}")
            a(f"global_load_dwordx2 v[{B+12+2*t}:{B+13+2*t}], v{B+5}, s[{sZE}:{sZE+1}] offset:{64*t}")
    for rg in rgs:
        for t in range(2):
            r = B + 32 + rg * 8 + t * 4
            a(f"global_load_dwordx4 v[{r}:{r+3}], v{B+rg}, s[{sQW}:{sQW+1}] offset:{128*t}{nt}")


def dq_unpack(B):
    o = []
    for j in range(4):
        o += [f"v_lshlrev_b32 v{B+16+2*j}, 16, v{B+8+j}", f"v_and_b32 v{B+17+2*j}, 0xffff0000, v{B+8+j}"]
        o += [f"v_lshlrev_b32 v{B+24+2*j}, 16, v{B+12+j}", f"v_and_b32 v{B+25+2*j}, 0xffff0000, v{B+12+j}"]
    return o


def dq_rows(B, rg, sout, vaddr=None):
    r = B + 32 + rg * 8
    o = [f"v_cvt_f32_i32 v{r+e}, v{r+e}" for e in range(8)]
    o += [f"v_sub_f32 v{r+e}, v{r+e}, v{B+24+e}" for e in range(8)]
    o += [f"v_cvt_pk_bf16_f32 v{B+8+p}, v{r+2*p}, v{r+2*p+1}" for p in range(4)]
    for p in range(4):
        o += [f"v_lshlrev_b32 v{r+2*p}, 16, v{B+8+p}", f"v_and_b32 v{r+2*p+1}, 0xffff0000, v{B+8+p}"]
    o += [f"v_mul_f32 v{r+e}, v{r+e}, v{B+16+e}" for e in range(8)]
    o += [f"v_cvt_pk_bf16_f32 v{r+p}, v{r+2*p}, v{r+2*p+1}" for p in range(4)]
    o.append(f"buffer_store_dwordx4 v[{r}:{r+3}], v{vaddr or B+4}, s[8:11], {sout} offen offset:{rg*1024} sc1")
    return o


def dq_now(a, B, nrg, sout):
    a(f"s_waitcnt vmcnt({2*nrg})")
    a("\n".join(dq_unpack(B)))
    for rg in range(nrg):
        a(f"s_waitcnt vmcnt({2*nrg - 2 - 2*rg + rg})")
        a("\n".join(dq_rows(B, rg, sout)))


SL = 16384 + 16 * 1056
NSL = 4
CQ0 = 3 * SL
SQ = 16 * 1040
LDS_BYTES = max(NSL * SL, CQ0 + 3 * SQ)

B_FR = 64
B_PA = 230
B_TA = 234
V_L16 = 248
V_T = 240
def bP(rt, ks, buf=0): return B_FR + buf * 64 + (rt * 2 + ks) * 4
def bT(c, ks): return B_FR + 32 + (c * 2 + ks) * 4
def b_mf(cs, buf=0):
    if not OPT.get("cmaj", 1): return chain(lambda rt, c: (rt * 4 + c) * 4, bP, bT, range(4), cs)
    return [(mfma((rt * 4 + c) * 4, bP(rt, ks, buf), bT(c, ks)), bP(rt, ks, buf), bT(c, ks))
            for c in cs for rt in (range(4) if c % 2 == 0 else range(3, -1, -1)) for ks in range(2)]


def b_rdP(slot, rt, at=0):
    b = slot & 1 if OPT.get("cmaj", 1) else 0
    return [(f"ds_read_b128 v[{bP(rt,ks,b)}:{bP(rt,ks,b)+3}], v{B_PA + (slot//2)*2 + ks} offset:{(slot%2)*SL + rt*2048}", bP(rt, ks, b), at) for ks in range(2)]


def b_rdT(slot, c):
    return [(f"ds_read_b64_tr_b16 v[{bT(c,ks)+t*2}:{bT(c,ks)+t*2+1}], v{B_TA + slot//2} offset:{(slot%2)*SL + 16384 + ks*8448 + t*512 + c*32}", bT(c, ks), 0)
            for ks in range(2) for t in range(2)]


def row_read_base(a, dst, t0, wshift):
    a(f"v_and_b32 v{t0}, 15, v0\nv_lshrrev_b32 v{t0+1}, 4, v0")
    a(f"v_lshrrev_b32 v{t0+2}, 1, v{t0}\nv_xor_b32 v{t0+2}, v{t0+2}, v{t0+1}\nv_lshlrev_b32 v{t0+2}, 4, v{t0+2}\nv_lshl_add_u32 v{t0+2}, v{t0}, 7, v{t0+2}")
    a(f"s_lshr_b32 s14, s3, 1\ns_lshl_b32 s14, s14, {wshift}\nv_add_u32 v{dst}, s14, v{t0+2}\nv_xor_b32 v{dst+1}, 64, v{dst}")


def tr_read_base(a, dst, t0):
    a(f"v_bfe_u32 v{t0}, v0, 2, 3\nv_mul_u32_u24 v{t0}, 1056, v{t0}\nv_lshrrev_b32 v{t0+1}, 5, v0\nv_lshl_add_u32 v{t0}, v{t0+1}, 8, v{t0}")
    a(f"v_and_b32 v{t0+1}, 3, v0\nv_lshl_add_u32 v{t0}, v{t0+1}, 3, v{t0}\ns_and_b32 s14, s3, 1\ns_lshl_b32 s14, s14, 7")
    a(f"v_add_u32 v{dst}, s14, v{t0}")


C_FR = 128
C_PA = 224
C_QA = 227
C_WA = 228
C_SA = 229


def cP(rt, ks): return C_FR + (rt * 2 + ks) * 4
def cQ(c, ks): return C_FR + 32 + (c * 2 + ks) * 4
def c_mf(cs, rts=range(4), zero=False, preg=None):
    return chain(lambda rt, c: (rt * 8 + c) * 4, preg or cP, cQ, rts, cs, zero)


def c_rdP(slot, rt, at=0, dst=None):
    d = rt if dst is None else dst
    return [(f"ds_read_b128 v[{cP(d,ks)}:{cP(d,ks)+3}], v{C_PA+slot} offset:{ks*16384 + rt*1024}", cP(d, ks), at) for ks in range(2)]


def c_rdQ(slot, cs):
    return [(f"ds_read_b128 v[{cQ(c,ks)}:{cQ(c,ks)+3}], v{C_QA} offset:{slot*SQ + ks*8320 + c*16}", cQ(c, ks), 0) for c in cs for ks in range(2)]


def spread(rd, every=2):
    return {every * i: [r] for i, r in enumerate(rd)}


X_ACC = 136
X_FR = 168
X_PA = 216
X_TA = 220


def x_reads(slot, ks, buf):
    b = X_FR + buf * 24
    P = [f"ds_read_b128 v[{b+rt*4}:{b+rt*4+3}], v{X_PA + (slot//2)*2 + ks} offset:{(slot%2)*SL + rt*2048}" for rt in range(4)]
    T = [f"ds_read_b64_tr_b16 v[{b+16+c*4+t*2}:{b+16+c*4+t*2+1}], v{X_TA + slot//2} offset:{(slot%2)*SL + 16384 + ks*8448 + t*512 + c*32}"
         for c in range(2) for t in range(2)]
    return [T[0], T[1], P[0], T[2], T[3], P[1], P[2], P[3]]


def x_mfmas(buf, waits):
    if OPT.get("xnomf"): return ["s_nop 0"] * 8
    b = X_FR + buf * 24
    out = []
    for n in range(8):
        rt, c = n >> 1, (n ^ (n >> 1)) & 1
        m = mfma(X_ACC + (rt * 2 + c) * 4, b + 16 + c * 4, b + rt * 4)
        out.append(([f"s_waitcnt lgkmcnt({waits[n]})"], m) if n in waits else m)
    return out


def x_epilogue(a):
    for rt in range(4):
        lo = X_ACC + rt * 8
        t = V_T + (rt & 1) * 4
        for p in range(4):
            a(f"v_cvt_pk_bf16_f32 v{t+p}, v{lo+2*p}, v{lo+2*p+1}")
        a(f"buffer_store_dwordx4 v[{t}:{t+3}], v{V_L16}, s[16:19], s24 offen offset:{rt*1024} sc1")


def roles(a):
    a("s_and_b32 s32, s2, 1\ns_bfe_u32 s33, s2, 0x20003\ns_lshl2_add_u32 s32, s32, s33")
    a("s_bfe_u32 s14, s2, 0x20001\ns_mul_i32 s35, s14, 7\ns_lshr_b32 s34, s2, 5\ns_add_u32 s33, s35, s34")
    a("s_add_u32 s35, s35, 2\ns_lshr_b32 s35, s35, 2\ns_add_u32 s54, s34, s35\ns_add_u32 s35, s33, 2\ns_lshr_b32 s35, s35, 2\ns_sub_u32 s54, s54, s35")
    a("s_cmp_ge_u32 s54, 4\ns_cselect_b32 s54, 16, s54\ns_and_b32 s35, s33, 3\ns_cmp_eq_u32 s35, 1\ns_cselect_b32 s54, 16, s54")
    a("s_lshl2_add_u32 s54, s14, s54")
    if OPT.get("nodq"): a("s_mov_b32 s54, 16")


def own_fx(a):
    a(f"s_lshl_b32 s27, s6, 3\ns_add_u32 s27, s27, s7\ns_lshl_b32 s27, s27, 8\ns_add_u32 s27, s27, {FX}")


def compute(a):
    DQ = 64
    roles(a)
    WSH = OPT.get("wsh", 2)
    if WSH == 4:
        a("s_and_b32 s15, s32, 4\ns_xor_b32 s15, s15, s54")
        dq_addr(a, DQ, 4, "s3", "s28")
    else:
        a("s_lshr_b32 s15, s54, 1\ns_and_b32 s29, s54, 1\ns_lshl_b32 s29, s29, 2\ns_add_u32 s29, s29, s3")
        dq_addr(a, DQ, 2, "s29", "s28")
    get_args(a)
    a("s_cmp_ge_u32 s54, 16\ns_cbranch_scc1 Lc_nodq0")
    dq_issue(a, DQ, range(WSH))
    a("Lc_nodq0:")
    if OPT.get("tlb"):
        a("s_cmp_lg_u32 s3, 3\ns_cbranch_scc1 Lc_ntlb")
        for p, sz in ((sV, F * F * 2), (sOUT, S * F * 2), (sWS, 28 << 20))[:OPT["tlb"]]:
            a(f"v_mul_u32_u24 v250, {sz // 64 // 128 * 128}, v0\nglobal_load_dword v251, v250, s[{p}:{p+1}]")
        a("s_waitcnt vmcnt(0)")
        a("Lc_ntlb:")
    srd(a, 8, sWS, SZ_WQ, WS_WQ)
    a(f"v_lshlrev_b32 v{V_L16}, 4, v0")
    row_read_base(a, B_PA, V_T, 13)
    a(f"v_mov_b32 v{X_PA}, v{V_T+2}\nv_xor_b32 v{X_PA+1}, 64, v{X_PA}")
    tr_read_base(a, B_TA, V_T)
    a(f"s_lshl_b32 s14, s3, 6\nv_add_u32 v{X_TA}, s14, v{V_T}")
    for r_ in (B_PA, X_PA):
        a(f"v_add_u32 v{r_+2}, {2*SL}, v{r_}\nv_add_u32 v{r_+3}, {2*SL}, v{r_+1}")
    for r_ in (B_TA, X_TA):
        a(f"v_add_u32 v{r_+1}, {2*SL}, v{r_}")
    a(f"s_lshl_b32 s14, s3, 12\nv_add_u32 v{C_PA}, s14, v{V_L16}\nv_add_u32 v{C_PA+1}, {SL}, v{C_PA}\nv_add_u32 v{C_PA+2}, {2*SL}, v{C_PA}")
    a(f"v_bfe_u32 v{V_T}, v0, 1, 3\nv_mul_u32_u24 v{V_T}, 1040, v{V_T}\nv_lshrrev_b32 v{V_T+1}, 4, v0\nv_lshl_add_u32 v{V_T}, v{V_T+1}, 8, v{V_T}")
    a(f"v_and_b32 v{V_T+2}, 1, v0\nv_lshl_add_u32 v{V_T}, v{V_T+2}, 7, v{V_T}\nv_add_u32 v{C_QA}, {CQ0}, v{V_T}")
    a(f"s_lshr_b32 s14, s3, 1\ns_mul_i32 s14, s14, {SQ}\ns_and_b32 s34, s3, 1\ns_mul_i32 s34, s34, {4*1040}\ns_add_u32 s14, s14, s34\ns_add_u32 s14, s14, {CQ0}")
    a(f"v_add_u32 v{C_WA}, s14, v{V_L16}")
    col_lane(a, V_T + 2, V_T + 3, OPT.get("mix", 0))
    a(f"v_mul_u32_u24 v{V_T+1}, {4*7168}, v{V_T+1}\nv_add_u32 v{C_SA}, v{V_T+2}, v{V_T+1}")
    for i in list(range(64)) + list(range(X_ACC, X_ACC + 32)):
        a(f"v_mov_b32 v{i}, 0")
    a("s_lshr_b32 s24, s6, 2\ns_lshl_b32 s24, s24, 5\ns_lshl_b32 s34, s7, 2\ns_add_u32 s24, s24, s34\ns_add_u32 s24, s24, s3")
    a("s_lshl_b32 s24, s24, 2\ns_and_b32 s34, s6, 3\ns_add_u32 s24, s24, s34\ns_lshl_b32 s24, s24, 12")
    srd(a, 16, sWS, SZ_X, WS_XRF)
    get_nonce(a)
    a("s_cmp_ge_u32 s54, 16\ns_cbranch_scc1 Lc_nodq1")
    dq_now(a, DQ, WSH, "s28")
    a("Lc_nodq1:")
    stamp(a, 1)
    XW = {0: 5, 1: 4, 2: 4, 4: 5, 6: 6}
    a("s_mov_b32 s23, 4\ns_barrier")
    stamp(a, 9)
    for r in x_reads(0, 0, 0): a(r)
    a("s_branch Lx_mid")
    align(a, 16)
    a("Lx_loop:")
    for s in range(NSL):
        a("s_barrier")
        interleave(a, x_mfmas(1, {}), spread(x_reads(s, 0, 0), 1))
        if s == 0: a("Lx_mid:")
        if OPT.get("xfront", 1):
            rd = x_reads(s, 1, 1)
            interleave(a, x_mfmas(0, {0: 5, 1: 5, 2: 6, 4: 9, 6: 8}), {i: rd[2*i:2*i+2] for i in range(4)})
        else:
            interleave(a, x_mfmas(0, XW), spread(x_reads(s, 1, 1), 1))
        XACK = OPT.get("xack", 3)
        if s == XACK - 5: a("s_cmp_eq_u32 s23, 4\ns_cbranch_scc1 Lx_na\ns_waitcnt vmcnt(0)\nLx_na:")
        if s == NSL - 1:
            a("s_sub_u32 s23, s23, 1\ns_cmp_lg_u32 s23, 0")
        a("s_waitcnt vmcnt(0) lgkmcnt(0)" if s == XACK - 1 else "s_waitcnt lgkmcnt(0)")
    a("s_cbranch_scc1 Lx_loop")
    stamp(a, 10)
    a("s_cmp_lg_u32 s5, 0\ns_cbranch_scc1 Lc_h")
    a("s_barrier")
    stamp(a, 2)
    LO, HI = [0, 1], [2, 3]
    sc = Sched(a)
    CM = OPT.get("cmaj", 1)
    def b_h1(s):
        if CM: return b_rdT(s, 0) + b_rdP(s, 0) + b_rdP(s, 1) + b_rdP(s, 2) + b_rdP(s, 3) + b_rdT(s, 1)[:2]
        return b_rdT(s, 0) + b_rdP(s, 0, 3) + b_rdT(s, 1) + b_rdP(s, 1, 7) + b_rdP(s, 2, 11)
    def b_h2(s):
        return (b_rdT(s, 1)[2:] if CM else b_rdP(s, 3)) + b_rdT(s, 2) + b_rdT(s, 3)
    rd = b_h1(0)
    interleave(a, x_mfmas(1, {}), spread([r[0] for r in rd[:8]], 1))
    for r in rd[8:]: a(r[0])
    a(f"s_lshl_b32 s25, s32, 2\ns_add_u32 s25, s25, s3\ns_mov_b32 s23, {56 // NSL}")
    x_epilogue(a)
    a(f"s_lshr_b32 s34, s3, 1\ns_lshl_b32 s24, s32, 1\ns_add_u32 s24, s24, s34\ns_mul_i32 s24, s24, {2*224*1024}")
    a("s_and_b32 s34, s3, 1\ns_lshl_b32 s35, s33, 1\ns_add_u32 s34, s34, s35\ns_lshl_b32 s34, s34, 12\ns_add_u32 s24, s24, s34")
    srd(a, 16, sWS, SZ_W, WS_WPF)
    a(f"s_add_u32 s26, s24, {224*1024}")
    a("s_waitcnt lgkmcnt(0)\ns_branch Lb_mid")
    align(a, 2)
    a("Lb_loop:")
    for s in range(NSL):
        a("s_barrier")
        sc.run(b_mf(HI, (s - 1) & 1), b_h1(s), group=4)
        if s == 0: a("Lb_mid:")
        fill = {13: ["s_sub_u32 s23, s23, 1"], 14: ["s_cmp_lg_u32 s23, 0"]} if s == NSL - 1 else {}
        sc.run(b_mf(LO, s & 1), b_h2(s), fill, group=4)
        sc.drain("vmcnt(0) " if s == NSL - 1 else "")
    a("s_cbranch_scc1 Lb_loop")
    a("s_barrier")
    stamp(a, 3)
    WT = 160
    def w_out(pair, o):
        lo, hi = ((2 * pair) * 4 + o) * 4, ((2 * pair + 1) * 4 + o) * 4
        t = WT + (pair * 4 + o) * 4
        return [f"v_cvt_pk_bf16_f32 v{t}, v{lo}, v{lo+1}", f"v_cvt_pk_bf16_f32 v{t+1}, v{lo+2}, v{lo+3}",
                f"v_cvt_pk_bf16_f32 v{t+2}, v{hi}, v{hi+1}", f"v_cvt_pk_bf16_f32 v{t+3}, v{hi+2}, v{hi+3}",
                f"buffer_store_dwordx4 v[{t}:{t+3}], v{V_L16}, s[16:19], s{24+2*pair} offen offset:{o*1024} sc1"]
    def w_lds(pair, o):
        t = WT + (pair * 4 + o) * 4
        return f"ds_write_b128 v{C_WA}, v[{t}:{t+3}] offset:{pair*8320 + o*1040}"
    fill = {}
    for n, (pair, o) in enumerate(((0, 0), (1, 0), (1, 1), (0, 1)) if CM else ((0, 0), (0, 1), (1, 0), (1, 1))):
        w = w_out(pair, o)
        fill[4 * n] = w[0:2]; fill[4 * n + 1] = w[2:4]; fill[4 * n + 2] = w[4:5]; fill[4 * n + 3] = [w_lds(pair, o)]
    sc.run(b_mf(HI, 1), fill=fill)
    rest = ((0, 2), (1, 2), (1, 3), (0, 3)) if CM else ((0, 2), (0, 3), (1, 3), (1, 2))
    for pair, o in rest:
        a("\n".join(w_out(pair, o)))
    for pair, o in rest:
        a(w_lds(pair, o))
    srd(a, 16, sOUT, S * F * 2)
    a(f"s_lshl_b32 s34, s33, 8\ns_mul_i32 s24, s25, {64*7168}\ns_add_u32 s24, s24, s34")
    a("s_waitcnt lgkmcnt(0)")
    stamp(a, 4)
    a("; ---- phase C")
    LO, HI = [0, 1, 2, 3], [4, 5, 6, 7]
    def c_first(slot):
        return c_rdP(slot, 0) + c_rdQ(slot, LO) + c_rdP(slot, 1) + c_rdP(slot, 2)
    a("s_barrier")
    for r in c_first(0): sc.read(r)
    a("s_mov_b32 s23, 4")
    z = [f"v_mov_b32 v{(rt*8+c)*4+i}, 0" for rt in range(4) for c in HI for i in range(4)]
    sc.run(c_mf(LO, zero=True), c_rdP(0, 3) + c_rdQ(0, HI), {10 + i: z[3*i:3*i+3] for i in range(22)}, group=2)
    sc.drain("vmcnt(0) ")
    stamp(a, 5)
    EB = OPT.get("eb", 2)
    if EB: a("s_barrier")
    align(a, 4)
    a("Lc_loop:")
    for s in (1, 2, 0):
        if not EB:
            if s == 2: a("s_cmp_eq_u32 s23, 4\ns_cbranch_scc1 Lc_peel")
            a("s_barrier")
        sc.run(c_mf(HI), c_rdQ(s, LO[:2]) + c_rdP(s, 0, 7) + c_rdQ(s, LO[2:]) + c_rdP(s, 1, 15) + c_rdP(s, 2, 23), every=2, group=8)
        if s == 2: a("Lc_mid:")
        fill = {21: ["s_sub_u32 s23, s23, 1"], 23: ["s_cmp_lg_u32 s23, 0"]} if s == 0 else {}
        if EB:
            fill[30 - EB] = ["s_waitcnt lgkmcnt(0)"]
            fill[31 - EB] = ["s_barrier"]
            if s == 1:
                fill[23] = ["s_cmp_eq_u32 s23, 4"]
                fill[31 - EB] = ["s_cbranch_scc1 Lc_peel", "s_barrier"]
        sc.run(c_mf(LO), c_rdP(s, 3) + c_rdQ(s, HI), fill, every=2, group=8)
        if EB: sc.q = []
        else: sc.drain()
    a("s_cbranch_scc1 Lc_loop")
    a("Lc_tail:")
    ynt = {0: "", 1: " nt", 2: " sc1", 3: " sc0 sc1", 4: " sc1 nt", 5: " sc0 sc1 nt"}[OPT.get("y_nt", 2)]

    def row_out(rt, r, t):
        o = []
        for p in range(4):
            o.append(f"v_cvt_pk_bf16_f32 v{t+p}, v{(rt*8+2*p)*4+r}, v{(rt*8+2*p+1)*4+r}")
        o.append(f"buffer_store_dwordx4 v[{t}:{t+3}], v{C_SA}, s[16:19], s24 offen{ynt}")
        o.append(f"s_add_u32 s24, s24, {7168 if r < 3 else 13*7168}")
        return o
    def u_slot(n): return (13 + n % 3) % 3
    def u_rdP(n, at=(0, 0)): return [r for k in range(2) for r in c_rdP(u_slot(n), 2 * (n // 3) + k, at[k], 2 * (n & 1) + k)]
    def u_mf(n, cs, rts=None):
        h = n // 3
        return c_mf(cs, rts or (2 * h, 2 * h + 1), preg=lambda rt, ks: cP(2 * (n & 1) + (rt & 1), ks))
    if not EB: a("s_barrier")
    sc.run(c_mf(HI), c_rdQ(u_slot(0), LO) + u_rdP(0, (7, 15)), every=2, group=8)
    outs = [row_out(rt, r, V_T + ((rt * 4 + r) & 1) * 4) for rt in range(4) for r in range(4)]
    def put(fill, pos, q):
        o = outs[q]
        fill[pos] = o[0:2]; fill[pos + 1] = o[2:4]; fill[pos + 2] = o[4:6]
    for n in range(5):
        f1, f2 = {}, {}
        if n >= 3:
            put(f1, 9, 3 * (n - 3)); put(f1, 12, 3 * (n - 3) + 1); put(f2, 12, 3 * (n - 3) + 2)
        sc.run(u_mf(n, LO), c_rdQ(u_slot(n), HI), f1, group=4)
        if n < 2: a("s_barrier")
        sc.run(u_mf(n, HI), u_rdP(n + 1)[:2] + c_rdQ(u_slot(n + 1), LO) + u_rdP(n + 1)[2:], f2, group=4)
    f1, f2 = {}, {}
    put(f1, 9, 6); put(f1, 12, 7)
    sc.run(u_mf(5, LO + HI, (2,)), c_rdQ(u_slot(5), HI), f1, group=2)
    stamp(a, 7)
    put(f2, 7, 8); put(f2, 10, 9); put(f2, 13, 10)
    sc.run(u_mf(5, (LO + HI)[::-1], (3,)), fill=f2)
    a("\n".join(outs[11]))
    a("s_nop 1")
    for q in range(12, 16):
        a("\n".join(row_out(3, q - 12, C_FR + (q & 3) * 4)))
    stamp(a, 8)
    a("s_or_b32 s14, s2, s3\ns_cmp_lg_u32 s14, 0\ns_cbranch_scc1 Lc_end")
    a(f"s_mov_b32 s14, {EPOCH}")
    flag_store(a, "s14", V_T, V_L16)
    a("Lc_end:")
    stamp_out(a, False)
    a("s_endpgm")
    a("Lc_peel:")
    sc.q = []
    sc.run((c_mf(LO)[32 - EB:] if EB else []) + c_mf(HI))
    a("s_barrier")
    stamp(a, 6)
    for r in c_first(2): a(r[0])
    a("s_branch Lc_mid")
    a("Lc_h:")
    interleave(a, x_mfmas(1, {}), {})
    a("s_nop 7")
    x_epilogue(a)
    a("s_waitcnt vmcnt(0)\ns_barrier")
    a("s_cmp_lg_u32 s3, 0\ns_cbranch_scc1 Lc_end")
    if OPT.get("warm", 0) & 2: touch_code(a, "L_tc1", NAME, "L_end", 250, 252, f"v{V_L16}", 3)
    own_fx(a)
    flag_store(a, "s27", V_T, V_L16)
    a("s_branch Lc_end")


L_T = 68
L_P = 72
L_TP = 76
L_TT = 77
L_Q = 78
L_L16 = 82
L_FI = 83
L_TMP = 84
L_FL = 92
L_CP = 93
L_CQ = 94
L_SP = 95


def rot_table(a, n, W, phi, psi, v, pw=0):
    lg = W.bit_length() - 1
    wmin = OPT.get("wmin", 1)
    a(f"s_add_u32 s14, {psi}, {n - wmin}\ns_lshr_b32 s14, s14, {lg}")
    a(f"v_add_u32 v{v+3}, {psi}, v0\nv_lshrrev_b32 v{v+3}, {lg}, v{v+3}\nv_min_u32 v{v+3}, s14, v{v+3}")
    a(f"v_cmp_eq_u32 vcc, s14, v{v+3}")
    a(f"v_lshlrev_b32 v{v}, {lg}, v{v+3}\nv_subrev_u32 v{v}, {psi}, v{v}")
    a(f"v_add_u32 v{v+1}, {W}, v{v}\nv_mov_b32 v{v+2}, {n}\nv_cndmask_b32 v{v+1}, v{v+1}, v{v+2}, vcc")
    a(f"v_max_i32 v{v}, 0, v{v}\nv_sub_u32 v{v+1}, v{v+1}, v{v}")
    a(f"v_mul_u32_u24 v{v+3}, {pw}, v{v+3}")
    a(f"v_add_u32 v{v+3}, {phi}, v{v+3}\nv_and_b32 v{v+3}, {W-1}, v{v+3}\nv_sub_u32 v{v+2}, v0, v{v}\nv_add_u32 v{v+2}, v{v+3}, v{v+2}")
    for i in range(W - 1):
        a(f"v_sub_u32 v{v+3}, v{v+2}, v{v+1}\nv_min_u32 v{v+2}, v{v+2}, v{v+3}")
    a(f"v_add_u32 v{v}, v{v}, v{v+2}")


def lead_table(a, n, psi, v):
    a(f"v_add_u32 v{v}, {psi}, v0\nv_and_b32 v{v+1}, 3, v{v}\nv_min_u32 v{v+1}, v{v+1}, v0\nv_cmp_eq_u32 vcc, 0, v{v+1}")
    a(f"v_or_b32 v{v}, 3, v{v}\nv_subrev_u32 v{v}, {psi}, v{v}\nv_min_u32 v{v}, {n-1}, v{v}\nv_add_u32 v{v+1}, -1, v0")
    a(f"v_cndmask_b32 v{v}, v{v+1}, v{v}, vcc")


def col_base(a, dst, tile, mix):
    if mix: a(f"s_lshr_b32 {dst}, {tile}, 2\ns_lshl_b32 {dst}, {dst}, 2\ns_add_u32 {dst}, {dst}, {tile}\ns_lshl_b32 {dst}, {dst}, 7")
    else: a(f"s_lshl_b32 {dst}, {tile}, 8")


def col_lane(a, dst, tmp, mix):
    a(f"v_and_b32 v{dst}, 15, v0\nv_lshlrev_b32 v{dst}, 4, v{dst}")
    if mix: a(f"v_and_b32 v{tmp}, 8, v0\nv_mul_u32_u24 v{tmp}, 48, v{tmp}\nv_add_u32 v{dst}, v{dst}, v{tmp}")


def t_voffs(a, t_row, natural, L_T=L_T, mix=0):
    t = L_TMP
    a(f"v_lshrrev_b32 v{t}, 4, v0\nv_and_b32 v{t+1}, 1, v{t}\nv_lshrrev_b32 v{t}, 1, v{t}")
    if natural:
        a(f"v_lshlrev_b32 v{t+1}, 4, v{t+1}\nv_lshl_add_u32 v{t}, v{t}, 2, v{t+1}")
    else:
        a(f"v_lshlrev_b32 v{t+1}, 3, v{t+1}\nv_lshl_add_u32 v{t}, v{t}, 5, v{t+1}")
    col_lane(a, t + 1, t + 2, mix)
    a(f"v_mul_u32_u24 v{t}, {t_row}, v{t}\nv_add_u32 v{L_T}, v{t+1}, v{t}")
    for j in range(1, 4):
        a(f"v_add_u32 v{L_T+j}, {j*(t_row-1056)}, v{L_T}")


def p_voffs(a, p_row, L_P=L_P, n=4):
    t = L_TMP
    a(f"v_lshrrev_b32 v{t}, 3, v0\nv_mul_u32_u24 v{t}, {p_row}, v{t}\nv_lshrrev_b32 v{t+1}, 4, v0\nv_and_b32 v{t+2}, 7, v0\nv_xor_b32 v{t+1}, v{t+1}, v{t+2}")
    a(f"v_lshl_add_u32 v{L_P}, v{t+1}, 4, v{t}\nv_xor_b32 v{L_P+1}, 64, v{L_P}")
    d = 8 * p_row - 1024
    if n == 4: a(f"v_add_u32 v{L_P+2}, {2*d}, v{L_P}\nv_add_u32 v{L_P+3}, {3*d}, v{L_P+1}")
    a(f"v_add_u32 v{L_P+1}, {d}, v{L_P+1}")


def skip1_adj(a, v):
    a(f"v_lshrrev_b32 v{v+1}, 4, v0\nv_min_u32 v{v}, 1, v{v+1}\nv_lshlrev_b32 v{v}, 8, v{v}")
    a(f"v_add_u32 v{v+1}, 9, v{v+1}\nv_lshrrev_b32 v{v+1}, 2, v{v+1}\nv_lshlrev_b32 v{v+1}, 8, v{v+1}")


def loader(a):
    t = L_TMP + 4
    XT, XP, XTP, XTT = 4, 8, 12, 13
    AH = OPT.get("ah", 3)
    XS = OPT.get("xs", 97)
    if XS == 98: a("s_and_b32 s34, s2, 1\ns_bfe_u32 s15, s2, 0x20001\ns_xor_b32 s34, s34, s15\ns_lshl_b32 s34, s34, 2")
    elif XS == 97: a("s_lshl_b32 s34, s2, 2")
    elif XS == 99: a("s_and_b32 s34, s2, 1\ns_bfe_u32 s15, s2, 0x20001\ns_lshl1_add_u32 s34, s34, s15\ns_lshl_b32 s34, s34, 2")
    else: a(f"s_mul_i32 s34, s2, {XS}")
    a("s_add_u32 s15, s6, s7\ns_and_b32 s15, s15, 3")
    if OPT.get("lead", 3) & 1:
        lead_table(a, 16, "s15", t)
    else:
        a("s_sub_u32 s34, s34, s15")
        a(f"v_add_u32 v{t}, s15, v0\nv_add_u32 v{t+1}, 3, v{t}\nv_and_b32 v{t}, 0xfc, v{t}\nv_and_or_b32 v{t}, v{t+1}, 3, v{t}")
    a(f"{'v_xor_b32' if XS in (97, 98) else 'v_add_u32'} v{t}, s34, v{t}\nv_and_b32 v{t}, {OPT.get('xmask', 15)}, v{t}")
    a("s_and_b32 s34, s3, 2\ns_add_u32 s34, s34, s3\ns_lshl_b32 s34, s34, 6\ns_add_u32 s34, s34, s7\ns_lshl_b32 s34, s34, 8")
    a(f"v_lshl_add_u32 v{XTT}, v{t}, 17, s34")
    t_voffs(a, 2048, True, XT)
    a("s_mul_i32 s29, s3, 4224\ns_add_u32 s29, s29, 16384")
    a(f"v_readlane_b32 s21, v{XTT}, 0\ns_mov_b32 m0, s29\ns_mov_b32 s18, {D*D*2}\ns_mov_b32 s19, 0x20000")
    get_args(a)
    stamp(a, 8)
    if OPT.get("trace"): a("v_mov_b32 v100, 0\ns_mov_b32 s96, 0")
    a(f"s_mov_b64 s[16:17], s[{sU}:{sU+1}]")
    def XTl(j): a(f"buffer_load_dwordx4 v{XT+j}, s[16:19], s21 offen offset:{j*1056} lds")
    def XPl(j): a(f"buffer_load_dwordx4 v{XP+j}, s[8:11], s20 offen offset:{j*1024} lds")
    def xbody(n, hook=False):
        XTl(0)
        a(f"v_readlane_b32 s20, v{XTP}, s25\ns_add_u32 s25, s25, 1")
        if hook:
            a("s_cmp_eq_u32 s25, s54\ns_cbranch_scc1 Lxl_ev")
            a("Lxl_evdone:")
        XTl(1)
        a("Lxl_go2:")
        a(f"s_add_u32 s34, s28, s22\ns_add_u32 s28, s28, {SL}")
        XTl(2)
        a(f"s_cmp_eq_u32 s28, {NSL*SL}\ns_cselect_b32 s28, 0, s28")
        XTl(3)
        a(f"s_mov_b32 m0, s34\nv_readlane_b32 s21, v{XTT}, s25\ns_add_u32 s34, s28, s29\ns_cmp_lt_u32 s25, {n}")
        XPl(0)
    def x0():
        W = OPT.get("W", 4)
        roles(a)
        a("s_add_u32 s35, s32, s33\ns_and_b32 s35, s35, 3")
        lead_table(a, 56, "s35", t)
        a(f"s_and_b32 s34, s32, 4\nv_xor_b32 v{t}, s34, v{t}")
        CS = 24576 if OPT.get("skip1") else 16384
        a(f"s_mul_i32 s34, s32, {56*CS}\ns_mul_i32 s35, s3, {CS//4}\ns_add_u32 s34, s34, s35")
        a(f"v_mul_u32_u24 v{L_TP}, {CS}, v{t}\nv_add_u32 v{L_TP}, s34, v{L_TP}")
        a("s_lshr_b32 s34, s3, 1\ns_lshl_b32 s34, s34, 4\ns_and_b32 s35, s3, 1\ns_lshl_b32 s35, s35, 2\ns_add_u32 s34, s34, s35")
        col_base(a, "s35", "s33", OPT.get("mix", 0))
        a("s_mul_i32 s34, s34, 7168\ns_add_u32 s34, s34, s35")
        a(f"v_mul_u32_u24 v{t}, {64*7168}, v{t}\nv_add_u32 v{L_TT}, s34, v{t}")
        t_voffs(a, 7168, False, mix=OPT.get("mix", 0))
        p_voffs(a, 128)
        if OPT.get("skip1"):
            skip1_adj(a, L_TMP)
            a(f"v_add_u32 v{L_P}, v{L_P}, v{L_TMP}\nv_add_u32 v{L_P+1}, v{L_P+1}, v{L_TMP+1}")
            a(f"v_add_u32 v{L_P+2}, 1024, v{L_P}\nv_add_u32 v{L_P+3}, 1024, v{L_P+1}")
        if OPT.get("spf"):
            OFF = OPT.get("spo", 12)
            NW = OPT.get("spf")
            a(f"s_lshr_b32 s14, s2, 3\ns_mul_i32 s14, s14, {NW}\ns_add_u32 s14, s14, s3\ns_sub_u32 s14, s14, {4-NW}")
            a(f"v_add_u32 v{t}, {OFF}, v0\nv_and_b32 v{t+1}, 7, v{t}\nv_mul_u32_u24 v{t+1}, {28*NW}, v{t+1}\nv_add_u32 v{t+1}, s14, v{t+1}\nv_min_u32 v{t+1}, 511, v{t+1}")
            a(f"v_and_b32 v{t}, 0xf8, v{t}\nv_min_u32 v{t}, 48, v{t}\nv_lshrrev_b32 v{t+2}, 7, v{t+1}\nv_add_u32 v{t}, v{t}, v{t+2}")
            a(f"s_and_b32 s34, s32, 4\nv_xor_b32 v{t}, s34, v{t}\nv_and_b32 v{t+2}, 63, v{t+1}\nv_lshl_add_u32 v{t}, v{t}, 6, v{t+2}\nv_mul_u32_u24 v{t}, 7168, v{t}")
            a("s_bfe_u32 s14, s2, 0x20001\ns_mul_i32 s14, s14, 7\ns_add_u32 s34, s14, 2\ns_andn2_b32 s34, s34, 3\ns_add_u32 s34, s34, 1")
            a("s_add_u32 s35, s34, 4\ns_add_u32 s14, s14, 6\ns_min_u32 s35, s35, s14\ns_sub_u32 s35, s35, s34")
            a(f"v_bfe_u32 v{t+1}, v{t+1}, 6, 1\nv_mul_lo_u32 v{t+1}, s35, v{t+1}\nv_add_u32 v{t+1}, s34, v{t+1}\nv_lshl_add_u32 v{L_SP}, v{t+1}, 8, v{t}")
            a(f"s_cmp_ge_u32 s3, {4-NW}\ns_cselect_b32 s24, {56-OFF}, 0")
        a(f"v_lshrrev_b32 v{t}, 1, v0\nv_add_u32 v{t+1}, 3, v{t}\nv_xor_b32 v{t+1}, s32, v{t+1}\nv_and_b32 v{t+1}, 4, v{t+1}")
        a(f"v_add_u32 v{t}, s32, v{t}\nv_and_or_b32 v{t}, v{t}, 3, v{t+1}\nv_and_b32 v{t+1}, 1, v0\nv_lshl_add_u32 v{t}, v{t}, 1, v{t+1}")
        if OPT.get("cswap"):
            a(f"v_min_u32 v{t+1}, 2, v0\nv_lshrrev_b32 v{t+1}, 1, v{t+1}\nv_and_b32 v{t+1}, s33, v{t+1}\nv_xor_b32 v{t}, v{t}, v{t+1}")
        a(f"s_lshl_b32 s34, s32, 19\ns_lshl_b32 s35, s3, 13\ns_add_u32 s34, s34, s35\nv_lshl_add_u32 v{L_CP}, v{t}, 15, s34")
        a(f"s_lshr_b32 s34, s3, 1\ns_mul_i32 s34, s34, {224*1024}\ns_and_b32 s35, s3, 1\ns_lshl_b32 s14, s33, 1\ns_add_u32 s35, s35, s14\ns_lshl_b32 s35, s35, 12\ns_add_u32 s34, s34, s35")
        a(f"v_mul_u32_u24 v{t}, {2*224*1024}, v{t}\nv_add_u32 v{L_CQ}, s34, v{t}")
        srd(a, 40, sWS, SZ_X, WS_XRF)
        srd(a, 48, sWS, SZ_W + 64, WS_WPF - 64)
        a(f"v_lshlrev_b32 v{L_L16}, 4, v0\nv_lshlrev_b32 v{L_FI}, 8, v0")
        for j in range(4):
            a(f"v_add_u32 v{L_Q+j}, {64 - 16*j}, v{L_L16}")
        a(f"s_lshl_b32 s26, s32, 12\ns_add_u32 s26, s26, {FA1}\ns_lshl_b32 s27, s54, 8\ns_add_u32 s27, s27, s26")
        get_nonce(a)
        a(f"s_cmp_lt_u32 s54, 16\ns_cselect_b32 s54, {OPT.get('xack', 3) + AH + 1}, 255\ns_cmp_eq_u32 s3, 1\ns_cselect_b32 s54, s54, 255\ns_cselect_b32 s55, 2, 0")
        a(f"s_or_b32 s14, s3, s5\ns_cmp_eq_u32 s14, 0\ns_cselect_b32 s54, {255 if OPT.get('nodq') else 13}, s54")
    for j in range(4): XTl(j)
    a(f"s_lshl2_add_u32 s34, s6, s3\ns_lshl_b32 s34, s34, 15\nv_lshl_add_u32 v{XTP}, v{t}, 7, s34")
    a(f"s_lshl_b32 s22, s3, 11\ns_mov_b32 m0, s22\nv_readlane_b32 s20, v{XTP}, 0\nv_readlane_b32 s21, v{XTT}, 1")
    p_voffs(a, 2048, XP, 2)
    srd(a, 8, sX, SZ_X)
    XPl(0)
    XPl(1)
    if OPT.get("pre", 1):
        a(f"s_add_u32 m0, s29, {SL}\ns_mov_b32 s25, 2\ns_mov_b32 s28, {SL}\nv_readlane_b32 s20, v{XTP}, 1")
        XTl(0)
        XTl(1)
        x0()
        a("s_branch Lxl_go2")
    else:
        a(f"s_add_u32 m0, s29, {SL}\ns_mov_b32 s25, 1\ns_mov_b32 s28, {SL}")
        x0()
        a("s_branch Lxl_go")
    align(a, 8)
    a("Lxl_loop:")
    XPl(1)
    trace(a, 2)
    a("s_mov_b32 m0, s34")
    if AH == 3: a("s_cmp_lt_u32 s25, 3\ns_cbranch_scc1 Lxl_go")
    a(f"s_waitcnt vmcnt({6*(AH-1)})\ns_barrier")
    a("Lxl_go:")
    xbody(16, True)
    a("s_cbranch_scc1 Lxl_loop")
    XPl(1)
    stamp(a, 1)
    a("s_cmp_lg_u32 s5, 0\ns_cbranch_scc1 Ll_h")
    srd(a, 8, sWS, SZ_WQ, WS_WQ)
    srd(a, 16, sV, F * F * 2)
    a("s_lshl_b32 s22, s3, 12")

    AUX = {0: "", 1: " sc1", 2: " sc0 sc1", 3: " sc0"}
    PAUX, TAUX = AUX[OPT.get("psc1", 1)], AUX[OPT.get("tsc1", 0)]
    def T(j): a(f"buffer_load_dwordx4 v{L_T+j}, s[16:19], s21 offen offset:{j*1056}{TAUX} lds")
    def P(j): a(f"buffer_load_dwordx4 v{L_P+j}, s[8:11], s20 offen offset:{j*1024}{PAUX} lds")
    a(f"v_readlane_b32 s21, v{L_TT}, 0\nv_readlane_b32 s20, v{L_TP}, 0\ns_mov_b32 m0, s29")
    WSH = OPT.get("wsh", 2)
    a(f"s_mul_i32 s26, s32, {14*1024}\ns_add_u32 s26, s26, {FA + (WSH - 1) * 1024}")
    a(f"s_cmp_eq_u32 s3, 0\ns_cselect_b32 s54, {4*WSH - 4}, 255\ns_cmp_eq_u32 s3, 1\ns_cselect_b32 s54, 8, s54\ns_mov_b32 s55, 0")
    if AH == 3:
        a("s_waitcnt vmcnt(12)\ns_barrier")
        for j in range(4): T(j)
        a(f"s_mov_b32 m0, s22\nv_readlane_b32 s21, v{L_TT}, 1")
        for j in range(4): P(j)
        a(f"s_add_u32 m0, s29, {SL}\ns_mov_b32 s25, 1\ns_mov_b32 s28, {SL}")
        a("s_waitcnt vmcnt(14)\ns_barrier")
    else:
        a("s_mov_b32 s25, 0")
        a("s_waitcnt vmcnt(6)\ns_barrier")
    a("s_branch Lw_go")

    def head():
        P(3)
        trace(a)
        a("s_add_u32 m0, s28, s29")
        a(f"s_waitcnt vmcnt({8*(AH-1)})\ns_barrier")
    def first():
        T(0)
        a(f"v_readlane_b32 s20, v{L_TP}, s25\ns_add_u32 s25, s25, 1")
    def rest(fill=()):
        n = (len(fill) + 6) // 7
        g = ["\n".join(fill[i*n:(i+1)*n]) for i in range(7)]
        def gap(i):
            if g[i]: a(g[i])
        gap(0)
        T(1)
        a(f"s_add_u32 s34, s28, s22\ns_add_u32 s28, s28, {SL}")
        gap(1)
        T(2)
        a(f"s_cmp_eq_u32 s28, {NSL*SL}\ns_cselect_b32 s28, 0, s28")
        gap(2)
        T(3)
        a(f"s_mov_b32 m0, s34\nv_readlane_b32 s21, v{L_TT}, s25")
        gap(3)
        P(0)
        if OPT.get("spf"):
            a(f"s_cmp_ge_u32 s25, s24\ns_cbranch_scc1 Lw_nsp\nv_readlane_b32 s23, v{L_SP}, s25")
            for q in range(4):
                a("s_buffer_load_dword s97, s[16:19], s23" + (f" offset:{64*q}" if q else ""))
            a("Lw_nsp:")
        gap(4)
        P(1)
        gap(5)
        a(f"s_cmp_lt_u32 s25, 56")
        P(2)
        gap(6)
    align(a, 1)
    a("Lw_loop:")
    head()
    a("Lw_go:")
    first()
    a(f"s_cmp_eq_u32 s25, s54\ns_cbranch_scc1 Lw_ev")
    a("Lw_evdone:")
    rest()
    a("s_cbranch_scc1 Lw_loop")
    P(3)
    stamp(a, 4)
    a(f"s_lshl_b32 s22, s3, 13\ns_mul_i32 s29, s3, {4*1040}\ns_add_u32 s29, s29, {CQ0}")
    def PC(st, slot, mid=None):
        a(f"v_readlane_b32 s20, v{L_CP}, {st}\ns_add_u32 m0, s22, {slot}\ns_nop 3")
        for j in range(8):
            if j == 4:
                a("s_add_u32 m0, m0, 4096\ns_add_u32 s20, s20, 4096")
                if mid: a(mid)
            a(f"buffer_load_dwordx4 v{L_L16}, s[40:43], s20 offen offset:{(j&3)*1024} sc1 lds")
    def QC(st, slot):
        a(f"v_readlane_b32 s21, v{L_CQ}, {st}\ns_add_u32 m0, s29, {slot}\ns_nop 3")
        for j in range(4):
            a(f"buffer_load_dwordx4 v{L_Q+j}, s[48:51], s21 offen offset:{j*1040} sc1 lds")
    for i in range(AH):
        a(f"s_waitcnt vmcnt({8*(AH-1)})\ns_barrier")
        PC(i, i * SL)
    a("s_barrier")
    a(f"s_lshl_b32 s26, s33, 3\ns_add_u32 s26, s26, s32\ns_lshl_b32 s27, s26, 8\ns_add_u32 s27, s27, {FB}")
    a(f"s_andn2_b32 s26, s27, 0x300\ns_xor_b32 s26, s26, 0x400")
    a(f"s_waitcnt vmcnt({8*(AH-1)})\ns_barrier")
    sflag_sample(a)
    if AH == 2: PC(2, 2 * SL)
    a("s_cmp_lg_u32 s3, 0")
    a("s_waitcnt vmcnt(8)\ns_barrier")
    a("s_cbranch_scc1 Lw_nfb")
    flag_store(a, "s27", L_TMP, L_L16)
    a("Lw_nfb:")
    stamp(a, 6)
    a(f"s_mov_b32 s25, 5\ns_mov_b32 s28, {2*SL}\ns_mov_b32 s27, {2*SQ}")
    a("s_cmp_eq_u32 s3, 0\ns_cselect_b32 s54, 9, 255")
    LM = OPT.get("late", 0)
    if LM == 1: PC(3, 0)
    sflag_check(a, "Lw_pb", L_FI, L_FL)
    stamp(a, 7)
    a("s_xor_b32 s26, s26, 0x400")
    QC(2, 2 * SQ)
    QC(3, 0)
    if LM == 0:
        PC(3, 0)
        a("s_waitcnt vmcnt(12)\ns_barrier")
    elif LM == 1:
        a("s_waitcnt vmcnt(4)\ns_barrier")
    else:
        PC(3, 0, "s_waitcnt vmcnt(8)\ns_barrier")
    if LM < 2:
        QC(4, SQ)
        PC(4, SL, "s_waitcnt vmcnt(8)\ns_barrier")
    else:
        QC(4, SQ)
        a("s_waitcnt vmcnt(4)\ns_barrier")
        PC(4, SL)
        QC(5, 2 * SQ)
        PC(5, 2 * SL, "s_waitcnt vmcnt(8)\ns_barrier")
        a("s_mov_b32 s25, 6\ns_mov_b32 s28, 0\ns_mov_b32 s27, 0")
    align(a, 32)
    a("Lw_cloop:")
    a("s_cmp_lg_u32 s25, s54\ns_cbranch_scc1 Lw_c3")
    if OPT.get("warm", 0) & 4: touch_code(a, "L_tc2", "Lc_tail", "Lc_end", 250, 252, n=1, back=False)
    sflag_sample(a)
    a("Lw_c3:")
    trace(a, 3)
    QC("s25", "s27")
    PC("s25", "s28")
    a(f"s_add_u32 s27, s27, {SQ}\ns_add_u32 s28, s28, {SL}\ns_cmp_eq_u32 s28, {3*SL}\ns_cselect_b32 s28, 0, s28\ns_cselect_b32 s27, 0, s27")
    trace(a, 4)
    a("s_cmp_lg_u32 s25, s54\ns_cbranch_scc1 Lw_pc_x")
    sflag_check(a, "Lw_pc", L_FI, L_FL)
    a("s_add_u32 s25, s25, 1\ns_cmp_lt_u32 s25, 16")
    a("s_waitcnt vmcnt(12)\ns_barrier")
    a("s_cbranch_scc1 Lw_cloop")
    a("s_waitcnt vmcnt(0)\ns_barrier")
    trace_out(a)
    stamp_out(a, True)
    a("s_endpgm")
    def events(L, done, evs):
        a(f"{L}:")
        for i, ev in enumerate(evs):
            if i + 1 < len(evs): a(f"s_cmp_lg_u32 s55, {i}\ns_cbranch_scc1 {L}{i+1}")
            a(f"s_mov_b32 s55, {i+1}")
            ev()
            a(f"s_branch {done}")
            if i + 1 < len(evs): a(f"{L}{i+1}:")

    a("Lw_ev:")
    a("s_cmp_lg_u32 s3, 0\ns_cbranch_scc1 Lw_evx")
    a("s_bitcmp1_b32 s25, 0\ns_cbranch_scc1 Lw_evc")
    a("s_add_u32 s26, s26, 2048\ns_add_u32 s54, s54, 1")
    sflag_sample(a)
    a("s_branch Lw_evdone")
    a("Lw_evc:")
    sflag_check(a, "Lw_pa", L_FI, L_FL)
    a("s_add_u32 s54, s54, 7\ns_cmp_gt_u32 s54, 48\ns_cselect_b32 s54, 255, s54")
    a("s_branch Lw_evdone")
    def b0():
        own_fx(a)
        flag_store(a, "s27", L_TMP, L_L16)
        a("s_mov_b32 s54, 52")
    def b1():
        a(f"s_lshl_b32 s26, s32, 13\ns_add_u32 s26, s26, {FX}\ns_mov_b32 s54, 55")
        flag_load(a, "s26", 32, L_FI, L_FL)
    def b2():
        flag_poll(a, "Lw_px", "s26", 32, L_FI, L_FL, loaded=True)
        a("s_mov_b32 s54, 255")
    events("Lw_evx", "Lw_evdone", [b0, b1, b2])

    def x1():
        flag_load(a, "s26", 16, L_FI, L_FL)
        a("s_mov_b32 s54, 16")
    def x2():
        stamp(a, 11)
        flag_poll(a, "Lw_pa0", "s26", 16, L_FI, L_FL, loaded=True)
        stamp(a, 3)
        a("s_mov_b32 s54, 255")
    def x3():
        flag_store(a, "s27", L_TMP, L_L16)
        stamp(a, 2)
        a("s_mov_b32 s54, 255")
    events("Lxl_ev", "Lxl_evdone", [x1, x2, x3])

    a("Ll_h:")
    for i in range(AH):
        a(f"s_waitcnt vmcnt({6*(AH-1-i)})\ns_barrier")
    stamp_out(a, True)
    a("s_endpgm")


def helper(a):
    a("; ---- helper workgroups: dequantisation")
    a("s_and_b32 s32, s2, 7\ns_bfe_u32 s33, s2, 0x20003")
    BA = (4, 68)
    HQ, HS, HL = 132, 134, 135
    nt = " nt" if OPT.get("dq_nt", 1) else ""
    a("s_lshl_b32 s14, s32, 3\ns_add_u32 s14, s14, s4")
    a(f"s_mul_i32 s34, s14, {16*14336}\nv_lshrrev_b32 v1, 3, v0\nv_and_b32 v2, 7, v0")
    a(f"v_mul_u32_u24 v1, 14336, v1\nv_lshl_add_u32 v1, v2, 4, v1\nv_add_u32 v{HQ}, s34, v1\nv_add_u32 v{HQ+1}, {8*14336}, v{HQ}")
    a(f"s_lshr_b32 s34, s4, 2\ns_mul_i32 s34, s34, 7168\nv_lshl_add_u32 v{HS}, v2, 3, s34\nv_lshlrev_b32 v{HL}, 4, v0")
    CS = 24576 if OPT.get("skip1") else 16384
    if OPT.get("skip1"): skip1_adj(a, 140)
    else: a("v_mov_b32 v140, 0\nv_mov_b32 v141, 0")
    a(f"v_add_u32 v140, v140, v{HL}\nv_add_u32 v141, v141, v{HL}")
    a(f"s_mul_i32 s24, s32, {56*CS}\ns_mul_i32 s34, s4, {CS//8}\ns_add_u32 s24, s24, s34")
    def start(h):
        B = BA[h]
        a("s_add_u32 s15, s33, s23\ns_and_b32 s15, s15, 3\ns_lshl_b32 s14, s23, 2\ns_add_u32 s15, s15, s14\ns_xor_b32 s15, s15, s22\ns_add_u32 s23, s23, 1")
        a("s_lshl_b32 s25, s15, 8")
        if h == 0:
            a(f"s_cmp_ge_u32 s15, 56\ns_cselect_b32 s14, 0x40000000, 0\nv_or_b32 v{HQ}, s14, v{HQ}\nv_or_b32 v{HQ+1}, s14, v{HQ+1}")
        a(f"s_mul_i32 s14, s15, {CS}\ns_add_u32 s{20+h}, s24, s14\ns_lshl_b32 s14, s15, 7\nv_add_u32 v{B+5}, s14, v{HS}")
        for rg in range(2):
            for t in range(2):
                r = B + 32 + rg * 8 + t * 4
                a(f"buffer_load_dwordx4 v[{r}:{r+3}], v{HQ+rg}, s[16:19], s25 offen offset:{128*t}{nt}")
    def scales(h):
        B = BA[h]
        for t in range(2):
            a(f"ds_read_b64 v[{B+8+2*t}:{B+9+2*t}], v{B+5} offset:{64*t}")
            a(f"ds_read_b64 v[{B+12+2*t}:{B+13+2*t}], v{B+5} offset:{14336 + 64*t}")
    WSH = OPT.get("wsh", 2)
    a(f"s_mov_b32 s23, {WSH}\ns_and_b32 s22, s32, 4")
    a("s_min_u32 s14, s4, 6\ns_lshl_b32 s26, s14, 11\ns_mul_i32 s35, s32, 14336\ns_add_u32 s35, s35, s26\ns_mov_b32 m0, s26")
    get_args(a)
    for i, p in enumerate((sSC, sZE)):
        srd(a, 8, p, 16 * F * 2)
        for j in range(2):
            a(f"buffer_load_dwordx4 v{HL}, s[8:11], s35 offen offset:{j*1024} lds")
        if i == 0: a("s_add_u32 m0, s26, 14336")
    srd(a, 16, sQW, D * F * 4)
    start(0)
    start(1)
    srd(a, 8, sWS, SZ_WQ, WS_WQ)
    a(f"s_mul_i32 s27, s32, 56\ns_add_u32 s27, s27, s33\ns_lshl_b32 s27, s27, 8\ns_add_u32 s27, s27, {FA + (WSH + 1) * 1024}")
    get_nonce(a)
    if OPT.get("hx", 0) & 2:
        for i in range(5):
            flag_store(a, "s27", 136, HL)
            a("s_add_u32 s27, s27, 2048")
        a("s_branch Lh_skip")
    a("s_waitcnt vmcnt(8)\ns_barrier")
    scales(0)
    a("s_waitcnt vmcnt(4)")
    a("s_branch Lh_mid")
    a("Lh_loop:")
    for h in range(2):
        start(1 - h)
        scales(h)
        if h == 0:
            a("s_waitcnt vmcnt(6)")
        else:
            a(f"s_cmp_eq_u32 s23, {WSH + 3}\ns_cselect_b32 s14, 1, s4\ns_cmp_lg_u32 s14, 0")
            a("s_waitcnt vmcnt(6)\ns_barrier")
            a(f"s_cbranch_scc1 Lh_nf{h}")
            flag_store(a, "s27", 136, HL)
            a("s_add_u32 s27, s27, 2048")
            a(f"Lh_nf{h}:")
        if h == 0: a("Lh_mid:")
        a("s_waitcnt lgkmcnt(0)")
        a("\n".join(dq_unpack(BA[h])))
        for rg in range(2):
            a("\n".join(dq_rows(BA[h], rg, f"s{20+h}", 140 + rg)))
    a("s_cmp_lt_u32 s23, 15\ns_cbranch_scc1 Lh_loop")
    a("Lh_skip:")
    a("s_cmp_lg_u32 s4, 0")
    a("s_waitcnt vmcnt(0)\ns_barrier")
    a("s_cbranch_scc1 Lh_nf")
    flag_store(a, "s27", 136, HL)
    a("Lh_nf:")
    stamp(a, 5)
    R0, R1 = OPT.get("pf0", 14), OPT.get("pf1", 14)
    if R0 < R1:
        a("s_and_b32 s14, s32, 1\ns_lshl_b32 s14, s14, 2\ns_add_u32 s14, s14, s33\ns_lshl_b32 s14, s14, 3\ns_add_u32 s14, s14, s4")
        a(f"s_mul_i32 s14, s14, {4*7168}\ns_lshr_b32 s34, s32, 1\ns_mul_i32 s34, s34, 1792\ns_add_u32 s14, s14, s34\ns_add_u32 s14, s14, {R0*256*7168}")
        a(f"v_lshrrev_b32 v1, 4, v0\nv_mul_u32_u24 v1, 7168, v1\nv_and_b32 v2, 15, v0\nv_min_u32 v2, 13, v2\nv_lshl_add_u32 v1, v2, 7, v1")
        srd(a, 16, sV, F * F * 2)
        a(f"s_mov_b32 s23, {R1 - R0}")
        a("Lh_pf:")
        a("buffer_load_dword v2, v1, s[16:19], s14 offen")
        a(f"s_add_u32 s14, s14, {256*7168}\ns_sub_u32 s23, s23, 1\ns_cmp_lg_u32 s23, 0\ns_waitcnt vmcnt(0)\ns_cbranch_scc1 Lh_pf")
    stamp(a, 6)
    if OPT.get("hx", 0) & 1:
        own_fx(a)
        flag_store(a, "s27", 136, HL)
        a("s_endpgm")
    a("s_branch L_role")


def gen(opt):
    global OPT
    OPT = opt
    a = Asm()
    a(HDR.rstrip())
    a(f"; @launch grid=(256,1,1) block=(512,1,1) lds={LDS_BYTES}")
    a('.amdgcn_target "amdgcn-amd-amdhsa--gfx950"\n.text')
    a(f".globl {NAME}\n.p2align 8\n.type {NAME},@function\n{NAME}:")
    a("s_cmp_ge_u32 s2, 256\ns_cbranch_scc1 L_end")
    stamp(a, 0)
    a("s_load_dwordx16 s[36:51], s[0:1], 0")
    a(f"s_load_dwordx2 s[{sWS}:{sWS+1}], s[0:1], 64")
    a("v_lshrrev_b32 v1, 6, v0")
    a("v_and_b32 v0, 63, v0")
    a("v_readfirstlane_b32 s4, v1")
    a("s_bfe_u32 s6, s2, 0x20001\ns_bfe_u32 s34, s2, 0x30003\ns_lshl3_add_u32 s6, s6, s34")
    a("s_and_b32 s7, s2, 1\ns_lshr_b32 s34, s2, 6\ns_lshl2_add_u32 s7, s7, s34")
    a("s_and_b32 s3, s4, 3")
    a("s_cmp_ge_u32 s2, 224\ns_cselect_b32 s5, 1, 0\ns_cbranch_scc1 L_h")
    a("L_role:")
    a("s_cmp_lt_u32 s4, 4\ns_cbranch_scc1 L_c")
    loader(a)
    a("L_h:")
    helper(a)
    a("L_c:")
    compute(a)
    a("L_end:\ns_endpgm")
    a('.section .rodata,"a"\n.p2align 6')
    a(kd(NAME, 256, 256))
    return a.text()


if __name__ == "__main__":
    opt = dict(kv.split("=") for kv in sys.argv[2:])
    opt = {k: (int(v) if v.lstrip("-").isdigit() else v) for k, v in opt.items()}
    open(sys.argv[1], "w").write(gen(opt))
```

```python
import sys
from asm import Asm, kd

NAME = "standalone__weight_only_int_quip__prompt_kernel"
S, D, F = 2048, 1024, 3584
WS_FLAG = 0
FA, FX, FB, EPOCH, FA1 = 0, 128 << 10, 192 << 10, 252 << 10, 256 << 10
SZ_FLAG = 288 << 10
WS_WQ = 1 << 20
WS_XRF = 13 << 20
WS_WPF = 20 << 20
WS_STAMP = 64 << 20
SZ_W = D * F * 2
SZ_X = S * D * 2
SZ_WQ = 8 * 56 * 24576
SPIN_MAX = 1 << 15

HDR = """; Kernarg layout for this problem (72 bytes, ptrs only, base s[0:1]):
;
"""
sX, sQW, sSC, sZE, sU, sV, sOUT, sWS, sNONCE = 36, 38, 40, 42, 44, 46, 48, 30, 52

OPT = {}


def srd(a, d, b, nbytes, add=0):
    if add:
        a(f"s_add_u32 s{d}, s{b}, {add}")
        a(f"s_addc_u32 s{d+1}, s{b+1}, 0")
    else:
        a(f"s_mov_b32 s{d}, s{b}")
        a(f"s_mov_b32 s{d+1}, s{b+1}")
    a(f"s_mov_b32 s{d+2}, {nbytes}")
    a(f"s_mov_b32 s{d+3}, 0x20000")


def interleave(a, mf, others):
    for i, m in enumerate(mf):
        if isinstance(m, tuple):
            for p in m[0]:
                a(p)
            a(m[1])
        else:
            a(m)
        for o in others.get(i, []):
            a(o)


class Sched:
    def __init__(self, a):
        self.a, self.q = a, []
    def read(self, r):
        self.a(r[0]); self.q.append(r[1])
    def need(self, regs):
        idx = [i for i, d in enumerate(self.q) if d in regs]
        if idx:
            n = min(len(self.q) - 1 - idx[-1], 15)
            self.a(f"s_waitcnt lgkmcnt({n})")
            self.q = self.q[len(self.q) - n:] if n else []
    def drain(self, extra=""):
        self.a(f"s_waitcnt {extra}lgkmcnt(0)"); self.q = []
    def run(self, mf, reads=(), fill=None, every=1, group=1):
        reads = list(reads); nxt = 0
        for i, (m, A, B) in enumerate(mf):
            if i % group == 0:
                self.need({x for mm in mf[i:i + group] for x in mm[1:]})
            self.a(m)
            if reads and i >= nxt:
                k = next((k for k, r in enumerate(reads) if r[2] <= i), None)
                if k is not None:
                    self.read(reads.pop(k)); nxt = i + every
            for o in (fill or {}).get(i, []): self.a(o)
        for r in reads: self.read(r)


def chain(acc, A, B, rts, cs, zero=False):
    out = []
    for n, rt in enumerate(rts):
        for c in (cs if n % 2 == 0 else cs[::-1]):
            for ks in range(2):
                out.append((mfma(acc(rt, c), A(rt, ks), B(c, ks), zero and ks == 0), A(rt, ks), B(c, ks)))
    return out


NSTAMP = 12
def stamp(a, idx):
    if not OPT.get("stamp"): return
    a(f"s_memrealtime s[{60+2*idx}:{61+2*idx}]")
    if idx == 0:
        a("s_memtime s[86:87]")
        for i in range(1, NSTAMP): a(f"s_mov_b32 s{60+2*i}, 0")


def stamp_out(a, loader):
    if not OPT.get("stamp"): return
    a("s_mov_b64 exec, -1\ns_waitcnt vmcnt(0)")
    a(f"s_memrealtime s[84:85]\ns_memtime s[88:89]\ns_waitcnt lgkmcnt(0)")
    a("s_sub_u32 s88, s88, s86")
    srd(a, 92, sWS, 1 << 20, WS_STAMP)
    a(f"s_lshl_b32 s90, s2, 3\ns_add_u32 s90, s90, s3\ns_add_u32 s90, s90, {4 if loader else 0}\ns_lshl_b32 s90, s90, 6")
    a("v_mov_b32 v0, 0")
    a("s_getreg_b32 s89, hwreg(HW_REG_XCC_ID)\ns_getreg_b32 s91, hwreg(HW_REG_HW_ID)")
    vals = [f"s{60+2*i}" for i in range(NSTAMP + 1)] + ["s88", "s89", "s91"]
    for i, v in enumerate(vals):
        a(f"v_mov_b32 v1, {v}\nbuffer_store_dword v1, v0, s[92:95], s90 offen offset:{4*i}")


def trace(a, mode=1):
    if OPT.get("trace") != mode: return
    a("s_waitcnt lgkmcnt(0)\ns_mov_b32 m0, s25\nv_writelane_b32 v100, s96, m0")
    a("s_cmp_eq_u32 s3, 2\ns_cbranch_scc1 1f\ns_memrealtime s[96:97]\ns_branch 2f\n1:\ns_memtime s[96:97]\n2:")


def trace_out(a):
    if not OPT.get("trace"): return
    srd(a, 92, sWS, 1 << 20, WS_STAMP + (1 << 20))
    a(f"s_lshl_b32 s90, s2, 2\ns_add_u32 s90, s90, s3\ns_lshl_b32 s90, s90, 8\nv_lshlrev_b32 v1, 2, v0")
    a("buffer_store_dword v100, v1, s[92:95], s90 offen")


def mfma(acc, A, B, zero=False):
    C = "0" if zero else f"v[{acc}:{acc+3}]"
    return f"v_mfma_f32_16x16x32_bf16 v[{acc}:{acc+3}], v[{A}:{A+3}], v[{B}:{B+3}], {C}"


def flag_store(a, soff, vt, lane16):
    for i in range(4): a(f"v_mov_b32 v{vt+i}, s{sNONCE}")
    a("s_mov_b64 exec, 0xff")
    a(f"buffer_store_dwordx4 v[{vt}:{vt+3}], v{lane16}, s[56:59], {soff} offen sc1")
    a("s_mov_b64 exec, -1")


def flag_load(a, soff, n, vidx, vt):
    a(f"s_mov_b64 exec, {hex((1 << n) - 1)}")
    a(f"buffer_load_dword v{vt}, v{vidx}, s[56:59], {soff} offen sc1")
    a("s_mov_b64 exec, -1")


def flag_poll(a, L, soff, n, vidx, vt, loaded=False):
    a(f"s_mov_b32 s53, {SPIN_MAX}")
    if loaded: a(f"s_branch {L}_c")
    a(f"{L}:")
    flag_load(a, soff, n, vidx, vt)
    a("s_sub_u32 s53, s53, 1\ns_cmp_eq_u32 s53, 0")
    a(f"s_cbranch_scc1 {L}_x")
    a("s_waitcnt vmcnt(0)")
    a(f"{L}_c:")
    a(f"v_cmp_ne_u32 vcc, s{sNONCE}, v{vt}")
    a(f"s_and_b32 vcc_lo, vcc_lo, {hex((1 << n) - 1)}")
    a(f"s_cbranch_scc1 {L}")
    a(f"{L}_x:")


def sflag_sample(a):
    a(f"s_add_u32 s12, s{sWS}, s26\ns_addc_u32 s13, s{sWS+1}, 0")
    for q in range(4):
        a(f"s_load_dword s{98+q}, s[12:13], {WS_FLAG + q*256}")


def sflag_test(a):
    a("s_waitcnt lgkmcnt(0)")
    a(f"s_xor_b32 s14, s98, s{sNONCE}")
    for q in range(1, 4):
        a(f"s_xor_b32 s15, s{98+q}, s{sNONCE}\ns_or_b32 s14, s14, s15")


def sflag_check(a, L, vidx, vt):
    sflag_test(a)
    a(f"s_cbranch_scc0 {L}_x")
    flag_poll(a, L, "s26", 4, vidx, vt)


def touch_code(a, L, lo, hi, va, vd, lane="v0", sh=7, n=3, back=True):
    a(f"s_getpc_b64 s[12:13]\n{L}:")
    if back: a(f"s_sub_u32 s12, s12, {L}-{lo}\ns_subb_u32 s13, s13, 0")
    else: a(f"s_add_u32 s12, s12, {lo}-{L}\ns_addc_u32 s13, s13, 0")
    a(f"v_lshlrev_b32 v{va}, {sh}, {lane}")
    for i in range(n):
        a(f"v_min_u32 v{va+1}, {hi}-{lo}-4, v{va}\nglobal_load_dword v{vd}, v{va+1}, s[12:13]\nv_add_u32 v{va}, 8192, v{va}")


def align(a, bit):
    if OPT.get("al", 0) & bit:
        a(f".p2align {OPT.get('alp', 6)}")
        for i in range(OPT.get("alo", 0)): a("s_nop 0")


def get_args(a):
    a("s_waitcnt lgkmcnt(0)")
    a(f"s_load_dword s{sNONCE}, s[{sWS}:{sWS+1}], {WS_FLAG + EPOCH}")


def get_nonce(a):
    srd(a, 56, sWS, SZ_FLAG, WS_FLAG)
    a(f"s_waitcnt lgkmcnt(0)\ns_mul_i32 s{sNONCE}, s{sNONCE}, 1664525\ns_add_u32 s{sNONCE}, s{sNONCE}, 1013904223")


def dq_addr(a, B, nrg, wreg, sout):
    sh = {2: 3, 4: 2}[nrg]
    a(f"s_lshl_b32 s14, s32, {sh}\ns_add_u32 s14, s14, {wreg}")
    a(f"s_mul_i32 s34, s14, {nrg*8*14336}\ns_lshl_b32 s35, s15, 8\ns_add_u32 s34, s34, s35")
    a(f"s_lshr_b32 s14, s14, {sh-1}\ns_mul_i32 s35, s14, 7168\ns_lshl_b32 s14, s15, 7\ns_add_u32 s35, s35, s14")
    a(f"v_lshrrev_b32 v{B}, 3, v0\nv_and_b32 v{B+5}, 7, v0")
    a(f"v_mul_u32_u24 v{B}, 14336, v{B}\nv_lshl_add_u32 v{B}, v{B+5}, 4, v{B}\nv_add_u32 v{B}, s34, v{B}")
    for rg in range(1, nrg):
        a(f"v_add_u32 v{B+rg}, {rg*8*14336}, v{B}")
    a(f"v_lshl_add_u32 v{B+5}, v{B+5}, 3, s35\nv_lshlrev_b32 v{B+4}, 4, v0")
    a(f"s_mul_i32 {sout}, s32, 56\ns_add_u32 {sout}, {sout}, s15\ns_lshl_b32 {sout}, {sout}, {sh}\ns_add_u32 {sout}, {sout}, {wreg}\ns_lshl_b32 {sout}, {sout}, {14-sh}")


def dq_issue(a, B, rgs, scales=True):
    nt = " nt" if OPT.get("dq_nt", 1) else ""
    if scales:
        for t in range(2):
            a(f"global_load_dwordx2 v[{B+8+2*t}:{B+9+2*t}], v{B+5}, s[{sSC}:{sSC+1}] offset:{64*t}")
            a(f"global_load_dwordx2 v[{B+12+2*t}:{B+13+2*t}], v{B+5}, s[{sZE}:{sZE+1}] offset:{64*t}")
    for rg in rgs:
        for t in range(2):
            r = B + 32 + rg * 8 + t * 4
            a(f"global_load_dwordx4 v[{r}:{r+3}], v{B+rg}, s[{sQW}:{sQW+1}] offset:{128*t}{nt}")


def dq_unpack(B):
    o = []
    for j in range(4):
        o += [f"v_lshlrev_b32 v{B+16+2*j}, 16, v{B+8+j}", f"v_and_b32 v{B+17+2*j}, 0xffff0000, v{B+8+j}"]
        o += [f"v_lshlrev_b32 v{B+24+2*j}, 16, v{B+12+j}", f"v_and_b32 v{B+25+2*j}, 0xffff0000, v{B+12+j}"]
    return o


def dq_rows(B, rg, sout, vaddr=None):
    r = B + 32 + rg * 8
    o = [f"v_cvt_f32_i32 v{r+e}, v{r+e}" for e in range(8)]
    o += [f"v_sub_f32 v{r+e}, v{r+e}, v{B+24+e}" for e in range(8)]
    o += [f"v_cvt_pk_bf16_f32 v{B+8+p}, v{r+2*p}, v{r+2*p+1}" for p in range(4)]
    for p in range(4):
        o += [f"v_lshlrev_b32 v{r+2*p}, 16, v{B+8+p}", f"v_and_b32 v{r+2*p+1}, 0xffff0000, v{B+8+p}"]
    o += [f"v_mul_f32 v{r+e}, v{r+e}, v{B+16+e}" for e in range(8)]
    o += [f"v_cvt_pk_bf16_f32 v{r+p}, v{r+2*p}, v{r+2*p+1}" for p in range(4)]
    o.append(f"buffer_store_dwordx4 v[{r}:{r+3}], v{vaddr or B+4}, s[8:11], {sout} offen offset:{rg*1024} sc1")
    return o


def dq_now(a, B, nrg, sout):
    a(f"s_waitcnt vmcnt({2*nrg})")
    a("\n".join(dq_unpack(B)))
    for rg in range(nrg):
        a(f"s_waitcnt vmcnt({2*nrg - 2 - 2*rg + rg})")
        a("\n".join(dq_rows(B, rg, sout)))


SL = 16384 + 16 * 1056
NSL = 4
CQ0 = 3 * SL
SQ = 16 * 1040
LDS_BYTES = max(NSL * SL, CQ0 + 3 * SQ)

B_FR = 64
B_PA = 230
B_TA = 234
V_L16 = 248
V_T = 240
def bP(rt, ks, buf=0): return B_FR + buf * 64 + (rt * 2 + ks) * 4
def bT(c, ks): return B_FR + 32 + (c * 2 + ks) * 4
def b_mf(cs, buf=0):
    if not OPT.get("cmaj", 1): return chain(lambda rt, c: (rt * 4 + c) * 4, bP, bT, range(4), cs)
    return [(mfma((rt * 4 + c) * 4, bP(rt, ks, buf), bT(c, ks)), bP(rt, ks, buf), bT(c, ks))
            for c in cs for rt in (range(4) if c % 2 == 0 else range(3, -1, -1)) for ks in range(2)]


def b_rdP(slot, rt, at=0):
    b = slot & 1 if OPT.get("cmaj", 1) else 0
    return [(f"ds_read_b128 v[{bP(rt,ks,b)}:{bP(rt,ks,b)+3}], v{B_PA + (slot//2)*2 + ks} offset:{(slot%2)*SL + rt*2048}", bP(rt, ks, b), at) for ks in range(2)]


def b_rdT(slot, c):
    return [(f"ds_read_b64_tr_b16 v[{bT(c,ks)+t*2}:{bT(c,ks)+t*2+1}], v{B_TA + slot//2} offset:{(slot%2)*SL + 16384 + ks*8448 + t*512 + c*32}", bT(c, ks), 0)
            for ks in range(2) for t in range(2)]


def row_read_base(a, dst, t0, wshift):
    a(f"v_and_b32 v{t0}, 15, v0\nv_lshrrev_b32 v{t0+1}, 4, v0")
    a(f"v_lshrrev_b32 v{t0+2}, 1, v{t0}\nv_xor_b32 v{t0+2}, v{t0+2}, v{t0+1}\nv_lshlrev_b32 v{t0+2}, 4, v{t0+2}\nv_lshl_add_u32 v{t0+2}, v{t0}, 7, v{t0+2}")
    a(f"s_lshr_b32 s14, s3, 1\ns_lshl_b32 s14, s14, {wshift}\nv_add_u32 v{dst}, s14, v{t0+2}\nv_xor_b32 v{dst+1}, 64, v{dst}")


def tr_read_base(a, dst, t0):
    a(f"v_bfe_u32 v{t0}, v0, 2, 3\nv_mul_u32_u24 v{t0}, 1056, v{t0}\nv_lshrrev_b32 v{t0+1}, 5, v0\nv_lshl_add_u32 v{t0}, v{t0+1}, 8, v{t0}")
    a(f"v_and_b32 v{t0+1}, 3, v0\nv_lshl_add_u32 v{t0}, v{t0+1}, 3, v{t0}\ns_and_b32 s14, s3, 1\ns_lshl_b32 s14, s14, 7")
    a(f"v_add_u32 v{dst}, s14, v{t0}")


C_FR = 128
C_PA = 224
C_QA = 227
C_WA = 228
C_SA = 229


def cP(rt, ks): return C_FR + (rt * 2 + ks) * 4
def cQ(c, ks): return C_FR + 32 + (c * 2 + ks) * 4
def c_mf(cs, rts=range(4), zero=False, preg=None, qreg=None):
    return chain(lambda rt, c: (rt * 8 + c) * 4, preg or cP, qreg or cQ, rts, cs, zero)


def c_rdP(slot, rt, at=0, dst=None):
    d = rt if dst is None else dst
    return [(f"ds_read_b128 v[{cP(d,ks)}:{cP(d,ks)+3}], v{C_PA+slot} offset:{ks*16384 + rt*1024}", cP(d, ks), at) for ks in range(2)]


def c_rdQ(slot, cs, qset=None):
    def off(c): return (c >> 2) * 4160 + (c & 3) * 16 if OPT.get("tailq") else c * 16
    def reg(c, ks): return cQ(c if qset is None else 4 * qset + (c & 3), ks)
    return [(f"ds_read_b128 v[{reg(c,ks)}:{reg(c,ks)+3}], v{C_QA} offset:{slot*SQ + ks*8320 + off(c)}", reg(c, ks), 0) for c in cs for ks in range(2)]


def spread(rd, every=2):
    return {every * i: [r] for i, r in enumerate(rd)}


X_ACC = 136
X_FR = 168
X_PA = 216
X_TA = 220


def x_reads(slot, ks, buf):
    b = X_FR + buf * 24
    P = [f"ds_read_b128 v[{b+rt*4}:{b+rt*4+3}], v{X_PA + (slot//2)*2 + ks} offset:{(slot%2)*SL + rt*2048}" for rt in range(4)]
    T = [f"ds_read_b64_tr_b16 v[{b+16+c*4+t*2}:{b+16+c*4+t*2+1}], v{X_TA + slot//2} offset:{(slot%2)*SL + 16384 + ks*8448 + t*512 + c*32}"
         for c in range(2) for t in range(2)]
    return [T[0], T[1], P[0], T[2], T[3], P[1], P[2], P[3]]


def x_mfmas(buf, waits):
    if OPT.get("xnomf"): return ["s_nop 0"] * 8
    b = X_FR + buf * 24
    out = []
    for n in range(8):
        rt, c = n >> 1, (n ^ (n >> 1)) & 1
        m = mfma(X_ACC + (rt * 2 + c) * 4, b + 16 + c * 4, b + rt * 4)
        out.append(([f"s_waitcnt lgkmcnt({waits[n]})"], m) if n in waits else m)
    return out


def x_epilogue(a):
    for rt in range(4):
        lo = X_ACC + rt * 8
        t = V_T + (rt & 1) * 4
        for p in range(4):
            a(f"v_cvt_pk_bf16_f32 v{t+p}, v{lo+2*p}, v{lo+2*p+1}")
        a(f"buffer_store_dwordx4 v[{t}:{t+3}], v{V_L16}, s[16:19], s24 offen offset:{rt*1024} sc1")


def perm_s(a, c):
    G = OPT.get("grp", 2)
    if G == 2:
        a(f"s_and_b32 s14, s32, 4\ns_xor_b32 {c}, {c}, s14")
    else:
        lim = 56 // (4 * G) * 4 * G
        a(f"s_and_b32 s14, s32, 4\ns_sub_u32 s14, {c}, s14\ns_cmp_lt_u32 {c}, {lim}\ns_cselect_b32 s34, {4*G-1}, 7")
        a(f"s_and_b32 s14, s14, s34\ns_andn2_b32 {c}, {c}, s34\ns_or_b32 {c}, {c}, s14")


def perm_v(a, v):
    G = OPT.get("grp", 2)
    a("s_and_b32 s34, s32, 4")
    if G == 2:
        a(f"v_xor_b32 v{v}, s34, v{v}")
    else:
        lim = 56 // (4 * G) * 4 * G
        a(f"v_cmp_gt_u32 vcc, {lim}, v{v}\nv_subrev_u32 v{v+1}, s34, v{v}\nv_mov_b32 v{v+2}, {4*G-1}\nv_cndmask_b32 v{v+2}, 7, v{v+2}, vcc")
        a(f"v_bfi_b32 v{v}, v{v+2}, v{v+1}, v{v}")


def roles(a):
    a("s_and_b32 s32, s2, 1\ns_bfe_u32 s33, s2, 0x20003\ns_lshl2_add_u32 s32, s32, s33")
    a("s_bfe_u32 s14, s2, 0x20001\ns_mul_i32 s35, s14, 7\ns_lshr_b32 s34, s2, 5\ns_add_u32 s33, s35, s34")
    a("s_add_u32 s35, s35, 2\ns_lshr_b32 s35, s35, 2\ns_add_u32 s54, s34, s35\ns_add_u32 s35, s33, 2\ns_lshr_b32 s35, s35, 2\ns_sub_u32 s54, s54, s35")
    a("s_cmp_ge_u32 s54, 4\ns_cselect_b32 s54, 16, s54\ns_and_b32 s35, s33, 3\ns_cmp_eq_u32 s35, 1\ns_cselect_b32 s54, 16, s54")
    a("s_lshl2_add_u32 s54, s14, s54")
    if OPT.get("nodq"): a("s_mov_b32 s54, 16")


def own_fx(a):
    a(f"s_lshl_b32 s27, s6, 3\ns_add_u32 s27, s27, s7\ns_lshl_b32 s27, s27, 8\ns_add_u32 s27, s27, {FX}")


def compute(a):
    DQ = 64
    roles(a)
    WSH = OPT.get("wsh", 2)
    if WSH == 4:
        a("s_and_b32 s15, s32, 4\ns_xor_b32 s15, s15, s54")
        dq_addr(a, DQ, 4, "s3", "s28")
    else:
        a("s_lshr_b32 s15, s54, 1\ns_and_b32 s29, s54, 1\ns_lshl_b32 s29, s29, 2\ns_add_u32 s29, s29, s3")
        if OPT.get("grp", 2) != 2: perm_s(a, "s15")
        dq_addr(a, DQ, 2, "s29", "s28")
    get_args(a)
    a("s_cmp_ge_u32 s54, 16\ns_cbranch_scc1 Lc_nodq0")
    dq_issue(a, DQ, range(WSH))
    a("Lc_nodq0:")
    if OPT.get("tlb"):
        a("s_cmp_lg_u32 s3, 3\ns_cbranch_scc1 Lc_ntlb")
        for p, sz in ((sV, F * F * 2), (sOUT, S * F * 2), (sWS, 28 << 20))[:OPT["tlb"]]:
            a(f"v_mul_u32_u24 v250, {sz // 64 // 128 * 128}, v0\nglobal_load_dword v251, v250, s[{p}:{p+1}]")
        a("s_waitcnt vmcnt(0)")
        a("Lc_ntlb:")
    srd(a, 8, sWS, SZ_WQ, WS_WQ)
    a(f"v_lshlrev_b32 v{V_L16}, 4, v0")
    row_read_base(a, B_PA, V_T, 13)
    a(f"v_mov_b32 v{X_PA}, v{V_T+2}\nv_xor_b32 v{X_PA+1}, 64, v{X_PA}")
    tr_read_base(a, B_TA, V_T)
    a(f"s_lshl_b32 s14, s3, 6\nv_add_u32 v{X_TA}, s14, v{V_T}")
    for r_ in (B_PA, X_PA):
        a(f"v_add_u32 v{r_+2}, {2*SL}, v{r_}\nv_add_u32 v{r_+3}, {2*SL}, v{r_+1}")
    for r_ in (B_TA, X_TA):
        a(f"v_add_u32 v{r_+1}, {2*SL}, v{r_}")
    a(f"s_lshl_b32 s14, s3, 12\nv_add_u32 v{C_PA}, s14, v{V_L16}\nv_add_u32 v{C_PA+1}, {SL}, v{C_PA}\nv_add_u32 v{C_PA+2}, {2*SL}, v{C_PA}")
    TQ = OPT.get("tailq", 0)
    a(f"v_bfe_u32 v{V_T}, v0, {'2, 2' if TQ else '1, 3'}\nv_mul_u32_u24 v{V_T}, 1040, v{V_T}\nv_lshrrev_b32 v{V_T+1}, 4, v0\nv_lshl_add_u32 v{V_T}, v{V_T+1}, 8, v{V_T}")
    a(f"v_and_b32 v{V_T+2}, {3 if TQ else 1}, v0\nv_lshl_add_u32 v{V_T}, v{V_T+2}, {6 if TQ else 7}, v{V_T}\nv_add_u32 v{C_QA}, {CQ0}, v{V_T}")
    a(f"s_lshr_b32 s14, s3, 1\ns_mul_i32 s14, s14, {SQ}\ns_and_b32 s34, s3, 1\ns_mul_i32 s34, s34, {4*1040}\ns_add_u32 s14, s14, s34\ns_add_u32 s14, s14, {CQ0}")
    a(f"v_add_u32 v{C_WA}, s14, v{V_L16}")
    col_lane(a, V_T + 2, V_T + 3, OPT.get("mix", 0))
    if TQ: a(f"v_lshrrev_b32 v{V_T+2}, 1, v{V_T+2}")
    a(f"v_mul_u32_u24 v{V_T+1}, {4*7168}, v{V_T+1}\nv_add_u32 v{C_SA}, v{V_T+2}, v{V_T+1}")
    for i in list(range(64)) + list(range(X_ACC, X_ACC + 32)):
        a(f"v_mov_b32 v{i}, 0")
    a("s_lshr_b32 s24, s6, 2\ns_lshl_b32 s24, s24, 5\ns_lshl_b32 s34, s7, 2\ns_add_u32 s24, s24, s34\ns_add_u32 s24, s24, s3")
    a("s_lshl_b32 s24, s24, 2\ns_and_b32 s34, s6, 3\ns_add_u32 s24, s24, s34\ns_lshl_b32 s24, s24, 12")
    srd(a, 16, sWS, SZ_X, WS_XRF)
    get_nonce(a)
    a("s_cmp_ge_u32 s54, 16\ns_cbranch_scc1 Lc_nodq1")
    dq_now(a, DQ, WSH, "s28")
    a("Lc_nodq1:")
    stamp(a, 1)
    if OPT.get("prc"): a(f"s_setprio {OPT['prc']}")
    XW = {0: 5, 1: 4, 2: 4, 4: 5, 6: 6}
    a("s_mov_b32 s23, 4\ns_barrier")
    stamp(a, 9)
    for r in x_reads(0, 0, 0): a(r)
    a("s_branch Lx_mid")
    align(a, 16)
    a("Lx_loop:")
    for s in range(NSL):
        a("s_barrier")
        interleave(a, x_mfmas(1, {}), spread(x_reads(s, 0, 0), 1))
        if s == 0: a("Lx_mid:")
        if OPT.get("xfront", 1):
            rd = x_reads(s, 1, 1)
            interleave(a, x_mfmas(0, {0: 5, 1: 5, 2: 6, 4: 9, 6: 8}), {i: rd[2*i:2*i+2] for i in range(4)})
        else:
            interleave(a, x_mfmas(0, XW), spread(x_reads(s, 1, 1), 1))
        XACK = OPT.get("xack", 3)
        if s == XACK - 5: a("s_cmp_eq_u32 s23, 4\ns_cbranch_scc1 Lx_na\ns_waitcnt vmcnt(0)\nLx_na:")
        if s == NSL - 1:
            a("s_sub_u32 s23, s23, 1\ns_cmp_lg_u32 s23, 0")
        a("s_waitcnt vmcnt(0) lgkmcnt(0)" if s == XACK - 1 else "s_waitcnt lgkmcnt(0)")
    a("s_cbranch_scc1 Lx_loop")
    stamp(a, 10)
    a("s_cmp_lg_u32 s5, 0\ns_cbranch_scc1 Lc_h")
    a("s_barrier")
    stamp(a, 2)
    LO, HI = [0, 1], [2, 3]
    sc = Sched(a)
    CM = OPT.get("cmaj", 1)
    def b_h1(s):
        if CM: return b_rdT(s, 0) + b_rdP(s, 0) + b_rdP(s, 1) + b_rdP(s, 2) + b_rdP(s, 3) + b_rdT(s, 1)[:2]
        return b_rdT(s, 0) + b_rdP(s, 0, 3) + b_rdT(s, 1) + b_rdP(s, 1, 7) + b_rdP(s, 2, 11)
    def b_h2(s):
        return (b_rdT(s, 1)[2:] if CM else b_rdP(s, 3)) + b_rdT(s, 2) + b_rdT(s, 3)
    rd = b_h1(0)
    interleave(a, x_mfmas(1, {}), spread([r[0] for r in rd[:8]], 1))
    for r in rd[8:]: a(r[0])
    a(f"s_lshl_b32 s25, s32, 2\ns_add_u32 s25, s25, s3\ns_mov_b32 s23, {56 // NSL}")
    x_epilogue(a)
    a(f"s_lshr_b32 s34, s3, 1\ns_lshl_b32 s24, s32, 1\ns_add_u32 s24, s24, s34\ns_mul_i32 s24, s24, {2*224*1024}")
    a("s_and_b32 s34, s3, 1\ns_lshl_b32 s35, s33, 1\ns_add_u32 s34, s34, s35\ns_lshl_b32 s34, s34, 12\ns_add_u32 s24, s24, s34")
    srd(a, 16, sWS, SZ_W, WS_WPF)
    a(f"s_add_u32 s26, s24, {224*1024}")
    a("s_waitcnt lgkmcnt(0)\ns_branch Lb_mid")
    align(a, 2)
    a("Lb_loop:")
    for s in range(NSL):
        a("s_barrier")
        sc.run(b_mf(HI, (s - 1) & 1), b_h1(s), group=4)
        if s == 0: a("Lb_mid:")
        fill = {13: ["s_sub_u32 s23, s23, 1"], 14: ["s_cmp_lg_u32 s23, 0"]} if s == NSL - 1 else {}
        sc.run(b_mf(LO, s & 1), b_h2(s), fill, group=4)
        sc.drain("vmcnt(0) " if s == NSL - 1 else "")
    a("s_cbranch_scc1 Lb_loop")
    a("s_barrier")
    stamp(a, 3)
    WT = 160
    def w_out(pair, o):
        lo, hi = ((2 * pair) * 4 + o) * 4, ((2 * pair + 1) * 4 + o) * 4
        t = WT + (pair * 4 + o) * 4
        return [f"v_cvt_pk_bf16_f32 v{t}, v{lo}, v{lo+1}", f"v_cvt_pk_bf16_f32 v{t+1}, v{lo+2}, v{lo+3}",
                f"v_cvt_pk_bf16_f32 v{t+2}, v{hi}, v{hi+1}", f"v_cvt_pk_bf16_f32 v{t+3}, v{hi+2}, v{hi+3}",
                f"buffer_store_dwordx4 v[{t}:{t+3}], v{V_L16}, s[16:19], s{24+2*pair} offen offset:{o*1024} sc1"]
    def w_lds(pair, o):
        t = WT + (pair * 4 + o) * 4
        return f"ds_write_b128 v{C_WA}, v[{t}:{t+3}] offset:{pair*8320 + o*1040}"
    fill = {}
    for n, (pair, o) in enumerate(((0, 0), (1, 0), (1, 1), (0, 1)) if CM else ((0, 0), (0, 1), (1, 0), (1, 1))):
        w = w_out(pair, o)
        fill[4 * n] = w[0:2]; fill[4 * n + 1] = w[2:4]; fill[4 * n + 2] = w[4:5]; fill[4 * n + 3] = [w_lds(pair, o)]
    sc.run(b_mf(HI, 1), fill=fill)
    rest = ((0, 2), (1, 2), (1, 3), (0, 3)) if CM else ((0, 2), (0, 3), (1, 3), (1, 2))
    for pair, o in rest:
        a("\n".join(w_out(pair, o)))
    for pair, o in rest:
        a(w_lds(pair, o))
    srd(a, 16, sOUT, S * F * 2)
    a(f"s_lshl_b32 s34, s33, 8\ns_mul_i32 s24, s25, {64*7168}\ns_add_u32 s24, s24, s34")
    a("s_waitcnt lgkmcnt(0)")
    stamp(a, 4)
    a("; ---- phase C")
    if "prc2" in OPT: a(f"s_setprio {OPT['prc2']}")
    LO, HI = [0, 1, 2, 3], [4, 5, 6, 7]
    def c_first(slot):
        return c_rdP(slot, 0) + c_rdQ(slot, LO) + c_rdP(slot, 1) + c_rdP(slot, 2)
    a("s_barrier")
    for r in c_first(0): sc.read(r)
    a("s_mov_b32 s23, 4")
    z = [f"v_mov_b32 v{(rt*8+c)*4+i}, 0" for rt in range(4) for c in HI for i in range(4)]
    sc.run(c_mf(LO, zero=True), c_rdP(0, 3) + c_rdQ(0, HI), {10 + i: z[3*i:3*i+3] for i in range(22)}, group=2)
    sc.drain("vmcnt(0) ")
    stamp(a, 5)
    EB = OPT.get("eb", 2)
    if EB: a("s_barrier")
    align(a, 4)
    a("Lc_loop:")
    for s in (1, 2, 0):
        if not EB:
            if s == 2: a("s_cmp_eq_u32 s23, 4\ns_cbranch_scc1 Lc_peel")
            a("s_barrier")
        sc.run(c_mf(HI), c_rdQ(s, LO[:2]) + c_rdP(s, 0, 7) + c_rdQ(s, LO[2:]) + c_rdP(s, 1, 15) + c_rdP(s, 2, 23), every=2, group=8)
        if s == 2: a("Lc_mid:")
        fill = {21: ["s_sub_u32 s23, s23, 1"], 23: ["s_cmp_lg_u32 s23, 0"]} if s == 0 else {}
        if EB:
            fill[30 - EB] = ["s_waitcnt lgkmcnt(0)"]
            fill[31 - EB] = ["s_barrier"]
            if s == 1:
                fill[23] = ["s_cmp_eq_u32 s23, 4"]
                fill[31 - EB] = ["s_cbranch_scc1 Lc_peel", "s_barrier"]
        sc.run(c_mf(LO), c_rdP(s, 3) + c_rdQ(s, HI), fill, every=2, group=8)
        if EB: sc.q = []
        else: sc.drain()
    a("s_cbranch_scc1 Lc_loop")
    a("Lc_tail:")
    ynt = {0: "", 1: " nt", 2: " sc1", 3: " sc0 sc1", 4: " sc1 nt", 5: " sc0 sc1 nt"}[OPT.get("y_nt", 2)]

    def row_out(rt, r, t):
        o = []
        for p in range(4):
            o.append(f"v_cvt_pk_bf16_f32 v{t+p}, v{(rt*8+2*p)*4+r}, v{(rt*8+2*p+1)*4+r}")
        aux = ynt if rt < OPT.get("ylast", 4) else {0: "", 1: " nt"}[OPT.get("ylaux", 1)]
        o.append(f"buffer_store_dwordx4 v[{t}:{t+3}], v{C_SA}, s[16:19], s24 offen{aux}")
        o.append(f"s_add_u32 s24, s24, {7168 if r < 3 else 13*7168}")
        return o
    if TQ:
        U = [(0, 0), (1, 0), (0, 1), (0, 2), (1, 1), (1, 2), (2, 0), (2, 1), (2, 2), (3, 0), (3, 1), (3, 2)]
        if TQ == 2: U[3], U[4] = U[4], U[3]
        def q_rd(n, at=(0, 0)):
            qd, st = U[n]; slot = (13 + st) % 3
            P = [r for k in range(2) for r in c_rdP(slot, 2 * (qd & 1) + k, at[k], 2 * (n & 1) + k)]
            Q = c_rdQ(slot, HI if qd >> 1 else LO, n & 1)
            return P[:2] + Q + P[2:] if at == (0, 0) else Q + P
        def q_mf(n):
            qd = U[n][0]
            return c_mf(HI if qd >> 1 else LO, (2 * (qd & 1), 2 * (qd & 1) + 1), preg=lambda rt, ks: cP(2 * (n & 1) + (rt & 1), ks),
                        qreg=lambda c, ks: cQ(4 * (n & 1) + (c & 3), ks))
        row = [0]
        def q_out(qd, i):
            rt, r = 2 * (qd & 1) + (i >> 2), i & 3
            t, c0 = V_T + (i & 3) * 2, 4 * (qd >> 1)
            o = [f"v_cvt_pk_bf16_f32 v{t+p}, v{(rt*8+c0+2*p)*4+r}, v{(rt*8+c0+2*p+1)*4+r}" for p in range(2)]
            d = (16 * rt + r - row[0]) * 7168; row[0] = 16 * rt + r
            if d: o.append(f"s_add_u32 s24, s24, {d}" if d > 0 else f"s_sub_u32 s24, s24, {-d}")
            o.append(f"buffer_store_dwordx2 v[{t}:{t+1}], v{C_SA}, s[16:19], s24 offen offset:{128*(qd>>1)}{ynt}")
            return o
        if not EB: a("s_barrier")
        sc.run(c_mf(HI), q_rd(0, (7, 15)), every=2, group=8)
        PL = {4: (0, 0), 5: (0, 4), 6: (1, 0), 7: (1, 4), 9: (2, 0), 10: (2, 4)}
        if TQ == 2: PL = {5: (0, 0), 6: (0, 4), 7: (1, 0), 8: (1, 4), 9: (2, 0), 10: (2, 4)}
        for n in range(12):
            if n in (1, TQ + 1): a("s_barrier")
            fill = {}
            if n in PL:
                for i in range(4):
                    o = q_out(PL[n][0], PL[n][1] + i)
                    fill[4 * i + 1] = o[:2]; fill[4 * i + 2] = o[2:]
            if n == 11: stamp(a, 7)
            sc.run(q_mf(n), q_rd(n + 1) if n < 11 else [], fill, group=4)
        for i in range(8):
            a("\n".join(q_out(3, i)))
    else:
        def u_slot(n): return (13 + n % 3) % 3
        def u_rdP(n, at=(0, 0)): return [r for k in range(2) for r in c_rdP(u_slot(n), 2 * (n // 3) + k, at[k], 2 * (n & 1) + k)]
        def u_mf(n, cs, rts=None):
            h = n // 3
            return c_mf(cs, rts or (2 * h, 2 * h + 1), preg=lambda rt, ks: cP(2 * (n & 1) + (rt & 1), ks))
        if not EB: a("s_barrier")
        sc.run(c_mf(HI), c_rdQ(u_slot(0), LO) + u_rdP(0, (7, 15)), every=2, group=8)
        outs = [row_out(rt, r, V_T + ((rt * 4 + r) & 1) * 4) for rt in range(4) for r in range(4)]
        def put(fill, pos, q):
            o = outs[q]
            fill[pos] = o[0:2]; fill[pos + 1] = o[2:4]; fill[pos + 2] = o[4:6]
        for n in range(5):
            f1, f2 = {}, {}
            DN = OPT.get("dense", 3)
            if n >= 3 and DN == 0:
                put(f1, 9, 3 * (n - 3)); put(f1, 12, 3 * (n - 3) + 1); put(f2, 12, 3 * (n - 3) + 2)
            if n >= 3 and DN == 1:
                put(f1, 9, 4 * (n - 3)); put(f1, 12, 4 * (n - 3) + 1); put(f2, 5, 4 * (n - 3) + 2); put(f2, 12, 4 * (n - 3) + 3)
            if n == 3 and DN == 3:
                put(f1, 2, 0); put(f1, 8, 1); put(f1, 12, 2); put(f2, 3, 3); put(f2, 8, 4); put(f2, 12, 5)
            if n == 4 and DN == 3:
                put(f1, 2, 6); put(f1, 8, 7)
            if n == 3 and DN == 2:
                for i in range(4): put(f1, 1 + 4 * i, i); put(f2, 1 + 4 * i, 4 + i)
            sc.run(u_mf(n, LO), c_rdQ(u_slot(n), HI), f1, group=4)
            if n < 2: a("s_barrier")
            sc.run(u_mf(n, HI), u_rdP(n + 1)[:2] + c_rdQ(u_slot(n + 1), LO) + u_rdP(n + 1)[2:], f2, group=4)
        f1, f2 = {}, {}
        if DN == 0: put(f1, 9, 6); put(f1, 12, 7)
        sc.run(u_mf(5, LO + HI, (2,)), c_rdQ(u_slot(5), HI), f1, group=2)
        stamp(a, 7)
        put(f2, 7, 8); put(f2, 10, 9); put(f2, 13, 10)
        sc.run(u_mf(5, (LO + HI)[::-1], (3,)), fill=f2)
        a("\n".join(outs[11]))
        a("s_nop 1")
        for q in range(12, 16):
            a("\n".join(row_out(3, q - 12, C_FR + (q & 3) * 4)))
    stamp(a, 8)
    a("s_or_b32 s14, s2, s3\ns_cmp_lg_u32 s14, 0\ns_cbranch_scc1 Lc_end")
    a(f"s_mov_b32 s14, {EPOCH}")
    flag_store(a, "s14", V_T, V_L16)
    a("Lc_end:")
    stamp_out(a, False)
    a("s_endpgm")
    a("Lc_peel:")
    sc.q = []
    sc.run((c_mf(LO)[32 - EB:] if EB else []) + c_mf(HI))
    a("s_barrier")
    stamp(a, 6)
    for r in c_first(2): a(r[0])
    a("s_branch Lc_mid")
    a("Lc_h:")
    interleave(a, x_mfmas(1, {}), {})
    a("s_nop 7")
    x_epilogue(a)
    a("s_waitcnt vmcnt(0)\ns_barrier")
    a("s_cmp_lg_u32 s3, 0\ns_cbranch_scc1 Lc_end")
    if OPT.get("warm", 0) & 2: touch_code(a, "L_tc1", NAME, "L_end", 250, 252, f"v{V_L16}", 3)
    own_fx(a)
    flag_store(a, "s27", V_T, V_L16)
    a("s_branch Lc_end")


L_T = 68
L_P = 72
L_TP = 76
L_TT = 77
L_Q = 78
L_L16 = 82
L_FI = 83
L_TMP = 84
L_FL = 92
L_CP = 93
L_CQ = 94
L_SP = 95


def rot_table(a, n, W, phi, psi, v, pw=0):
    lg = W.bit_length() - 1
    wmin = OPT.get("wmin", 1)
    a(f"s_add_u32 s14, {psi}, {n - wmin}\ns_lshr_b32 s14, s14, {lg}")
    a(f"v_add_u32 v{v+3}, {psi}, v0\nv_lshrrev_b32 v{v+3}, {lg}, v{v+3}\nv_min_u32 v{v+3}, s14, v{v+3}")
    a(f"v_cmp_eq_u32 vcc, s14, v{v+3}")
    a(f"v_lshlrev_b32 v{v}, {lg}, v{v+3}\nv_subrev_u32 v{v}, {psi}, v{v}")
    a(f"v_add_u32 v{v+1}, {W}, v{v}\nv_mov_b32 v{v+2}, {n}\nv_cndmask_b32 v{v+1}, v{v+1}, v{v+2}, vcc")
    a(f"v_max_i32 v{v}, 0, v{v}\nv_sub_u32 v{v+1}, v{v+1}, v{v}")
    a(f"v_mul_u32_u24 v{v+3}, {pw}, v{v+3}")
    a(f"v_add_u32 v{v+3}, {phi}, v{v+3}\nv_and_b32 v{v+3}, {W-1}, v{v+3}\nv_sub_u32 v{v+2}, v0, v{v}\nv_add_u32 v{v+2}, v{v+3}, v{v+2}")
    for i in range(W - 1):
        a(f"v_sub_u32 v{v+3}, v{v+2}, v{v+1}\nv_min_u32 v{v+2}, v{v+2}, v{v+3}")
    a(f"v_add_u32 v{v}, v{v}, v{v+2}")


def lead_table(a, n, psi, v):
    a(f"v_add_u32 v{v}, {psi}, v0\nv_and_b32 v{v+1}, 3, v{v}\nv_min_u32 v{v+1}, v{v+1}, v0\nv_cmp_eq_u32 vcc, 0, v{v+1}")
    a(f"v_or_b32 v{v}, 3, v{v}\nv_subrev_u32 v{v}, {psi}, v{v}\nv_min_u32 v{v}, {n-1}, v{v}\nv_add_u32 v{v+1}, -1, v0")
    a(f"v_cndmask_b32 v{v}, v{v+1}, v{v}, vcc")


def col_base(a, dst, tile, mix):
    if mix: a(f"s_lshr_b32 {dst}, {tile}, 2\ns_lshl_b32 {dst}, {dst}, 2\ns_add_u32 {dst}, {dst}, {tile}\ns_lshl_b32 {dst}, {dst}, 7")
    else: a(f"s_lshl_b32 {dst}, {tile}, 8")


def col_lane(a, dst, tmp, mix):
    a(f"v_and_b32 v{dst}, 15, v0\nv_lshlrev_b32 v{dst}, 4, v{dst}")
    if mix: a(f"v_and_b32 v{tmp}, 8, v0\nv_mul_u32_u24 v{tmp}, 48, v{tmp}\nv_add_u32 v{dst}, v{dst}, v{tmp}")


def t_voffs(a, t_row, natural, L_T=L_T, mix=0):
    t = L_TMP
    a(f"v_lshrrev_b32 v{t}, 4, v0\nv_and_b32 v{t+1}, 1, v{t}\nv_lshrrev_b32 v{t}, 1, v{t}")
    if natural:
        a(f"v_lshlrev_b32 v{t+1}, 4, v{t+1}\nv_lshl_add_u32 v{t}, v{t}, 2, v{t+1}")
    else:
        a(f"v_lshlrev_b32 v{t+1}, 3, v{t+1}\nv_lshl_add_u32 v{t}, v{t}, 5, v{t+1}")
    col_lane(a, t + 1, t + 2, mix)
    a(f"v_mul_u32_u24 v{t}, {t_row}, v{t}\nv_add_u32 v{L_T}, v{t+1}, v{t}")
    for j in range(1, 4):
        a(f"v_add_u32 v{L_T+j}, {j*(t_row-1056)}, v{L_T}")


def p_voffs(a, p_row, L_P=L_P, n=4):
    t = L_TMP
    a(f"v_lshrrev_b32 v{t}, 3, v0\nv_mul_u32_u24 v{t}, {p_row}, v{t}\nv_lshrrev_b32 v{t+1}, 4, v0\nv_and_b32 v{t+2}, 7, v0\nv_xor_b32 v{t+1}, v{t+1}, v{t+2}")
    a(f"v_lshl_add_u32 v{L_P}, v{t+1}, 4, v{t}\nv_xor_b32 v{L_P+1}, 64, v{L_P}")
    d = 8 * p_row - 1024
    if n == 4: a(f"v_add_u32 v{L_P+2}, {2*d}, v{L_P}\nv_add_u32 v{L_P+3}, {3*d}, v{L_P+1}")
    a(f"v_add_u32 v{L_P+1}, {d}, v{L_P+1}")


def skip1_adj(a, v):
    a(f"v_lshrrev_b32 v{v+1}, 4, v0\nv_min_u32 v{v}, 1, v{v+1}\nv_lshlrev_b32 v{v}, 8, v{v}")
    a(f"v_add_u32 v{v+1}, 9, v{v+1}\nv_lshrrev_b32 v{v+1}, 2, v{v+1}\nv_lshlrev_b32 v{v+1}, 8, v{v+1}")


def loader(a):
    t = L_TMP + 4
    XT, XP, XTP, XTT = 4, 8, 12, 13
    AH = OPT.get("ah", 3)
    AB = OPT.get("ab", AH)
    if OPT.get("prl"): a(f"s_setprio {OPT['prl']}")
    XS = OPT.get("xs", 97)
    if XS == 98: a("s_and_b32 s34, s2, 1\ns_bfe_u32 s15, s2, 0x20001\ns_xor_b32 s34, s34, s15\ns_lshl_b32 s34, s34, 2")
    elif XS == 97: a("s_lshl_b32 s34, s2, 2")
    elif XS == 99: a("s_and_b32 s34, s2, 1\ns_bfe_u32 s15, s2, 0x20001\ns_lshl1_add_u32 s34, s34, s15\ns_lshl_b32 s34, s34, 2")
    else: a(f"s_mul_i32 s34, s2, {XS}")
    a("s_add_u32 s15, s6, s7\ns_and_b32 s15, s15, 3")
    if OPT.get("lead", 3) & 1:
        lead_table(a, 16, "s15", t)
    else:
        a("s_sub_u32 s34, s34, s15")
        a(f"v_add_u32 v{t}, s15, v0\nv_add_u32 v{t+1}, 3, v{t}\nv_and_b32 v{t}, 0xfc, v{t}\nv_and_or_b32 v{t}, v{t+1}, 3, v{t}")
    a(f"{'v_xor_b32' if XS in (97, 98) else 'v_add_u32'} v{t}, s34, v{t}\nv_and_b32 v{t}, {OPT.get('xmask', 15)}, v{t}")
    a("s_and_b32 s34, s3, 2\ns_add_u32 s34, s34, s3\ns_lshl_b32 s34, s34, 6\ns_add_u32 s34, s34, s7\ns_lshl_b32 s34, s34, 8")
    a(f"v_lshl_add_u32 v{XTT}, v{t}, 17, s34")
    t_voffs(a, 2048, True, XT)
    a("s_mul_i32 s29, s3, 4224\ns_add_u32 s29, s29, 16384")
    a(f"v_readlane_b32 s21, v{XTT}, 0\ns_mov_b32 m0, s29\ns_mov_b32 s18, {D*D*2}\ns_mov_b32 s19, 0x20000")
    get_args(a)
    stamp(a, 8)
    if OPT.get("trace"): a("v_mov_b32 v100, 0\ns_mov_b32 s96, 0")
    a(f"s_mov_b64 s[16:17], s[{sU}:{sU+1}]")
    def XTl(j): a(f"buffer_load_dwordx4 v{XT+j}, s[16:19], s21 offen offset:{j*1056} lds")
    def XPl(j): a(f"buffer_load_dwordx4 v{XP+j}, s[8:11], s20 offen offset:{j*1024} lds")
    def xbody(n, hook=False):
        XTl(0)
        a(f"v_readlane_b32 s20, v{XTP}, s25\ns_add_u32 s25, s25, 1")
        if hook:
            a("s_cmp_eq_u32 s25, s54\ns_cbranch_scc1 Lxl_ev")
            a("Lxl_evdone:")
        XTl(1)
        a("Lxl_go2:")
        a(f"s_add_u32 s34, s28, s22\ns_add_u32 s28, s28, {SL}")
        XTl(2)
        a(f"s_cmp_eq_u32 s28, {NSL*SL}\ns_cselect_b32 s28, 0, s28")
        XTl(3)
        a(f"s_mov_b32 m0, s34\nv_readlane_b32 s21, v{XTT}, s25\ns_add_u32 s34, s28, s29\ns_cmp_lt_u32 s25, {n}")
        XPl(0)
    def x0():
        W = OPT.get("W", 4)
        roles(a)
        a("s_add_u32 s35, s32, s33\ns_and_b32 s35, s35, 3")
        lead_table(a, 56, "s35", t)
        perm_v(a, t)
        CS = 24576 if OPT.get("skip1") else 16384
        a(f"s_mul_i32 s34, s32, {56*CS}\ns_mul_i32 s35, s3, {CS//4}\ns_add_u32 s34, s34, s35")
        a(f"v_mul_u32_u24 v{L_TP}, {CS}, v{t}\nv_add_u32 v{L_TP}, s34, v{L_TP}")
        a("s_lshr_b32 s34, s3, 1\ns_lshl_b32 s34, s34, 4\ns_and_b32 s35, s3, 1\ns_lshl_b32 s35, s35, 2\ns_add_u32 s34, s34, s35")
        col_base(a, "s35", "s33", OPT.get("mix", 0))
        a("s_mul_i32 s34, s34, 7168\ns_add_u32 s34, s34, s35")
        a(f"v_mul_u32_u24 v{t}, {64*7168}, v{t}\nv_add_u32 v{L_TT}, s34, v{t}")
        t_voffs(a, 7168, False, mix=OPT.get("mix", 0))
        p_voffs(a, 128)
        if OPT.get("skip1"):
            skip1_adj(a, L_TMP)
            a(f"v_add_u32 v{L_P}, v{L_P}, v{L_TMP}\nv_add_u32 v{L_P+1}, v{L_P+1}, v{L_TMP+1}")
            a(f"v_add_u32 v{L_P+2}, 1024, v{L_P}\nv_add_u32 v{L_P+3}, 1024, v{L_P+1}")
        if OPT.get("spf"):
            OFF = OPT.get("spo", 12)
            NW = OPT.get("spf")
            a(f"s_lshr_b32 s14, s2, 3\ns_mul_i32 s14, s14, {NW}\ns_add_u32 s14, s14, s3\ns_sub_u32 s14, s14, {4-NW}")
            a(f"v_add_u32 v{t}, {OFF}, v0\nv_and_b32 v{t+1}, 7, v{t}\nv_mul_u32_u24 v{t+1}, {28*NW}, v{t+1}\nv_add_u32 v{t+1}, s14, v{t+1}\nv_min_u32 v{t+1}, 511, v{t+1}")
            a(f"v_and_b32 v{t}, 0xf8, v{t}\nv_min_u32 v{t}, 48, v{t}\nv_lshrrev_b32 v{t+2}, 7, v{t+1}\nv_add_u32 v{t}, v{t}, v{t+2}")
            a(f"s_and_b32 s34, s32, 4\nv_xor_b32 v{t}, s34, v{t}\nv_and_b32 v{t+2}, 63, v{t+1}\nv_lshl_add_u32 v{t}, v{t}, 6, v{t+2}\nv_mul_u32_u24 v{t}, 7168, v{t}")
            a("s_bfe_u32 s14, s2, 0x20001\ns_mul_i32 s14, s14, 7\ns_add_u32 s34, s14, 2\ns_andn2_b32 s34, s34, 3\ns_add_u32 s34, s34, 1")
            a("s_add_u32 s35, s34, 4\ns_add_u32 s14, s14, 6\ns_min_u32 s35, s35, s14\ns_sub_u32 s35, s35, s34")
            a(f"v_bfe_u32 v{t+1}, v{t+1}, 6, 1\nv_mul_lo_u32 v{t+1}, s35, v{t+1}\nv_add_u32 v{t+1}, s34, v{t+1}\nv_lshl_add_u32 v{L_SP}, v{t+1}, 8, v{t}")
            a(f"s_cmp_ge_u32 s3, {4-NW}\ns_cselect_b32 s24, {56-OFF}, 0")
        CO = OPT.get("cord", 0)
        a({0: "s_mov_b32 s24, 3", 2: "s_mov_b32 s24, 0", 1: "s_cmp_ge_u32 s32, 4\ns_cselect_b32 s24, 3, 0", 3: "s_cmp_ge_u32 s32, 4\ns_cselect_b32 s24, 0, 3"}[CO])
        a(f"v_lshrrev_b32 v{t}, 1, v0\nv_add_u32 v{t+1}, s24, v{t}\nv_xor_b32 v{t+1}, s32, v{t+1}\nv_and_b32 v{t+1}, 4, v{t+1}")
        a(f"v_add_u32 v{t}, s32, v{t}\nv_and_or_b32 v{t}, v{t}, 3, v{t+1}\nv_and_b32 v{t+1}, 1, v0\nv_lshl_add_u32 v{t}, v{t}, 1, v{t+1}")
        if OPT.get("cswap"):
            a(f"v_min_u32 v{t+1}, 2, v0\nv_lshrrev_b32 v{t+1}, 1, v{t+1}\nv_and_b32 v{t+1}, s33, v{t+1}\nv_xor_b32 v{t}, v{t}, v{t+1}")
        a(f"s_lshl_b32 s34, s32, 19\ns_lshl_b32 s35, s3, 13\ns_add_u32 s34, s34, s35\nv_lshl_add_u32 v{L_CP}, v{t}, 15, s34")
        a(f"s_lshr_b32 s34, s3, 1\ns_mul_i32 s34, s34, {224*1024}\ns_and_b32 s35, s3, 1\ns_lshl_b32 s14, s33, 1\ns_add_u32 s35, s35, s14\ns_lshl_b32 s35, s35, 12\ns_add_u32 s34, s34, s35")
        a(f"v_mul_u32_u24 v{t}, {2*224*1024}, v{t}\nv_add_u32 v{L_CQ}, s34, v{t}")
        srd(a, 40, sWS, SZ_X, WS_XRF)
        srd(a, 48, sWS, SZ_W + 64, WS_WPF - 64)
        a(f"v_lshlrev_b32 v{L_L16}, 4, v0\nv_lshlrev_b32 v{L_FI}, 8, v0")
        for j in range(4):
            a(f"v_add_u32 v{L_Q+j}, {64 - 16*j}, v{L_L16}")
        a(f"s_lshl_b32 s26, s32, 12\ns_add_u32 s26, s26, {FA1}\ns_lshl_b32 s27, s54, 8\ns_add_u32 s27, s27, s26")
        get_nonce(a)
        a(f"s_cmp_lt_u32 s54, 16\ns_cselect_b32 s54, {OPT.get('xack', 3) + AH + 1}, 255\ns_cmp_eq_u32 s3, 1\ns_cselect_b32 s54, s54, 255\ns_cselect_b32 s55, 2, 0")
        a(f"s_or_b32 s14, s3, s5\ns_cmp_eq_u32 s14, 0\ns_cselect_b32 s54, {255 if OPT.get('nodq') else 13}, s54")
    for j in range(4): XTl(j)
    a(f"s_lshl2_add_u32 s34, s6, s3\ns_lshl_b32 s34, s34, 15\nv_lshl_add_u32 v{XTP}, v{t}, 7, s34")
    a(f"s_lshl_b32 s22, s3, 11\ns_mov_b32 m0, s22\nv_readlane_b32 s20, v{XTP}, 0\nv_readlane_b32 s21, v{XTT}, 1")
    p_voffs(a, 2048, XP, 2)
    srd(a, 8, sX, SZ_X)
    XPl(0)
    XPl(1)
    if OPT.get("pre", 1):
        a(f"s_add_u32 m0, s29, {SL}\ns_mov_b32 s25, 2\ns_mov_b32 s28, {SL}\nv_readlane_b32 s20, v{XTP}, 1")
        XTl(0)
        XTl(1)
        x0()
        a("s_branch Lxl_go2")
    else:
        a(f"s_add_u32 m0, s29, {SL}\ns_mov_b32 s25, 1\ns_mov_b32 s28, {SL}")
        x0()
        a("s_branch Lxl_go")
    align(a, 8)
    a("Lxl_loop:")
    XPl(1)
    trace(a, 2)
    a("s_mov_b32 m0, s34")
    if AH == 3: a("s_cmp_lt_u32 s25, 3\ns_cbranch_scc1 Lxl_go")
    a(f"s_waitcnt vmcnt({6*(AH-1)})\ns_barrier")
    a("Lxl_go:")
    xbody(16, True)
    a("s_cbranch_scc1 Lxl_loop")
    XPl(1)
    stamp(a, 1)
    a("s_cmp_lg_u32 s5, 0\ns_cbranch_scc1 Ll_h")
    srd(a, 8, sWS, SZ_WQ, WS_WQ)
    srd(a, 16, sV, F * F * 2)
    a("s_lshl_b32 s22, s3, 12")

    AUX = {0: "", 1: " sc1", 2: " sc0 sc1", 3: " sc0"}
    PAUX, TAUX = AUX[OPT.get("psc1", 1)], AUX[OPT.get("tsc1", 0)]
    def T(j): a(f"buffer_load_dwordx4 v{L_T+j}, s[16:19], s21 offen offset:{j*1056}{TAUX} lds")
    def P(j): a(f"buffer_load_dwordx4 v{L_P+j}, s[8:11], s20 offen offset:{j*1024}{PAUX} lds")
    a(f"v_readlane_b32 s21, v{L_TT}, 0\nv_readlane_b32 s20, v{L_TP}, 0\ns_mov_b32 m0, s29")
    WSH = OPT.get("wsh", 2)
    a(f"s_mul_i32 s26, s32, {14*1024}\ns_add_u32 s26, s26, {FA + (WSH - 1) * 1024}")
    if OPT.get("eva", 0):
        a("s_add_u32 s14, s32, s33\ns_sub_u32 s14, 0, s14\ns_and_b32 s14, s14, 3\ns_add_u32 s14, s14, 9")
    else:
        a("s_mov_b32 s14, 8")
    a(f"s_cmp_eq_u32 s3, 0\ns_cselect_b32 s54, {4*WSH - 4}, 255\ns_cmp_eq_u32 s3, 1\ns_cselect_b32 s54, s14, s54\ns_mov_b32 s55, 0")
    if AH == 3 and AB == 2:
        a("s_mov_b32 s25, 0")
        a("s_waitcnt vmcnt(12)\ns_barrier\ns_waitcnt vmcnt(6)\ns_barrier")
    elif AH == 3:
        a("s_waitcnt vmcnt(12)\ns_barrier")
        for j in range(4): T(j)
        a(f"s_mov_b32 m0, s22\nv_readlane_b32 s21, v{L_TT}, 1")
        for j in range(4): P(j)
        a(f"s_add_u32 m0, s29, {SL}\ns_mov_b32 s25, 1\ns_mov_b32 s28, {SL}")
        a("s_waitcnt vmcnt(14)\ns_barrier")
    else:
        a("s_mov_b32 s25, 0")
        a("s_waitcnt vmcnt(6)\ns_barrier")
    a("s_branch Lw_go")

    def head():
        P(3)
        trace(a)
        a("s_add_u32 m0, s28, s29")
        a(f"s_waitcnt vmcnt({8*(AB-1)})\ns_barrier")
    def first():
        T(0)
        a(f"v_readlane_b32 s20, v{L_TP}, s25\ns_add_u32 s25, s25, 1")
    def rest(fill=()):
        n = (len(fill) + 6) // 7
        g = ["\n".join(fill[i*n:(i+1)*n]) for i in range(7)]
        def gap(i):
            if g[i]: a(g[i])
        gap(0)
        T(1)
        a(f"s_add_u32 s34, s28, s22\ns_add_u32 s28, s28, {SL}")
        gap(1)
        T(2)
        a(f"s_cmp_eq_u32 s28, {NSL*SL}\ns_cselect_b32 s28, 0, s28")
        gap(2)
        T(3)
        a(f"s_mov_b32 m0, s34\nv_readlane_b32 s21, v{L_TT}, s25")
        gap(3)
        P(0)
        if OPT.get("spf"):
            a(f"s_cmp_ge_u32 s25, s24\ns_cbranch_scc1 Lw_nsp\nv_readlane_b32 s23, v{L_SP}, s25")
            for q in range(4):
                a("s_buffer_load_dword s97, s[16:19], s23" + (f" offset:{64*q}" if q else ""))
            a("Lw_nsp:")
        gap(4)
        P(1)
        gap(5)
        a(f"s_cmp_lt_u32 s25, 56")
        P(2)
        gap(6)
    align(a, 1)
    a("Lw_loop:")
    head()
    a("Lw_go:")
    first()
    a(f"s_cmp_eq_u32 s25, s54\ns_cbranch_scc1 Lw_ev")
    a("Lw_evdone:")
    rest()
    a("s_cbranch_scc1 Lw_loop")
    P(3)
    stamp(a, 4)
    a(f"s_lshl_b32 s22, s3, 13\ns_mul_i32 s29, s3, {4*1040}\ns_add_u32 s29, s29, {CQ0}")
    def PC(st, slot, mid=None):
        a(f"v_readlane_b32 s20, v{L_CP}, {st}\ns_add_u32 m0, s22, {slot}\ns_nop 3")
        for j in range(8):
            if j == 4:
                a("s_add_u32 m0, m0, 4096\ns_add_u32 s20, s20, 4096")
                if mid: a(mid)
            a(f"buffer_load_dwordx4 v{L_L16}, s[40:43], s20 offen offset:{(j&3)*1024} sc1 lds")
    def QC(st, slot):
        a(f"v_readlane_b32 s21, v{L_CQ}, {st}\ns_add_u32 m0, s29, {slot}\ns_nop 3")
        for j in range(4):
            a(f"buffer_load_dwordx4 v{L_Q+j}, s[48:51], s21 offen offset:{j*1040} sc1 lds")
    for i in range(AB):
        a(f"s_waitcnt vmcnt({8*(AB-1)})\ns_barrier")
        PC(i, i * SL)
    a("s_barrier")
    a(f"s_lshl_b32 s26, s33, 3\ns_add_u32 s26, s26, s32\ns_lshl_b32 s27, s26, 8\ns_add_u32 s27, s27, {FB}")
    a(f"s_andn2_b32 s26, s27, 0x300\ns_and_b32 s14, s24, 1\ns_lshl_b32 s14, s14, 10\ns_xor_b32 s26, s26, s14")
    a(f"s_waitcnt vmcnt({8*(AB-1)})\ns_barrier")
    sflag_sample(a)
    if AB == 2: PC(2, 2 * SL)
    a("s_cmp_lg_u32 s3, 0")
    a("s_waitcnt vmcnt(8)\ns_barrier")
    a("s_cbranch_scc1 Lw_nfb")
    flag_store(a, "s27", L_TMP, L_L16)
    a("Lw_nfb:")
    stamp(a, 6)
    a(f"s_mov_b32 s25, 5\ns_mov_b32 s28, {2*SL}\ns_mov_b32 s27, {2*SQ}")
    a("s_and_b32 s14, s24, 2\ns_add_u32 s14, s14, 7\ns_cmp_eq_u32 s3, 0\ns_cselect_b32 s54, s14, 255")
    LM = OPT.get("late", 0)
    if LM == 1: PC(3, 0)
    sflag_check(a, "Lw_pb", L_FI, L_FL)
    stamp(a, 7)
    a("s_xor_b32 s26, s26, 0x400")
    QC(2, 2 * SQ)
    QC(3, 0)
    if LM == 0:
        PC(3, 0)
        a("s_waitcnt vmcnt(12)\ns_barrier")
    elif LM == 1:
        a("s_waitcnt vmcnt(4)\ns_barrier")
    else:
        PC(3, 0, "s_waitcnt vmcnt(8)\ns_barrier")
    if LM < 2:
        QC(4, SQ)
        PC(4, SL, "s_waitcnt vmcnt(8)\ns_barrier")
    else:
        QC(4, SQ)
        a("s_waitcnt vmcnt(4)\ns_barrier")
        PC(4, SL)
        QC(5, 2 * SQ)
        PC(5, 2 * SL, "s_waitcnt vmcnt(8)\ns_barrier")
        a("s_mov_b32 s25, 6\ns_mov_b32 s28, 0\ns_mov_b32 s27, 0")
    align(a, 32)
    a("Lw_cloop:")
    a("s_cmp_lg_u32 s25, s54\ns_cbranch_scc1 Lw_c3")
    if OPT.get("warm", 0) & 4: touch_code(a, "L_tc2", "Lc_tail", "Lc_end", 250, 252, n=1, back=False)
    sflag_sample(a)
    a("Lw_c3:")
    trace(a, 3)
    QC("s25", "s27")
    PC("s25", "s28")
    a(f"s_add_u32 s27, s27, {SQ}\ns_add_u32 s28, s28, {SL}\ns_cmp_eq_u32 s28, {3*SL}\ns_cselect_b32 s28, 0, s28\ns_cselect_b32 s27, 0, s27")
    trace(a, 4)
    a("s_cmp_lg_u32 s25, s54\ns_cbranch_scc1 Lw_pc_x")
    sflag_check(a, "Lw_pc", L_FI, L_FL)
    a("s_add_u32 s25, s25, 1\ns_cmp_lt_u32 s25, 16")
    a("s_waitcnt vmcnt(12)\ns_barrier")
    a("s_cbranch_scc1 Lw_cloop")
    a("s_waitcnt vmcnt(0)\ns_barrier")
    trace_out(a)
    stamp_out(a, True)
    a("s_endpgm")
    def events(L, done, evs):
        a(f"{L}:")
        for i, ev in enumerate(evs):
            if i + 1 < len(evs): a(f"s_cmp_lg_u32 s55, {i}\ns_cbranch_scc1 {L}{i+1}")
            a(f"s_mov_b32 s55, {i+1}")
            ev()
            a(f"s_branch {done}")
            if i + 1 < len(evs): a(f"{L}{i+1}:")

    a("Lw_ev:")
    a("s_cmp_lg_u32 s3, 0\ns_cbranch_scc1 Lw_evx")
    a("s_bitcmp1_b32 s25, 0\ns_cbranch_scc1 Lw_evc")
    a("s_add_u32 s26, s26, 2048\ns_add_u32 s54, s54, 1")
    sflag_sample(a)
    a("s_branch Lw_evdone")
    a("Lw_evc:")
    sflag_check(a, "Lw_pa", L_FI, L_FL)
    a("s_add_u32 s54, s54, 7\ns_cmp_gt_u32 s54, 48\ns_cselect_b32 s54, 255, s54")
    a("s_branch Lw_evdone")
    def b0():
        own_fx(a)
        flag_store(a, "s27", L_TMP, L_L16)
        a("s_add_u32 s54, s54, 40" if OPT.get("eva", 0) else "s_mov_b32 s54, 52")
    def b1():
        a(f"s_lshl_b32 s26, s32, 13\ns_add_u32 s26, s26, {FX}\ns_mov_b32 s54, 55")
        flag_load(a, "s26", 32, L_FI, L_FL)
    def b2():
        flag_poll(a, "Lw_px", "s26", 32, L_FI, L_FL, loaded=True)
        a("s_mov_b32 s54, 255")
    events("Lw_evx", "Lw_evdone", [b0, b1, b2])

    def x1():
        flag_load(a, "s26", 16, L_FI, L_FL)
        a("s_mov_b32 s54, 16")
    def x2():
        stamp(a, 11)
        flag_poll(a, "Lw_pa0", "s26", 16, L_FI, L_FL, loaded=True)
        stamp(a, 3)
        a("s_mov_b32 s54, 255")
    def x3():
        flag_store(a, "s27", L_TMP, L_L16)
        stamp(a, 2)
        a("s_mov_b32 s54, 255")
    events("Lxl_ev", "Lxl_evdone", [x1, x2, x3])

    a("Ll_h:")
    for i in range(AH):
        a(f"s_waitcnt vmcnt({6*(AH-1-i)})\ns_barrier")
    stamp_out(a, True)
    a("s_endpgm")


def helper(a):
    a("; ---- helper workgroups: dequantisation")
    a("s_and_b32 s32, s2, 7\ns_bfe_u32 s33, s2, 0x20003")
    BA = (4, 68)
    HQ, HS, HL = 132, 134, 135
    nt = " nt" if OPT.get("dq_nt", 1) else ""
    a("s_lshl_b32 s14, s32, 3\ns_add_u32 s14, s14, s4")
    a(f"s_mul_i32 s34, s14, {16*14336}\nv_lshrrev_b32 v1, 3, v0\nv_and_b32 v2, 7, v0")
    a(f"v_mul_u32_u24 v1, 14336, v1\nv_lshl_add_u32 v1, v2, 4, v1\nv_add_u32 v{HQ}, s34, v1\nv_add_u32 v{HQ+1}, {8*14336}, v{HQ}")
    a(f"s_lshr_b32 s34, s4, 2\ns_mul_i32 s34, s34, 7168\nv_lshl_add_u32 v{HS}, v2, 3, s34\nv_lshlrev_b32 v{HL}, 4, v0")
    CS = 24576 if OPT.get("skip1") else 16384
    if OPT.get("skip1"): skip1_adj(a, 140)
    else: a("v_mov_b32 v140, 0\nv_mov_b32 v141, 0")
    a(f"v_add_u32 v140, v140, v{HL}\nv_add_u32 v141, v141, v{HL}")
    a(f"s_mul_i32 s24, s32, {56*CS}\ns_mul_i32 s34, s4, {CS//8}\ns_add_u32 s24, s24, s34")
    def start(h):
        B = BA[h]
        a("s_add_u32 s15, s33, s23\ns_and_b32 s15, s15, 3\ns_lshl_b32 s14, s23, 2\ns_add_u32 s15, s15, s14\ns_add_u32 s23, s23, 1")
        perm_s(a, "s15")
        a("s_lshl_b32 s25, s15, 8")
        if h == 0:
            a(f"s_cmp_ge_u32 s15, 56\ns_cselect_b32 s14, 0x40000000, 0\nv_or_b32 v{HQ}, s14, v{HQ}\nv_or_b32 v{HQ+1}, s14, v{HQ+1}")
        a(f"s_mul_i32 s14, s15, {CS}\ns_add_u32 s{20+h}, s24, s14\ns_lshl_b32 s14, s15, 7\nv_add_u32 v{B+5}, s14, v{HS}")
        for rg in range(2):
            for t in range(2):
                r = B + 32 + rg * 8 + t * 4
                a(f"buffer_load_dwordx4 v[{r}:{r+3}], v{HQ+rg}, s[16:19], s25 offen offset:{128*t}{nt}")
    def scales(h):
        B = BA[h]
        for t in range(2):
            a(f"ds_read_b64 v[{B+8+2*t}:{B+9+2*t}], v{B+5} offset:{64*t}")
            a(f"ds_read_b64 v[{B+12+2*t}:{B+13+2*t}], v{B+5} offset:{14336 + 64*t}")
    WSH = OPT.get("wsh", 2)
    a(f"s_mov_b32 s23, {WSH}")
    a("s_min_u32 s14, s4, 6\ns_lshl_b32 s26, s14, 11\ns_mul_i32 s35, s32, 14336\ns_add_u32 s35, s35, s26\ns_mov_b32 m0, s26")
    get_args(a)
    for i, p in enumerate((sSC, sZE)):
        srd(a, 8, p, 16 * F * 2)
        for j in range(2):
            a(f"buffer_load_dwordx4 v{HL}, s[8:11], s35 offen offset:{j*1024} lds")
        if i == 0: a("s_add_u32 m0, s26, 14336")
    srd(a, 16, sQW, D * F * 4)
    start(0)
    start(1)
    srd(a, 8, sWS, SZ_WQ, WS_WQ)
    a(f"s_mul_i32 s27, s32, 56\ns_add_u32 s27, s27, s33\ns_lshl_b32 s27, s27, 8\ns_add_u32 s27, s27, {FA + (WSH + 1) * 1024}")
    get_nonce(a)
    if OPT.get("hx", 0) & 2:
        for i in range(5):
            flag_store(a, "s27", 136, HL)
            a("s_add_u32 s27, s27, 2048")
        a("s_branch Lh_skip")
    a("s_waitcnt vmcnt(8)\ns_barrier")
    scales(0)
    a("s_waitcnt vmcnt(4)")
    a("s_branch Lh_mid")
    a("Lh_loop:")
    for h in range(2):
        start(1 - h)
        scales(h)
        if h == 0:
            a("s_waitcnt vmcnt(6)")
        else:
            a(f"s_cmp_eq_u32 s23, {WSH + 3}\ns_cselect_b32 s14, 1, s4\ns_cmp_lg_u32 s14, 0")
            a("s_waitcnt vmcnt(6)\ns_barrier")
            a(f"s_cbranch_scc1 Lh_nf{h}")
            flag_store(a, "s27", 136, HL)
            a("s_add_u32 s27, s27, 2048")
            a(f"Lh_nf{h}:")
        if h == 0: a("Lh_mid:")
        a("s_waitcnt lgkmcnt(0)")
        a("\n".join(dq_unpack(BA[h])))
        for rg in range(2):
            a("\n".join(dq_rows(BA[h], rg, f"s{20+h}", 140 + rg)))
    a("s_cmp_lt_u32 s23, 15\ns_cbranch_scc1 Lh_loop")
    a("Lh_skip:")
    a("s_cmp_lg_u32 s4, 0")
    a("s_waitcnt vmcnt(0)\ns_barrier")
    a("s_cbranch_scc1 Lh_nf")
    flag_store(a, "s27", 136, HL)
    a("Lh_nf:")
    stamp(a, 5)
    R0, R1 = OPT.get("pf0", 14), OPT.get("pf1", 14)
    if R0 < R1:
        a("s_and_b32 s14, s32, 1\ns_lshl_b32 s14, s14, 2\ns_add_u32 s14, s14, s33\ns_lshl_b32 s14, s14, 3\ns_add_u32 s14, s14, s4")
        a(f"s_mul_i32 s14, s14, {4*7168}\ns_lshr_b32 s34, s32, 1\ns_mul_i32 s34, s34, 1792\ns_add_u32 s14, s14, s34\ns_add_u32 s14, s14, {R0*256*7168}")
        a(f"v_lshrrev_b32 v1, 4, v0\nv_mul_u32_u24 v1, 7168, v1\nv_and_b32 v2, 15, v0\nv_min_u32 v2, 13, v2\nv_lshl_add_u32 v1, v2, 7, v1")
        srd(a, 16, sV, F * F * 2)
        a(f"s_mov_b32 s23, {R1 - R0}")
        a("Lh_pf:")
        a("buffer_load_dword v2, v1, s[16:19], s14 offen")
        a(f"s_add_u32 s14, s14, {256*7168}\ns_sub_u32 s23, s23, 1\ns_cmp_lg_u32 s23, 0\ns_waitcnt vmcnt(0)\ns_cbranch_scc1 Lh_pf")
    stamp(a, 6)
    if OPT.get("hx", 0) & 1:
        own_fx(a)
        flag_store(a, "s27", 136, HL)
        a("s_endpgm")
    a("s_branch L_role")


def gen(opt):
    global OPT
    OPT = opt
    a = Asm()
    a(HDR.rstrip())
    a(f"; @launch grid=(256,1,1) block=(512,1,1) lds={LDS_BYTES}")
    a('.amdgcn_target "amdgcn-amd-amdhsa--gfx950"\n.text')
    a(f".globl {NAME}\n.p2align 8\n.type {NAME},@function\n{NAME}:")
    a("s_cmp_ge_u32 s2, 256\ns_cbranch_scc1 L_end")
    stamp(a, 0)
    a("s_load_dwordx16 s[36:51], s[0:1], 0")
    a(f"s_load_dwordx2 s[{sWS}:{sWS+1}], s[0:1], 64")
    a("v_lshrrev_b32 v1, 6, v0")
    a("v_and_b32 v0, 63, v0")
    a("v_readfirstlane_b32 s4, v1")
    a("s_bfe_u32 s6, s2, 0x20001\ns_bfe_u32 s34, s2, 0x30003\ns_lshl3_add_u32 s6, s6, s34")
    a("s_and_b32 s7, s2, 1\ns_lshr_b32 s34, s2, 6\ns_lshl2_add_u32 s7, s7, s34")
    a("s_and_b32 s3, s4, 3")
    a("s_cmp_ge_u32 s2, 224\ns_cselect_b32 s5, 1, 0\ns_cbranch_scc1 L_h")
    a("L_role:")
    a("s_cmp_lt_u32 s4, 4\ns_cbranch_scc1 L_c")
    loader(a)
    a("L_h:")
    helper(a)
    a("L_c:")
    compute(a)
    a("L_end:\ns_endpgm")
    a('.section .rodata,"a"\n.p2align 6')
    a(kd(NAME, 256, 256))
    return a.text()


if __name__ == "__main__":
    opt = dict(kv.split("=") for kv in sys.argv[2:])
    opt = {k: (int(v) if v.lstrip("-").isdigit() else v) for k, v in opt.items()}
    open(sys.argv[1], "w").write(gen(opt))
```
